```python
import torch

def _softmax(x, axis=-1):
    return torch.softmax(x, dim=axis)
def _gelu(x):
    return torch.nn.functional.gelu(x, approximate="tanh")
def _silu(x):
    return torch.nn.functional.silu(x)
def _sigmoid(x):
    return torch.sigmoid(x)
def _layernorm(x, axis=-1, eps=1e-5):
    m = x.mean(dim=axis, keepdim=True)
    v = x.var(dim=axis, keepdim=True, unbiased=False)
    return (x - m) / torch.sqrt(v + eps)
def _scatter_add(tgt, idx, src, axis=0):
    return tgt.clone().index_add_(axis, idx, src)
def _segment_sum(src, seg, n):
    out = torch.zeros((n,) + src.shape[1:], dtype=src.dtype)
    return out.index_add_(0, seg, src)
def _pad(x, pw):
    flat = tuple(v for pair in reversed(pw) for v in pair)
    return torch.nn.functional.pad(x, flat)

kernel_name = 'gated_mix__compressed_kv_cla__ssm_conv_h3__prompt'

def setup_inputs():

    _w = (lambda a: (lambda t: t.to(torch.bfloat16) if t.is_floating_point() else t)(torch.as_tensor(a)))
    def _A_setup():
        B, H, Sq, Sk, D, M = 1, 32, 2048, 2048, 128, 640
        Dc = 4 * D
        return {
            "x": _w((lambda *s: torch.randn(*s, dtype=torch.bfloat16) * 0.05)(B, Sq, M)),
            "c_kv": _w((lambda *s: torch.randn(*s, dtype=torch.bfloat16) * 0.4)(B, Sk, Dc)),
            "w_q": _w((lambda *s: torch.randn(*s, dtype=torch.bfloat16) * 6.4)(M, H, D) * (M ** -0.5)),
            "w_uk": _w((lambda *s: torch.randn(*s, dtype=torch.bfloat16) * 6.4)(Dc, H, D) * (Dc ** -0.5)),
            "w_uv": _w((lambda *s: torch.randn(*s, dtype=torch.bfloat16) * 0.4)(Dc, H, D) * (Dc ** -0.5)),
            "w_o": _w((lambda *s: torch.randn(*s, dtype=torch.bfloat16) * 0.4)(H, D, M) * ((H * D) ** -0.5)),
        }
    _A_in = _A_setup()

    def _B_setup():
        B, S, D = 1, 2048, 640
        ks = 4
        return {
            "q": _w((lambda *s: torch.randn(*s, dtype=torch.bfloat16) * 0.05)(B, S, D)),
            "k": _w((lambda *s: torch.randn(*s, dtype=torch.bfloat16) * 0.4)(B, S, D)),
            "v": _w((lambda *s: torch.randn(*s, dtype=torch.bfloat16) * 0.4)(B, S, D)),
            "shift_k": _w((lambda *s: torch.randn(*s, dtype=torch.bfloat16) * 0.4)(D, ks) * 0.5),
            "ssm_k": _w((lambda *s: torch.randn(*s, dtype=torch.bfloat16) * 0.8)(D, S) * (1.0 / S ** 0.5)),
            "ssm_D": _w((lambda *s: torch.randn(*s, dtype=torch.bfloat16) * 0.4)(D)),
        }
    _B_in = _B_setup()

    return {
        "A_x": _A_in["x"],
        "A_c_kv": _A_in["c_kv"],
        "A_w_q": _A_in["w_q"],
        "A_w_uk": _A_in["w_uk"],
        "A_w_uv": _A_in["w_uv"],
        "A_w_o": _A_in["w_o"],
        "B_q": _B_in["q"],
        "B_k": _B_in["k"],
        "B_v": _B_in["v"],
        "B_shift_k": _B_in["shift_k"],
        "B_ssm_k": _B_in["ssm_k"],
        "B_ssm_D": _B_in["ssm_D"],
        "gate_w": _w((lambda *s: torch.randn(*s, dtype=torch.bfloat16) * 0.05)(640) * 16.0),
    }

def reference(A_x, A_c_kv, A_w_q, A_w_uk, A_w_uv, A_w_o, B_q, B_k, B_v, B_shift_k, B_ssm_k, B_ssm_D, gate_w):
    def _A_ref(x, c_kv, w_q, w_uk, w_uv, w_o):
        B, Sq, M = x.shape[0], x.shape[1], x.shape[2]
        Sk = c_kv.shape[1]
        H, D = w_q.shape[1], w_q.shape[2]
        q = torch.einsum("bqm,mhd->bhqd", x, w_q)
        k = torch.einsum("bkc,chd->bhkd", c_kv, w_uk)
        v = torch.einsum("bkc,chd->bhkd", c_kv, w_uv)
        scores = torch.einsum("bhqd,bhkd->bhqk", q, k) * (D ** -0.5)
        off = Sk - Sq
        qi = torch.arange(Sq)[:, None]
        kj = torch.arange(Sk)[None, :]
        cmask = kj <= (qi + off)
        scores = torch.where(cmask[None, None], scores, -1e9)
        p = _softmax(scores, axis=-1)
        ctx = torch.einsum("bhqk,bhkd->bhqd", p, v)
        return torch.einsum("bhqd,hdm->bqm", ctx, w_o)

    def _B_ref(q, k, v, shift_k, ssm_k, ssm_D):
        B, S, D = q.shape
        ks = shift_k.shape[-1]
        k_pad = _pad(k, ((0, 0), (ks - 1, 0), (0, 0)))
        k_shift = torch.zeros_like(k)
        for t in range(ks):
            k_shift = k_shift + k_pad[:, t:t + S, :] * shift_k[:, ks - 1 - t][None, None, :]
        kv = k_shift * v
        L = 2 * S
        kv_pad = _pad(kv, ((0, 0), (0, S), (0, 0)))
        kf_pad = _pad(ssm_k, ((0, 0), (0, S)))
        kv_f = (lambda x, axes=(-2,-1): torch.fft.rfft2(x.float(), dim=axes))(kv_pad[:, None, :, :], axes=(1, 2))
        kf_f = (lambda x, axes=(-2,-1): torch.fft.rfft2(x.float(), dim=axes))(kf_pad[:, None, :], axes=(1, 2))
        kf_f = (lambda x, *d: x.permute(*d))(kf_f, 1, 2, 0)
        y_f = kv_f * kf_f[None, :, :, :]
        y = (lambda x, s, axes=(-2,-1): torch.fft.irfft2(x, s=s, dim=axes).to(torch.bfloat16))(y_f, (1, L), axes=(1, 2))[:, 0, :S, :]
        y = y + kv * ssm_D[None, None, :]
        return q * y

    x = A_x
    g = _sigmoid((x * gate_w).sum(-1, keepdims=True))
    a = _A_ref(x, A_c_kv, A_w_q, A_w_uk, A_w_uv, A_w_o)
    b = _B_ref(x, B_k, B_v, B_shift_k, B_ssm_k, B_ssm_D)
    return g * a + (1 - g) * b
```

```python
class Kern:
    def __init__(self, name, nvgpr, accoff, nsgpr, grid, block, lds):
        self.name, self.nvgpr, self.accoff, self.nsgpr = name, nvgpr, accoff, nsgpr
        self.grid, self.block, self.lds = grid, block, lds
        self.lines = []
        self.vm = []
        self.lg = []
        self.nlab = 0
    def e(self, s):
        for l in s.strip("\n").split("\n"):
            l = l.strip()
            if l:
                self.lines.append("    " + l)
    def label(self, l):
        self.lines.append(f"{self.name}_{l}:")
    def L(self, l):
        return f"{self.name}_{l}"
    def newlabel(self, base="L"):
        self.nlab += 1
        return f"{base}{self.nlab}"
    def vmem(self, s, tag):
        self.e(s); self.vm.append(tag)
    def lds_op(self, s, tag):
        self.e(s); self.lg.append(tag)
    def _need(self, q, tags):
        idx = -1
        for i, t in enumerate(q):
            if t in tags:
                idx = i
        return idx
    def wait_str(self, vmtags=(), lgtags=()):
        parts = []
        i = self._need(self.vm, vmtags)
        if i >= 0:
            n = len(self.vm) - 1 - i
            if n > 63:
                n = 63
            parts.append(f"vmcnt({n})")
            self.vm = self.vm[len(self.vm) - n:] if n else []
        i = self._need(self.lg, lgtags)
        if i >= 0:
            n = len(self.lg) - 1 - i
            if n > 15:
                n = 15
            parts.append(f"lgkmcnt({n})")
            self.lg = self.lg[len(self.lg) - n:] if n else []
        return ("s_waitcnt " + " ".join(parts)) if parts else None
    def wait(self, vmtags=(), lgtags=()):
        s = self.wait_str(vmtags, lgtags)
        if s:
            self.e(s)
    def wait_all(self):
        self.e("s_waitcnt vmcnt(0) lgkmcnt(0)"); self.vm = []; self.lg = []
    def srd(self, d, bptr, nbytes, off=None):
        if off:
            self.e(f"s_add_u32 s{d}, s{bptr}, {hex(off)}")
            self.e(f"s_addc_u32 s{d+1}, s{bptr+1}, 0")
        else:
            self.e(f"s_mov_b32 s{d}, s{bptr}")
            self.e(f"s_mov_b32 s{d+1}, s{bptr+1}")
        self.e(f"s_mov_b32 s{d+2}, {hex(nbytes)}")
        self.e(f"s_mov_b32 s{d+3}, 0x00020000")
    STAMP = False
    def stamp(self, i):
        if not Kern.STAMP: return
        b = self.stamp_base + 4 * i
        self.e(f"s_memrealtime s[{b}:{b+1}]\ns_memtime s[{b+2}:{b+3}]")
        self.nstamps = max(getattr(self, "nstamps", 0), i + 1)
    def stamp_flush(self, wsptr, off, vtmp):
        if not Kern.STAMP: return
        n = self.nstamps
        self.e("s_waitcnt lgkmcnt(0)")
        self.e(f"s_lshl_b32 s3, s2, 6\ns_add_u32 s3, s3, {hex(off)}\nv_mov_b32 v{vtmp}, s3")
        lab = self.newlabel("st")
        self.e(f"v_cmp_eq_u32 vcc, 0, v0\ns_and_saveexec_b64 s[4:5], vcc\ns_cbranch_execz {self.L(lab)}")
        for i in range(n):
            self.e(f"v_mov_b32 v{vtmp+1}, s{self.stamp_base+4*i}\nglobal_store_dword v{vtmp}, v{vtmp+1}, s[{wsptr}:{wsptr+1}] offset:{4*i}\ns_nop 1")
            self.e(f"v_mov_b32 v{vtmp+1}, s{self.stamp_base+4*i+2}\nglobal_store_dword v{vtmp}, v{vtmp+1}, s[{wsptr}:{wsptr+1}] offset:{32+4*i}\ns_nop 1")
        self.label(lab)
    def text(self):
        return (f".globl {self.name}\n.p2align 8\n.type {self.name},@function\n{self.name}:\n" + "\n".join(self.lines) + "\n")
    def kd(self):
        return f""".p2align 6
.amdhsa_kernel {self.name}
  .amdhsa_next_free_vgpr {self.nvgpr}
  .amdhsa_next_free_sgpr {self.nsgpr}
  .amdhsa_accum_offset {self.accoff}
  .amdhsa_group_segment_fixed_size 0
  .amdhsa_kernarg_size 128
  .amdhsa_user_sgpr_count 2
  .amdhsa_user_sgpr_kernarg_segment_ptr 1
  .amdhsa_system_sgpr_workgroup_id_x 1
  .amdhsa_float_denorm_mode_32 3
.end_amdhsa_kernel
"""
    def launch(self):
        return f"; @launch kernel={self.name} grid=({self.grid},1,1) block=({self.block},1,1) lds={self.lds}"

def vr(b, n=1, t="v"):
    return f"{t}{b}" if n == 1 else f"{t}[{b}:{b+n-1}]"
def ar(b, n=1):
    return vr(b, n, "a")
def sr(b, n=1):
    return vr(b, n, "s")

def spread(nm, items, lo=0, hi=None):
    hi = nm if hi is None else hi
    d = {}
    n = len(items)
    for i, it in enumerate(items):
        g = lo + (i * (hi - lo)) // n
        d.setdefault(g, []).append(it)
    return d

def write_file(path, header, kerns):
    out = header
    out += "\n".join(k.launch() for k in kerns) + "\n"
    out += '.amdgcn_target "amdgcn-amd-amdhsa--gfx950"\n.text\n'
    for k in kerns:
        out += k.text()
    out += 'all_code_end:\n'
    out += '.section .rodata,"a"\n'
    for k in kerns:
        out += k.kd()
    open(path, "w").write(out)
```

```python
from asmlib import *
import layout as LY
import struct, sys
EXP = [a for a in sys.argv if a.startswith('x_')]

def f32bits(x):
    return "0x%08x" % struct.unpack("<I", struct.pack("<f", x))[0]

OX, OY, QX, QY, VF = 0, 64, 128, 160, 192
KF, SX, SY, PX, PY, NX, NY = 192, 128, 160, 96, 112, 64, 80
V_D0 = 4
V_LANE16 = 4
V_KA, V_VA, V_CTX, V_D = 8, 9, 10, 11
V_LX, V_LY, V_LB, V_BIG = 12, 13, 14, 15
V_LT = 16
V_M = 18
V_T = 19
V_X = 24
V_E = 32
SRD_V, SRD_K, SRD_G = 4, 8, 44
MASKS = 12
S_W, S_H, S_P, S_N1, S_J = 48, 49, 50, 51, 52
S_KA, S_KB, S_KOFF, S_VOFF, S_DB = 53, 54, 55, 56, 57
S_RX, S_RY = 58, 59
S_W4K, S_WODD, S_HB = 60, 61, 62
S_T0, S_T1, S_T2 = 63, 64, 65
S_FC, S_FB, S_N1M3, S_CTXB = 66, 67, 68, 69
QL = 131072
THR = f32bits(65536.0)

def gen_attn():
    k = Kern("attn_kernel", 512, 256, 102, 256, 256, 163840)
    e = k.e
    k.stamp_base = 70
    L = k.L
    e(f"s_cmp_ge_u32 s2, 256\ns_cbranch_scc1 {L('end')}")
    k.stamp(0)
    e(f"s_load_dwordx2 s[{SRD_G}:{SRD_G+1}], s[0:1], 120")
    e(f"v_lshrrev_b32 v2, 6, v0\nv_and_b32 v1, 63, v0\ns_nop 0\nv_readfirstlane_b32 s{S_W}, v2")
    e(f"""s_and_b32 s{S_H}, s2, 7
s_lshl_b32 s{S_H}, s{S_H}, 2
s_lshr_b32 s{S_P}, s2, 3
s_and_b32 s3, s{S_P}, 3
s_add_u32 s{S_H}, s{S_H}, s3
s_lshr_b32 s{S_P}, s{S_P}, 2
s_lshl_b32 s{S_N1}, s{S_P}, 1
s_add_u32 s{S_N1}, s{S_N1}, 2
s_lshl_b32 s{S_W4K}, s{S_W}, 12
s_and_b32 s{S_WODD}, s{S_W}, 1
s_lshl_b32 s{S_HB}, s{S_H}, 20
s_add_u32 s{S_HB}, s{S_HB}, {hex(LY.KVF_OFF)}
s_add_u32 s{S_HB}, s{S_HB}, s{S_W4K}
s_sub_u32 s{S_RX}, 15, s{S_P}
s_lshl_b32 s{S_RX}, s{S_RX}, 2
s_add_u32 s{S_RX}, s{S_RX}, s{S_W}
s_lshl_b32 s{S_RY}, s{S_P}, 2
s_add_u32 s{S_RY}, s{S_RY}, s{S_W}
v_lshlrev_b32 v{V_D0}, 4, v1
v_add_u32 v{V_D0+1}, 0x8000, v{V_D0}
v_add_u32 v{V_D0+2}, 0x4000, v{V_D0}
v_add_u32 v{V_D0+3}, 0xc000, v{V_D0}
s_mov_b32 s{SRD_G+2}, 0x4000000
s_mov_b32 s{SRD_G+3}, 0x00020000
s_waitcnt lgkmcnt(0)""")
    G = f"s[{SRD_G}:{SRD_G+3}]"
    def dma4(m0expr, voff, srd, soff):
        out = [[m0expr, "NOPIF", f"buffer_load_dwordx4 v{voff}, s[{srd}:{srd+3}], s{soff} offen lds"]]
        for i in range(1, 4):
            out.append([f"buffer_load_dwordx4 v{voff}, s[{srd}:{srd+3}], s{soff} offen offset:{i*1024} lds"])
        return out
    def flat(items):
        for it in items:
            for x in it: e("s_nop 0" if x == "NOPIF" else x)
    flat(dma4(f"s_add_u32 m0, s{S_W4K}, 0x10000", V_D0, SRD_G, S_HB))
    e(f"""s_lshl_b32 s{S_T0}, s{S_H}, 6
s_add_u32 s{S_T1}, s{S_T0}, s{S_RX}
s_lshl_b32 s{S_T1}, s{S_T1}, 13
s_add_u32 s{S_T2}, s{S_W4K}, {QL}""")
    flat(dma4(f"s_add_u32 m0, s{S_W4K}, s{S_T2}", V_D0, SRD_G, S_T1))
    e(f"s_add_u32 s{S_T1}, s{S_T1}, 4096\ns_add_u32 s{S_T2}, s{S_T2}, 4096")
    flat(dma4(f"s_add_u32 m0, s{S_W4K}, s{S_T2}", V_D0, SRD_G, S_T1))
    e(f"s_add_u32 s{S_T1}, s{S_T0}, s{S_RY}\ns_lshl_b32 s{S_T1}, s{S_T1}, 13\ns_add_u32 s{S_T2}, s{S_T1}, 4096")
    for i in range(8):
        e(f"buffer_load_dwordx4 {ar(QY+4*i,4)}, v{V_D0}, {G}, s{S_T1 if i < 4 else S_T2} offen offset:{(i&3)*1024}")
    flat(dma4(f"s_add_u32 m0, s{S_W4K}, 0x8000", V_D0+2, SRD_G, S_HB))
    flat(dma4(f"s_mov_b32 m0, s{S_W4K}", V_D0+1, SRD_G, S_HB))
    k.srd(SRD_K, SRD_G, 64 << 20)
    k.srd(SRD_V, SRD_G, 64 << 20)
    e(f"""v_and_b32 v2, 31, v1
v_lshrrev_b32 v3, 5, v1
v_lshlrev_b32 v{V_D}, 2, v3
v_sub_u32 v{V_D}, v2, v{V_D}""")
    for r in range(16):
        f = LY.row2key(8 * (r >> 2) + (r & 3))
        e(f"v_cmp_le_i32 s[{MASKS+2*r}:{MASKS+2*r+1}], {f}, v{V_D}")
    e(f"""v_lshrrev_b32 v{V_T}, 4, v2
v_lshlrev_b32 v{V_T}, 17, v{V_T}
v_lshlrev_b32 v{V_T+1}, 8, v3
v_add_u32 v{V_T}, v{V_T}, v{V_T+1}
v_and_b32 v{V_T+1}, 15, v2
v_lshlrev_b32 v{V_T+1}, 4, v{V_T+1}
v_add_u32 v{V_T}, v{V_T}, v{V_T+1}
s_lshl_b32 s{S_T0}, s{S_H}, 12
s_add_u32 s{S_T0}, s{S_T0}, {hex(LY.CTX_OFF)}
v_add_u32 v{V_CTX}, s{S_T0}, v{V_T}
v_mov_b32 v{V_BIG}, {f32bits(-1e30)}""")
    for r in range(128):
        e(f"v_accvgpr_write_b32 a{r}, 0")
    for r in range(32):
        e(f"v_mov_b32 v{NX+r}, 0")
    e(f"""v_mov_b32 v{V_LX}, 0
v_mov_b32 v{V_LY}, 0
s_mov_b32 s{S_J}, -1
s_add_u32 s{S_KA}, s{S_HB}, 0x8000
s_sub_u32 s{S_T0}, 2, s{S_N1}
s_lshl_b32 s{S_T0}, s{S_T0}, 15
s_add_u32 s{S_KB}, s{S_HB}, s{S_T0}
s_mov_b32 s{S_KOFF}, s{S_KA}
s_mov_b32 s{S_DB}, s{S_W4K}
v_add_u32 v{V_KA}, 0x10000, v{V_D0}
v_add_u32 v{V_VA}, 0x10000, v{V_D0}
s_sub_i32 s{S_N1M3}, s{S_N1}, 3
s_sub_u32 s{S_T0}, s{S_N1}, 2
s_lshl_b32 s{S_FC}, 7, s{S_T0}
s_or_b32 s{S_FC}, s{S_FC}, 0x1c000
s_sub_u32 s{S_T0}, s{S_N1}, 1
s_lshl_b32 s{S_FB}, 1, s{S_T0}
s_or_b32 s{S_FB}, s{S_FB}, 0x8000""")
    e("s_waitcnt vmcnt(8)\ns_barrier")
    k.stamp(1)
    e(f"s_lshl_b32 s{S_T0}, s{S_W}, 13\ns_add_u32 s{S_T0}, s{S_T0}, {QL}\nv_add_u32 v{V_T}, s{S_T0}, v{V_D0}")
    for i in range(8):
        e(f"ds_read_b128 {ar(QX+4*i,4)}, v{V_T} offset:{i*1024}")
        e(f"ds_read_b128 {vr(KF+4*i,4)}, v{V_KA} offset:{i*1024}")
    for i in range(8, 16):
        e(f"ds_read_b128 {vr(KF+4*i,4)}, v{V_KA} offset:{i*1024}")

    def regs(Z):
        return dict(S=SX, Q=QX, N=NX, O=OX, P=PX, L=V_LX, R=S_RX) if Z == "X" else dict(S=SY, Q=QY, N=NY, O=OY, P=PY, L=V_LY, R=S_RY)
    def qk(Z):
        r = regs(Z); out = []
        for kb in range(2):
            for ks in range(8):
                c = vr(r["N"], 16) if ks == 0 else vr(r["S"] + 16*kb, 16)
                out.append(f"v_mfma_f32_32x32x16_bf16 {vr(r['S']+16*kb,16)}, {vr(KF+4*(8*kb+ks),4)}, {ar(r['Q']+4*ks,4)}, {c}")
        return out
    def pv(Z):
        r = regs(Z); out = []
        for db in range(4):
            for s in range(4):
                out.append(f"v_mfma_f32_32x32x16_bf16 {ar(r['O']+16*db,16)}, {ar(VF+4*(4*db+s),4)}, {vr(r['P']+4*s,4)}, {ar(r['O']+16*db,16)}")
        return out
    def sm_core(Z):
        r = regs(Z); S, P = r["S"], r["P"]
        t = lambda i: V_X + (i % 8)
        it = []
        for pi in range(17):
            post = []
            if pi >= 1:
                q = pi - 1
                post.append((1, [f"v_cvt_pk_bf16_f32 v{P+q}, v{t(2*q)}, v{t(2*q+1)}"]))
                if q == 1:
                    post.append((1, [f"v_add_f32 v{V_LT}, v{t(0)}, v{t(2)}"]))
                    post.append((1, [f"v_add_f32 v{V_LT+1}, v{t(1)}, v{t(3)}"]))
                elif q >= 2:
                    post.append((1, [f"v_add_f32 v{V_LT}, v{V_LT}, v{t(2*q)}"]))
                    post.append((1, [f"v_add_f32 v{V_LT+1}, v{V_LT+1}, v{t(2*q+1)}"]))
            if pi < 16:
                it.append((2, [f"v_exp_f32 v{t(2*pi)}, v{S+2*pi}"]))
                if post: it.append(post.pop())
                it.append((2, [f"v_exp_f32 v{t(2*pi+1)}, v{S+2*pi+1}"]))
            elif post:
                it.append((1, ["s_nop 0"]))
            it += post
        it.append((1, [f"v_add_f32 v{V_LT}, v{V_LT}, v{V_LT+1}"]))
        return it
    redo_sites = []
    def sm(Z, tag):
        r = regs(Z)
        it = sm_core(Z)
        lab = f"rd{Z}{tag}"
        it.append((1, [f"v_cmp_nge_f32 vcc, {THR}, v{V_LT}"]))
        it.append((1, [f"s_cbranch_vccnz {L(lab)}", ("label", lab + "r")]))
        it.append((1, [f"v_add_f32 v{r['L']}, v{r['L']}, v{V_LT}"]))
        redo_sites.append((Z, lab))
        return it
    def emit(x):
        if isinstance(x, tuple): k.label(x[1])
        elif x == "NOPIF": e("s_nop 0")
        elif "x_nodma" in EXP and x.endswith(" lds"): pass
        elif "x_nobar" in EXP and x == "s_barrier": pass
        else: e(x)
    def weave(mf, fixed, stream, cap=None):
        n = len(mf)
        fw = [sum(w for w, _ in fixed.get(g, [])) for g in range(n)]
        tot = sum(w for w, _ in stream) + sum(fw)
        per = tot / n
        acc = 0.0; si = 0
        for g in range(n):
            if mf[g] and "x_nomfma" not in EXP: e(mf[g])
            gw = 0
            for w, ins in fixed.get(g, []):
                for x in ins: emit(x)
                acc += w; gw += w
            while si < len(stream) and (g == n - 1 or (acc + stream[si][0] * 0.5 <= per * (g + 1) + 0.01 and gw + stream[si][0] <= 6)):
                for x in stream[si][1]: emit(x)
                acc += stream[si][0]; gw += stream[si][0]; si += 1
    def add(fx, g, ins, w=None):
        fx.setdefault(g, []).append((len(ins) if w is None else w, ins))
    def vlds(i): return 32768 + ((i & 3) * 4 + (i >> 2)) * 1024
    NV1 = 6

    def dma_items(n16):
        items = []
        def unit(m0, voff, srd, soff):
            d = dma4(m0, voff, srd, soff)
            items.append([d[0][0]])
            items.append([d[0][2]])
            items.extend(d[1:])
        items.append([f"s_mov_b32 s{S_VOFF}, s{S_KOFF}", f"s_add_u32 s{S_KA}, s{S_KA}, 0x8000"])
        items.append([f"s_add_u32 s{S_KB}, s{S_KB}, 0x10000", f"s_xor_b32 s{S_DB}, s{S_DB}, 0x10000"])
        items.append([f"s_max_u32 s{S_KOFF}, s{S_KA}, s{S_KB}"])
        pre = len(items)
        unit(f"s_add_u32 m0, s{S_DB}, 0x8000", V_D0+2, SRD_V, S_VOFF)
        if n16: unit(f"s_add_u32 m0, s{S_DB}, 0xc000", V_D0+3, SRD_V, S_VOFF)
        unit(f"s_mov_b32 m0, s{S_DB}", V_D0, SRD_K, S_KOFF)
        if n16: unit(f"s_add_u32 m0, s{S_DB}, 0x4000", V_D0+1, SRD_K, S_KOFF)
        return items[:pre], items[pre:]

    def body(tag, n16):
        mf = qk("X") + pv("X") + qk("Y") + pv("Y")
        fx = {}
        e(f"s_waitcnt lgkmcnt({NV1})")
        for i in range(NV1, 16):
            add(fx, int((i - NV1) * 1.25), [f"ds_read_b128 {ar(VF+4*i,4)}, v{V_VA} offset:{vlds(i)}"])
        pre, dm = dma_items(n16)
        for i, it in enumerate(pre): add(fx, 12 + i, it)
        add(fx, 15, ["s_waitcnt vmcnt(0) lgkmcnt(0)", "s_barrier"])
        span = 30 if n16 else 24
        for i, it in enumerate(dm): add(fx, 16 + (i * span) // len(dm), it)
        add(fx, 29, [f"v_xor_b32 v{V_KA}, 0x10000, v{V_KA}"])
        add(fx, 30, [f"v_xor_b32 v{V_VA}, 0x10000, v{V_VA}"])
        for i in range(16):
            add(fx, 32 + 2 + int(i * 1.35), [f"ds_read_b128 {vr(KF+4*i,4)}, v{V_KA} offset:{i*1024}"])
        for i in range(NV1):
            add(fx, 32 + 24 + int(i * 1.3), [f"ds_read_b128 {ar(VF+4*i,4)}, v{V_VA} offset:{vlds(i)}"])
        weave(mf[:32], {g: v for g, v in fx.items() if g < 32}, sm("Y", tag))
        if n16:
            e(f"s_bitcmp1_b32 s{S_FB}, s{S_J}\ns_cbranch_scc1 {L('hB')}")
            k.label("hBr")
        weave(mf[32:], {g - 32: v for g, v in fx.items() if g >= 32}, sm("X", tag))
        e(f"s_add_u32 s{S_J}, s{S_J}, 1")

    def first_block(Z):
        r = regs(Z); S, N = r["S"], r["N"]
        tile_max(S)
        e(f"v_sub_f32 v{N}, v{N}, v{V_M}")
        for i in range(32): e(f"v_sub_f32 v{S+i}, v{S+i}, v{V_M}")
        for i in range(1, 16): e(f"v_mov_b32 v{N+i}, v{N}")
    def tile_max(S):
        e(f"v_max3_f32 v{V_M}, v{S}, v{S+1}, v{S+2}\nv_max3_f32 v{V_T}, v{S+3}, v{S+4}, v{S+5}")
        i = 6; tog = 0
        while i < 32:
            d = V_M if tog == 0 else V_T
            e(f"v_max3_f32 v{d}, v{d}, v{S+i}, v{S+i+1}"); i += 2; tog ^= 1
        e(f"""v_max_f32 v{V_M}, v{V_M}, v{V_T}
v_mov_b32 v{V_T}, v{V_M}
s_nop 1
v_permlane32_swap_b32 v{V_T}, v{V_M}
s_nop 1
v_max_f32 v{V_M}, v{V_M}, v{V_T}""")

    e("s_waitcnt lgkmcnt(0)")
    pre, dm = dma_items(True)
    fx = {}
    for i, it in enumerate(pre): add(fx, 10 + i, it)
    add(fx, 15, ["s_waitcnt vmcnt(0)", "s_barrier"])
    weave(qk("X"), fx, [])
    fx = {}
    for i, it in enumerate(dm): add(fx, (i * 16) // len(dm), it if not it[0].startswith("s_") else it + ["s_nop 0"])
    weave(qk("Y"), fx, [])
    e(f"v_xor_b32 v{V_KA}, 0x10000, v{V_KA}\nv_xor_b32 v{V_VA}, 0x10000, v{V_VA}")
    for i in range(16):
        e(f"ds_read_b128 {vr(KF+4*i,4)}, v{V_KA} offset:{i*1024}")
    for i in range(NV1):
        e(f"ds_read_b128 {ar(VF+4*i,4)}, v{V_VA} offset:{vlds(i)}")
    first_block("X")
    for w, ins in sm("X", "p"):
        for x in ins: emit(x)
    e(f"s_mov_b32 s{S_J}, 0\ns_branch {L('hC')}")
    k.label("loop8")
    body("a", False)
    e(f"s_cmp_lt_i32 s{S_J}, s{S_N1M3}\ns_cbranch_scc1 {L('loop8')}")
    k.label("loop16")
    body("b", True)
    e(f"s_bitcmp1_b32 s{S_FC}, s{S_J}\ns_cbranch_scc0 {L('loop16')}")
    k.label("hC")
    if Kern.STAMP:
        e(f"s_cmp_lg_u32 s{S_J}, 0\ns_cbranch_scc1 {L('nost')}")
        k.stamp(2)
        k.label("nost")
    e(f"s_cmp_lg_u32 s{S_J}, s{S_N1}\ns_cbranch_scc1 {L('hC1')}")
    D = V_T
    e(f"""v_mov_b32 v{D}, v{V_LB}
s_nop 1
v_permlane32_swap_b32 v{D}, v{V_LB}
s_nop 1
v_add_f32 v{D}, v{D}, v{V_LB}
v_rcp_f32 v{D}, v{D}
s_nop 7""")
    for db in range(4):
        for s in range(2):
            t = V_E + 12 * ((2*db+s) % 2)
            b = 16*db + 8*s
            for i in range(8): e(f"v_accvgpr_read_b32 v{t+i}, a{OY+b+i}")
            for i in range(8): e(f"v_accvgpr_write_b32 a{OY+b+i}, 0")
            for i in range(8): e(f"v_mul_f32 v{t+i}, v{t+i}, v{D}")
            for i in range(4): e(f"v_cvt_pk_bf16_f32 v{t+8+i}, v{t+2*i}, v{t+2*i+1}")
            e(f"buffer_store_dwordx4 {vr(t+8,4)}, v{V_CTX}, {G}, s{S_CTXB} offen offset:{db*1024 + s*512}")
    k.label("hC1")
    e(f"""s_add_u32 s{S_T0}, s{S_J}, 2
s_cmp_eq_u32 s{S_T0}, s{S_N1}
s_cselect_b32 s{S_T0}, s{S_WODD}, 0
s_lshl_b32 s{S_T0}, s{S_T0}, 14
v_add_u32 v{V_KA}, s{S_T0}, v{V_KA}
s_cmp_ge_u32 s{S_J}, 14
s_cselect_b32 s{SRD_K+2}, 0, s{SRD_K+2}
s_cmp_ge_u32 s{S_J}, 15
s_cselect_b32 s{SRD_V+2}, 0, s{SRD_V+2}""")
    e(f"""s_lshl_b32 s{S_T0}, s{S_J}, 1
s_sub_u32 s{S_T0}, s{S_T0}, s{S_N1}
s_add_u32 s{S_T0}, s{S_T0}, s{S_WODD}
s_cmp_lt_u32 s{S_J}, s{S_N1}
s_cselect_b32 s{S_T0}, s{S_J}, s{S_T0}
s_lshl_b32 s{S_T0}, s{S_T0}, 1
s_sub_u32 s{S_T0}, s{S_T0}, s{S_RY}""")
    def mask_code(S, nm):
        e(f"s_cmp_lt_i32 s{S_T0}, -1\ns_cbranch_scc1 {L(nm + 'r')}")
        e(f"s_cmp_eq_i32 s{S_T0}, -1\ns_cbranch_scc1 {L(nm + 'a')}")
        e(f"s_cmp_eq_i32 s{S_T0}, 0\ns_cbranch_scc1 {L(nm + 'b')}")
        for r in range(32): e(f"v_mov_b32 v{S+r}, v{V_BIG}")
        e(f"s_branch {L(nm + 'r')}")
        k.label(nm + "a")
        for r in range(16):
            e(f"v_cndmask_b32 v{S+16+r}, v{V_BIG}, v{S+16+r}, s[{MASKS+2*r}:{MASKS+2*r+1}]")
        e(f"s_branch {L(nm + 'r')}")
        k.label(nm + "b")
        for r in range(16):
            e(f"v_cndmask_b32 v{S+r}, v{V_BIG}, v{S+r}, s[{MASKS+2*r}:{MASKS+2*r+1}]")
            e(f"v_mov_b32 v{S+16+r}, v{V_BIG}")
        k.label(nm + "r")
    mask_code(SY, "mY")
    e(f"s_cmp_eq_u32 s{S_J}, 0\ns_cbranch_scc1 {L('hCf')}\ns_cmp_lg_u32 s{S_J}, s{S_N1}\ns_cbranch_scc1 {L('hC2')}")
    k.label("hCf")
    first_block("Y")
    k.label("hC2")
    e(f"s_cmp_lt_i32 s{S_J}, s{S_N1M3}\ns_cbranch_scc1 {L('loop8')}")
    e(f"s_cmp_lt_u32 s{S_J}, 16\ns_cbranch_scc1 {L('loop16')}")
    k.stamp(3)
    for i in range(NV1, 16):
        e(f"ds_read_b128 {ar(VF+4*i,4)}, v{V_VA} offset:{vlds(i)}")
    st = sm("Y", "e")
    for w, ins in st[:12]:
        for x in ins: emit(x)
    e("s_waitcnt lgkmcnt(0)")
    weave(pv("X"), {}, st[12:])
    e("s_nop 1")
    for m in pv("Y"): e(m)
    k.stamp(4)
    e("s_waitcnt vmcnt(0)\ns_barrier")
    e(f"s_mul_i32 s{S_T0}, s{S_W}, {18*1024}\nv_add_u32 v{V_T}, s{S_T0}, v{V_D0}")
    e(f"v_mov_b32 v{NY+1}, v{V_LY}\ns_nop 7")
    for i in range(16):
        e(f"ds_write_b128 v{V_T}, {ar(OY+4*i,4)} offset:{i*1024}")
    e(f"ds_write_b128 v{V_T}, {vr(NY,4)} offset:{16*1024}")
    e(f"s_xor_b32 s{S_T0}, s{S_W}, 1\ns_mul_i32 s{S_T0}, s{S_T0}, {18*1024}\nv_add_u32 v{V_T}, s{S_T0}, v{V_D0}")
    e("s_waitcnt lgkmcnt(0)\ns_barrier")
    e(f"ds_read_b128 {vr(NY,4)}, v{V_T} offset:{16*1024}")
    for i in range(16):
        e(f"ds_read_b128 {vr(128+4*i,4)}, v{V_T} offset:{i*1024}")
    e("s_waitcnt lgkmcnt(15)")
    A, B, C, D = V_T+1, V_T+2, V_T+3, V_T+4
    e(f"""v_min_f32 v{A}, v{NX}, v{NY}
v_sub_f32 v{B}, v{A}, v{NX}
v_sub_f32 v{C}, v{A}, v{NY}
v_exp_f32 v{B}, v{B}
v_exp_f32 v{C}, v{C}
s_nop 0
v_mul_f32 v{V_LX}, v{V_LX}, v{B}
v_fma_f32 v{V_LX}, v{NY+1}, v{C}, v{V_LX}
v_mov_b32 v{D}, v{V_LX}
s_nop 1
v_permlane32_swap_b32 v{D}, v{V_LX}
s_nop 1
v_add_f32 v{D}, v{D}, v{V_LX}
v_rcp_f32 v{D}, v{D}
s_nop 0
v_mul_f32 v{B}, v{B}, v{D}
v_mul_f32 v{C}, v{C}, v{D}
s_lshl_b32 s{S_CTXB}, s{S_RX}, 18
s_waitcnt lgkmcnt(0)""")
    for db in range(4):
        for s in range(2):
            t = V_E + 12 * ((2*db+s) % 2)
            b = 16*db + 8*s
            for i in range(8): e(f"v_accvgpr_read_b32 v{t+i}, a{OX+b+i}")
            for i in range(8): e(f"v_mul_f32 v{128+b+i}, v{128+b+i}, v{C}")
            for i in range(8): e(f"v_fma_f32 v{t+i}, v{t+i}, v{B}, v{128+b+i}")
            for i in range(4): e(f"v_cvt_pk_bf16_f32 v{t+8+i}, v{t+2*i}, v{t+2*i+1}")
            e(f"buffer_store_dwordx4 {vr(t+8,4)}, v{V_CTX}, {G}, s{S_CTXB} offen offset:{db*1024 + s*512}")
    k.stamp(5)
    if Kern.STAMP:
        e("s_waitcnt vmcnt(0)")
    k.stamp(6)
    k.stamp_flush(SRD_G, LY.STAMP_OFF + 65536 * getattr(gen_attn, "idx", 1), 2)
    k.label("end")
    e("s_endpgm")

    k.label("hB")
    e(f"s_add_u32 s{S_T0}, s{S_J}, 1\ns_cmp_lg_u32 s{S_T0}, s{S_N1}\ns_cbranch_scc1 {L('hB1')}")
    e(f"s_xor_b32 s{S_T0}, s{S_W}, 1\ns_lshl_b32 s{S_T0}, s{S_T0}, 13\ns_add_u32 s{S_T0}, s{S_T0}, {QL}\nv_add_u32 v{V_T}, s{S_T0}, v{V_D0}")
    for i in range(8):
        e(f"ds_read_b128 {ar(QY+4*i,4)}, v{V_T} offset:{i*1024}")
    e(f"v_mov_b32 v{V_LB}, v{V_LY}\nv_mov_b32 v{V_LY}, 0")
    for r in range(16): e(f"v_mov_b32 v{NY+r}, 0")
    e(f"""s_lshl_b32 s{S_CTXB}, s{S_RY}, 18
s_xor_b32 s{S_RY}, s{S_RX}, 1
s_lshl_b32 s{S_T0}, s{S_WODD}, 14
v_add_u32 v{V_VA}, s{S_T0}, v{V_VA}
s_waitcnt lgkmcnt(0)""")
    k.label("hB1")
    e(f"s_cmp_lg_u32 s{S_J}, 15\ns_cbranch_scc1 {L('hBr')}")
    e(f"""s_sub_u32 s{S_T0}, 32, s{S_N1}
s_add_u32 s{S_T0}, s{S_T0}, s{S_WODD}
s_lshl_b32 s{S_T0}, s{S_T0}, 1
s_sub_u32 s{S_T0}, s{S_T0}, s{S_RX}""")
    mask_code(SX, "mX")
    e(f"s_branch {L('hBr')}")
    for Z, lab in redo_sites:
        r = regs(Z); S, N, O, Lr = r["S"], r["N"], r["O"], r["L"]
        k.label(lab)
        tile_max(S)
        e(f"v_max_f32 v{V_M}, 0, v{V_M}\nv_sub_f32 v{N}, v{N}, v{V_M}\nv_sub_f32 v{V_T}, 0, v{V_M}\nv_exp_f32 v{V_T}, v{V_T}")
        for i in range(32): e(f"v_sub_f32 v{S+i}, v{S+i}, v{V_M}")
        for i in range(1, 16): e(f"v_mov_b32 v{N+i}, v{N}")
        e(f"v_mul_f32 v{Lr}, v{Lr}, v{V_T}")
        for r0 in range(0, 64, 8):
            for i in range(8): e(f"v_accvgpr_read_b32 v{V_E+i}, a{O+r0+i}")
            for i in range(8): e(f"v_mul_f32 v{V_E+i}, v{V_E+i}, v{V_T}")
            for i in range(8): e(f"v_accvgpr_write_b32 a{O+r0+i}, v{V_E+i}")
        for w, ins in sm_core(Z):
            for x in ins: e(x)
        e(f"s_nop 1\ns_branch {L(lab + 'r')}")
    return k
```

```python
from asmlib import *
import layout as LY
import struct, sys

def f32bits(x):
    return "0x%08x" % struct.unpack("<I", struct.pack("<f", x))[0]

CS = 4160
UB = 4 * CS
CH = 21504
NCONV = 160

def gen_prep():
    k = Kern("prep_kernel", 256, 256, 102, 256, 256, 0)
    e = k.e; L = k.L
    k.stamp_base = 70
    e(f"s_cmp_ge_u32 s2, 256\ns_cbranch_scc1 {L('end')}")
    e("v_lshrrev_b32 v2, 6, v0\nv_and_b32 v1, 63, v0\ns_nop 0\nv_readfirstlane_b32 s44, v2\ns_mov_b32 s63, 0xffff0000")
    e(f"s_cmp_eq_u32 s44, 3\ns_cbranch_scc1 {L('gate')}")
    e("s_load_dwordx4 s[4:7], s[0:1], 56\ns_load_dwordx2 s[8:9], s[0:1], 72\ns_load_dwordx2 s[14:15], s[0:1], 120")
    e("""v_mul_u32_u24 v3, 0xccd, v0
v_lshrrev_b32 v3, 16, v3
v_mul_u32_u24 v4, 20, v3
v_sub_u32 v4, v0, v4
s_lshr_b32 s45, s2, 3
s_lshl_b32 s45, s45, 6
s_and_b32 s46, s2, 7
s_mul_i32 s46, s46, 80
v_lshlrev_b32 v3, 3, v3
v_add_u32 v3, s45, v3
v_lshlrev_b32 v4, 2, v4
v_add_u32 v4, s46, v4
v_mul_u32_u24 v5, 0x500, v3
v_lshl_add_u32 v5, v4, 1, v5
v_subrev_u32 v6, 0xf00, v5
v_cmp_eq_u32 vcc, 0, v3
v_mov_b32 v7, 0x7fffffff
v_lshlrev_b32 v8, 3, v4
v_cndmask_b32 v6, v6, v7, vcc
v_lshlrev_b32 v9, 12, v4
v_lshl_add_u32 v9, v3, 1, v9
s_mov_b32 s48, 5120
s_mov_b32 s49, 8192
v_cmp_gt_u32 vcc, 160, v0
s_waitcnt lgkmcnt(0)""")
    k.srd(16, 4, 2048 * 1280)
    k.srd(20, 6, 2048 * 1280)
    k.srd(24, 8, 640 * 8)
    k.srd(28, 14, 640 * 4096, LY.UT_OFF)
    e("s_and_saveexec_b64 s[40:41], vcc")
    KR, VR, WR = 32, 54, 16
    e(f"buffer_load_dwordx4 {vr(WR,4)}, v8, s[24:27], 0 offen\nbuffer_load_dwordx4 {vr(WR+4,4)}, v8, s[24:27], 0 offen offset:16")
    for r in range(3):
        e(f"buffer_load_dwordx2 {vr(KR+2*r,2)}, v6, s[16:19], 0 offen offset:{r*1280}")
    for r in range(8):
        so = "0" if r < 4 else "s48"
        e(f"buffer_load_dwordx2 {vr(KR+6+2*r,2)}, v5, s[16:19], {so} offen offset:{(r&3)*1280}")
        e(f"buffer_load_dwordx2 {vr(VR+2*r,2)}, v5, s[20:23], {so} offen offset:{(r&3)*1280}")
    e("s_waitcnt vmcnt(0)")
    W = 208
    for c in range(4):
        for j in range(4):
            src = WR + 2*c + (j >> 1)
            e(f"v_and_b32 v{W+4*c+j}, s63, v{src}" if j & 1 else f"v_lshlrev_b32 v{W+4*c+j}, 16, v{src}")
    KU = 72
    for r in range(11):
        for d in range(2):
            e(f"v_lshlrev_b32 v{KU+11*(2*d)+r}, 16, v{KR+2*r+d}")
            e(f"v_and_b32 v{KU+11*(2*d+1)+r}, s63, v{KR+2*r+d}")
    U = 120; T = 160
    def rnd(a, b, pk):
        e(f"v_cvt_pk_bf16_f32 v{pk}, v{a}, v{b}\nv_lshlrev_b32 v{a}, 16, v{pk}\nv_and_b32 v{b}, s63, v{pk}")
    for s in range(8):
        for d in range(2):
            c0, c1 = 2*d, 2*d+1
            t = T + 12 * ((2*s+d) % 4)
            for tt in range(4):
                e(f"v_mul_f32 v{t+2*tt}, v{W+4*c0+3-tt}, v{KU+11*c0+s+tt}")
                e(f"v_mul_f32 v{t+2*tt+1}, v{W+4*c1+3-tt}, v{KU+11*c1+s+tt}")
            for tt in range(4):
                rnd(t+2*tt, t+2*tt+1, t+8+tt)
            for tt in range(1, 4):
                e(f"v_add_f32 v{t}, v{t}, v{t+2*tt}\nv_add_f32 v{t+1}, v{t+1}, v{t+2*tt+1}")
                rnd(t, t+1, t+8)
            e(f"v_lshlrev_b32 v{t+2}, 16, v{VR+2*s+d}\nv_and_b32 v{t+3}, s63, v{VR+2*s+d}")
            e(f"v_mul_f32 v{U+8*c0+s}, v{t}, v{t+2}\nv_mul_f32 v{U+8*c1+s}, v{t+1}, v{t+3}")
    for c in range(4):
        for i in range(4):
            e(f"v_cvt_pk_bf16_f32 v{16+4*c+i}, v{U+8*c+7-2*i}, v{U+8*c+6-2*i}")
    e("v_add_u32 v10, 0x1000, v9")
    for c in range(4):
        e(f"buffer_store_dwordx4 {vr(16+4*c,4)}, v{9 + (c&1)}, s[28:31], {'0' if c < 2 else 's49'} offen")
    e("s_endpgm")
    k.label("gate")
    e("s_load_dwordx2 s[4:5], s[0:1], 0\ns_load_dwordx2 s[6:7], s[0:1], 96\ns_load_dwordx2 s[14:15], s[0:1], 120")
    e("s_mul_i32 s46, s2, 10240\nv_lshlrev_b32 v4, 2, v1\ns_waitcnt lgkmcnt(0)")
    k.srd(16, 4, 2048 * 1280)
    k.srd(20, 6, 1280)
    k.srd(24, 14, 8192, LY.G_OFF)
    for i in range(5):
        e(f"buffer_load_dword v{8+i}, v4, s[20:23], 0 offen offset:{256*i}")
    for r in range(8):
        if r and r % 2 == 0: e("s_add_u32 s46, s46, 2560")
        for i in range(5):
            e(f"buffer_load_dword v{32+5*r+i}, v4, s[16:19], s46 offen offset:{(r&1)*1280 + 256*i}")
    e("s_waitcnt vmcnt(0)")
    for i in range(5):
        e(f"v_lshlrev_b32 v{16+2*i}, 16, v{8+i}\nv_and_b32 v{17+2*i}, s63, v{8+i}")
    A = 80
    for r in range(8):
        e(f"v_mov_b32 v{A+r}, 0")
        for i in range(5):
            x = 32 + 5*r + i
            e(f"v_lshlrev_b32 v74, 16, v{x}\nv_and_b32 v75, s63, v{x}")
            e(f"v_mul_f32 v74, v74, v{16+2*i}\nv_mul_f32 v75, v75, v{17+2*i}")
            rnd(74, 75, 76)
            e(f"v_add_f32 v{A+r}, v{A+r}, v74\nv_add_f32 v{A+r}, v{A+r}, v75")
    for ctl in ("row_shr:1", "row_shr:2", "row_shr:4", "row_shr:8", "row_bcast:15 row_mask:0xa", "row_bcast:31 row_mask:0xc"):
        e("s_nop 1")
        for r in range(8):
            e(f"v_add_f32_dpp v{A+r}, v{A+r}, v{A+r} {ctl}" + (" bound_ctrl:0" if "shr" in ctl else ""))
    e("s_nop 1")
    for r in range(0, 8, 2): rnd(A+r, A+r+1, 76)
    for r in range(8): e(f"v_mul_f32 v{A+r}, {f32bits(-1.4426950408889634)}, v{A+r}")
    for r in range(8): e(f"v_exp_f32 v{A+r}, v{A+r}")
    e("s_nop 0")
    for r in range(8): e(f"v_add_f32 v{A+r}, 1.0, v{A+r}")
    for r in range(8): e(f"v_rcp_f32 v{A+r}, v{A+r}")
    e("s_nop 0")
    for r in range(0, 8, 2): rnd(A+r, A+r+1, 76)
    e(f"""s_lshl_b32 s45, s2, 5
v_mov_b32 v5, s45
v_cmp_eq_u32 vcc, 63, v1
s_and_saveexec_b64 s[30:31], vcc
buffer_store_dwordx4 v[{A}:{A+3}], v5, s[24:27], 0 offen
buffer_store_dwordx4 v[{A+4}:{A+7}], v5, s[24:27], 0 offen offset:16""")
    k.label("end")
    e("s_endpgm")
    return k

def gen_conv():
    k = Kern("conv_kernel", 512, 256, 102, NCONV, 256, 4 * CH)
    e = k.e; L = k.L
    k.stamp_base = 70
    e(f"s_cmp_ge_u32 s2, {NCONV}\ns_cbranch_scc1 {L('end')}")
    k.stamp(0)
    e("s_load_dwordx4 s[8:11], s[0:1], 80\ns_load_dwordx2 s[14:15], s[0:1], 120")
    e("v_lshrrev_b32 v2, 6, v0\nv_and_b32 v1, 63, v0\ns_nop 0\nv_readfirstlane_b32 s44, v2")
    e(f"""s_lshl_b32 s45, s2, 2
s_add_u32 s46, s45, s44
s_mul_i32 s47, s44, {CH}
v_lshlrev_b32 v4, 4, v1
v_mov_b32 v7, 0x7fffffff
s_lshl_b32 s49, s46, 12
s_waitcnt lgkmcnt(0)""")
    k.srd(24, 8, 640 * 4096)
    k.srd(20, 14, 640 * 4096, LY.UT_OFF)
    e("s_lshl_b32 s3, s2, 3\ns_add_u32 s10, s10, s3\ns_addc_u32 s11, s11, 0\ns_load_dwordx2 s[60:61], s[10:11], 0")
    e(f"s_add_u32 m0, s47, {UB + 512}\ns_nop 0")
    for i in range(4):
        e(f"buffer_load_dwordx4 v4, s[20:23], s49 offen offset:{i*1024} lds")
    for s in range(4):
        e(f"s_add_u32 m0, s47, {s*CS + 32}\ns_add_u32 s50, s49, {2*s}")
        for i in range(4):
            e(f"buffer_load_dwordx4 v4, s[24:27], s50 offen offset:{i*1024} lds")
    e(f"""v_lshrrev_b32 v8, 4, v1
v_and_b32 v9, 15, v1
v_add_u32 v10, v8, v9
v_subrev_u32 v10, 16, v10
v_cmp_gt_i32 vcc, 0, v10
v_lshlrev_b32 v10, 1, v10
v_add_u32 v10, s49, v10
v_cndmask_b32 v10, v10, v7, vcc
buffer_load_ushort v16, v10, s[24:27], 0 offen
v_mul_u32_u24 v17, {CS}, v8
v_lshlrev_b32 v13, 1, v9
v_add_u32 v17, v17, v13
v_add_u32 v17, s47, v17
v_mov_b32 v14, 0
v_mov_b32 v15, 0
v_lshlrev_b32 v13, 3, v1
v_add_u32 v13, s47, v13
ds_write_b64 v13, v[14:15] offset:{UB}
s_waitcnt lgkmcnt(0)""")
    k.srd(28, 14, 640 * 4096, LY.YT_OFF)
    e("""s_lshr_b32 s3, s44, 1
s_cmp_eq_u32 s3, 0
s_cselect_b32 s62, s60, s61
s_and_b32 s3, s44, 1
s_cmp_eq_u32 s3, 0
s_cselect_b32 s3, 16, 0
s_lshl_b32 s62, s62, s3
s_and_b32 s62, s62, 0xffff0000
s_mov_b32 s63, 0xffff0000""")
    def rnd(a, b, pk):
        e(f"v_cvt_pk_bf16_f32 v{pk}, v{a}, v{b}\nv_lshlrev_b32 v{a}, 16, v{pk}\nv_and_b32 v{b}, s63, v{pk}")
    e(f"""v_lshrrev_b32 v10, 1, v8
v_sub_u32 v10, v9, v10
v_lshlrev_b32 v10, 5, v10
v_and_b32 v11, 1, v8
v_lshlrev_b32 v12, 4, v11
v_add_u32 v10, v10, v12
v_add_u32 v10, s47, v10
v_add_u32 v10, {UB + 512 - 448}, v10""")
    e(f"""v_add_u32 v12, 1, v9
v_and_b32 v13, 3, v12
v_sub_u32 v12, v12, v13
v_lshrrev_b32 v14, 1, v8
v_lshlrev_b32 v14, 4, v14
v_add_u32 v12, v12, v14
v_lshlrev_b32 v14, 3, v11
v_sub_u32 v12, v12, v14
v_add_u32 v12, 8, v12
v_lshlrev_b32 v12, 1, v12
v_mul_u32_u24 v13, {CS}, v13
v_add_u32 v12, v12, v13
v_add_u32 v12, s47, v12""")
    e(f"""v_lshlrev_b32 v13, 5, v9
v_lshrrev_b32 v14, 1, v8
v_lshlrev_b32 v14, 4, v14
v_add_u32 v13, v13, v14
v_xor_b32 v14, 1, v11
v_lshlrev_b32 v14, 3, v14
v_add_u32 v13, v13, v14
v_add_u32 v13, s47, v13""")
    e("s_waitcnt vmcnt(0)\nds_write_b16 v17, v16\ns_waitcnt lgkmcnt(0)")
    k.stamp(1)
    ACC, AF, UE = 32, 64, 128
    NA = 8
    def rdA(mu):
        r = AF + 4 * (mu % NA)
        k.lds_op(f"ds_read_b64 {vr(r,2)}, v12 offset:{64*mu}", ("A", mu))
        k.lds_op(f"ds_read_b64 {vr(r+2,2)}, v12 offset:{64*mu + 8}", ("A", mu))
    def rdB(d):
        k.lds_op(f"ds_read_b128 {ar(4*d,4)}, v10 offset:{64*d}", ("B", d))
    loaded = set()
    def needB(mu):
        return [(16*n - 2*mu + 14) // 2 for n in range(8) if 8*(n+1) > mu]
    PF = 3
    def fetch(mu):
        if mu > 63: return
        rdA(mu)
        for d in needB(mu):
            if d not in loaded:
                loaded.add(d); rdB(d)
    for mu in range(PF): fetch(mu)
    for mu in range(64):
        k.wait(lgtags=[("A", mu)] + [("B", d) for d in needB(mu)])
        first = True
        for n in range(8):
            if 8*(n+1) > mu:
                d = (16*n - 2*mu + 14) // 2
                c = "0" if mu == 0 else vr(ACC+4*n, 4)
                e(f"v_mfma_f32_16x16x32_bf16 {vr(ACC+4*n,4)}, {vr(AF+4*(mu%NA),4)}, {ar(4*d,4)}, {c}")
                if first:
                    fetch(mu + PF); first = False
        if mu == 50:
            for n in range(8):
                k.lds_op(f"ds_read_b64 {vr(UE+2*n,2)}, v13 offset:{UB + 512 + n*512}", "U")
    k.stamp(2)
    e("s_nop 7\ns_waitcnt lgkmcnt(0)")
    k.lg = []
    e("v_lshlrev_b32 v14, 5, v9\nv_lshlrev_b32 v15, 3, v8\nv_add_u32 v14, v14, v15")
    for n in range(8):
        a = ACC + 4*n; u = UE + 2*n; t = 160 + 8 * (n % 4)
        e(f"""v_and_b32 v{t}, s63, v{u+1}
v_lshlrev_b32 v{t+1}, 16, v{u+1}
v_and_b32 v{t+2}, s63, v{u}
v_lshlrev_b32 v{t+3}, 16, v{u}""")
        for i in range(4): e(f"v_mul_f32 v{t+i}, s62, v{t+i}")
        rnd(t, t+1, t+4); rnd(t+2, t+3, t+5)
        rnd(a, a+1, t+4); rnd(a+2, a+3, t+5)
        for i in range(4): e(f"v_add_f32 v{t+i}, v{t+i}, v{a+i}")
        e(f"v_cvt_pk_bf16_f32 v{t+6}, v{t}, v{t+1}\nv_cvt_pk_bf16_f32 v{t+7}, v{t+2}, v{t+3}")
        e(f"buffer_store_dwordx2 {vr(t+6,2)}, v14, s[28:31], s49 offen offset:{n*512}")
    k.stamp(3)
    if Kern.STAMP: e("s_waitcnt vmcnt(0)")
    k.stamp(4)
    k.stamp_flush(14, LY.STAMP_OFF + 65536 * getattr(gen_conv, "idx", 0), 2)
    k.label("end")
    e("s_endpgm")
    return k
```

```python
from asmlib import *
import layout as LY
import struct, sys

DEPTH = 6
WSTEP = 5120
RING = DEPTH * WSTEP
YL = 4 * RING
YROW = 144

def gen_oproj():
    k = Kern("oproj_kernel", 256, 256, 102, 256, 256, YL + 80 * YROW)
    e = k.e; L = k.L
    k.stamp_base = 70
    e(f"s_cmp_ge_u32 s2, 256\ns_cbranch_scc1 {L('end')}")
    k.stamp(0)
    e("s_load_dwordx2 s[4:5], s[0:1], 40\ns_load_dwordx2 s[6:7], s[0:1], 0\ns_load_dwordx2 s[8:9], s[0:1], 104\ns_load_dwordx2 s[14:15], s[0:1], 120")
    e("v_lshrrev_b32 v2, 6, v0\nv_and_b32 v1, 63, v0\ns_nop 0\nv_readfirstlane_b32 s44, v2")
    e(f"""s_and_b32 s3, s2, 7
s_lshr_b32 s47, s2, 3
s_lshr_b32 s45, s3, 1
s_lshl_b32 s45, s45, 3
s_and_b32 s48, s47, 7
s_add_u32 s45, s45, s48
s_and_b32 s46, s3, 1
s_lshl_b32 s46, s46, 2
s_lshr_b32 s48, s47, 3
s_add_u32 s46, s46, s48
s_mul_i32 s47, s44, {RING}
v_lshlrev_b32 v4, 4, v1""")
    e("""s_lshl_b32 s48, s45, 19
s_lshl_b32 s49, s44, 15
s_add_u32 s48, s48, s49
v_add_u32 v5, s48, v4""")
    for i in range(4): e(f"s_mov_b32 s{52+i}, {i*131072}")
    e("s_mul_i32 s48, s44, 1310720\ns_mul_i32 s49, s46, 160\ns_add_u32 s48, s48, s49")
    for i in range(5):
        e(f"""v_add_u32 v11, {64*i}, v1
v_mul_u32_u24 v12, 0x667, v11
v_lshrrev_b32 v12, 14, v12
v_mul_u32_u24 v13, 10, v12
v_sub_u32 v13, v11, v13
v_mul_u32_u24 v12, 0x500, v12
v_lshlrev_b32 v13, 4, v13
v_add3_u32 v{6+i}, v12, v13, s48""")
    e("s_waitcnt lgkmcnt(0)")
    k.srd(16, 4, 4096 * 1280)
    k.srd(20, 14, 16 << 20, LY.CTX_OFF)
    CF = 96
    WFR = 192
    ACC = 16
    def loads(T):
        out = []
        slot = T % DEPTH
        out.append([f"s_mov_b32 s50, {T*32*1280}", f"s_add_u32 m0, s47, {slot*WSTEP}"])
        for i in range(5):
            pre = [f"s_add_u32 m0, s47, {slot*WSTEP + i*1024}", "s_nop 0"] if i else []
            out.append(pre + [("vm", f"buffer_load_dwordx4 v{6+i}, s[16:19], s50 offen lds", T)])
        if T % 4 == 0 and T:
            out.append(["v_add_u32 v5, 0x1000, v5"])
        for i in range(4):
            out.append([("vm", f"buffer_load_dwordx4 {vr(CF+16*slot+4*i,4)}, v5, s[20:23], s{52+i} offen offset:{(T%4)*1024}", T)])
        return out
    def emit_item(it):
        for x in it:
            if isinstance(x, tuple):
                if x[0] == "vm": k.vmem(x[1], x[2])
                else: k.lds_op(x[1], x[2])
            else: e(x)
    for T in range(DEPTH - 1):
        for it in loads(T): emit_item(it)
    e(f"""v_lshrrev_b32 v11, 5, v1
v_lshlrev_b32 v11, 4, v11
v_bfe_u32 v12, v1, 4, 1
v_lshlrev_b32 v12, 2, v12
v_bfe_u32 v13, v1, 2, 2
v_add3_u32 v11, v11, v12, v13
v_mul_u32_u24 v11, 160, v11
v_and_b32 v12, 3, v1
v_lshlrev_b32 v12, 3, v12
v_add3_u32 v11, v11, v12, s47""")
    k.srd(24, 6, 2048 * 1280)
    k.srd(28, 8, 2048 * 1280)
    k.srd(32, 14, 640 * 4096, LY.YT_OFF)
    k.srd(36, 14, 8192, LY.G_OFF)
    def reads(T):
        slot = T % DEPTH
        out = []
        for nb in range(5):
            for h in range(2):
                out.append([("lg", f"ds_read_b64_tr_b16 {vr(WFR+20*(T&1)+4*nb+2*h,2)}, v11 offset:{slot*WSTEP + h*1280 + nb*32}", T)])
        return out
    k.wait(vmtags=(0,))
    k.stamp(1)
    for it in reads(0): emit_item(it)
    XR, GR = 232, 242
    for T in range(32):
        k.wait(vmtags=(T + 1,), lgtags=(T,))
        ms = []
        for tb in range(4):
            for nb in range(5):
                a = ACC + 4 * (tb*5 + nb)
                ms.append(f"v_mfma_f32_16x16x32_bf16 {vr(a,4)}, {vr(WFR+20*(T&1)+4*nb,4)}, {vr(CF+16*(T%DEPTH)+4*tb,4)}, {'0' if T == 0 else vr(a,4)}")
        g1 = spread(20, reads(T+1), 0, 12) if T + 1 < 32 else {}
        ld = loads(T + DEPTH - 1) if T + DEPTH - 1 < 32 else []
        if T == 32 - DEPTH + 1:
            ld = [[f"""s_lshl_b32 s48, s45, 6
s_lshl_b32 s49, s44, 4
s_add_u32 s48, s48, s49
v_and_b32 v12, 15, v1
v_add_u32 v12, s48, v12
v_lshlrev_b32 v13, 2, v12
v_mul_u32_u24 v12, 0x500, v12
v_lshrrev_b32 v14, 4, v1
v_lshlrev_b32 v14, 3, v14
s_mul_i32 s49, s46, 160
v_add3_u32 v12, v12, v14, s49"""]]
            for nb in range(5):
                ld.append([("vm", f"buffer_load_dwordx2 {vr(XR+2*nb,2)}, v12, s[24:27], 0 offen offset:{nb*32}", "x")])
            ld.append([("vm", f"buffer_load_dword v{GR}, v13, s[36:39], 0 offen", "x")])
            ld.append([f"""v_lshrrev_b32 v14, 3, v0
v_and_b32 v15, 7, v0
s_mul_i32 s49, s46, 80
v_add_u32 v13, s49, v14
v_lshlrev_b32 v13, 12, v13
v_lshlrev_b32 v15, 4, v15
s_lshl_b32 s49, s45, 7
v_add3_u32 v13, v13, v15, s49
v_mul_u32_u24 v14, {YROW}, v14
v_add_u32 v14, v14, v15
v_add_u32 v14, {YL}, v14
s_mov_b32 s50, 0x20000
s_mov_b32 s51, 0x40000"""])
            for i in range(3):
                ld.append([("vm", f"buffer_load_dwordx4 {vr(244+4*i,4)}, v13, s[32:35], {['0','s50','s51'][i]} offen", "x")])
        g2 = spread(20, ld, 2, 20) if ld else {}
        for i, m in enumerate(ms):
            e(m)
            for it in g1.get(i, []): emit_item(it)
            for it in g2.get(i, []): emit_item(it)
    k.stamp(2)
    k.wait(vmtags=("x",))
    e(f"ds_write_b128 v14, v[244:247]\nds_write_b128 v14, v[248:251] offset:{32*YROW}")
    e(f"v_cmp_gt_u32 vcc, 128, v0\ns_and_saveexec_b64 s[40:41], vcc\nds_write_b128 v14, v[252:255] offset:{64*YROW}\ns_mov_b64 exec, s[40:41]")
    e("v_add_u32 v15, s47, v4\ns_nop 4")
    for b in range(20):
        e(f"ds_write_b128 v15, {vr(ACC+4*b,4)} offset:{b*1024}")
    e("s_waitcnt lgkmcnt(0)\ns_barrier")
    e(f"s_mul_i32 s48, s44, 5120\nv_add_u32 v15, s48, v4\nv_add_u32 v13, {2*RING}, v15")
    for nb in range(5):
        for p in range(4):
            e(f"ds_read_b128 {vr(96+16*nb+4*p,4)}, v{15 if p < 2 else 13} offset:{(p&1)*RING + nb*1024}")
    e(f"""v_lshrrev_b32 v5, 2, v1
v_mul_u32_u24 v5, {YROW}, v5
v_and_b32 v6, 3, v1
v_lshlrev_b32 v6, 3, v6
s_lshl_b32 s48, s44, 5
s_add_u32 s48, s48, {YL}
v_add3_u32 v5, v5, v6, s48""")
    for nb in range(5):
        e(f"ds_read_b64_tr_b16 {vr(16+2*nb,2)}, v5 offset:{nb*16*YROW}")
    e(f"s_mov_b32 s63, 0xffff0000\nv_sub_f32 v{GR+1}, 1.0, v{GR}\nv_cvt_pk_bf16_f32 v{GR+1}, v{GR+1}, v{GR+1}\nv_lshlrev_b32 v{GR+1}, 16, v{GR+1}")
    e("s_waitcnt lgkmcnt(0)")
    def rnd(a, b, pk):
        e(f"v_cvt_pk_bf16_f32 v{pk}, v{a}, v{b}\nv_lshlrev_b32 v{a}, 16, v{pk}\nv_and_b32 v{b}, s63, v{pk}")
    for nb in range(5):
        p = 96 + 16*nb; t = 32 + 12*nb
        for i in range(4):
            e(f"v_add_f32 v{p+i}, v{p+i}, v{p+4+i}\nv_add_f32 v{p+8+i}, v{p+8+i}, v{p+12+i}")
        for i in range(4):
            e(f"v_add_f32 v{p+i}, v{p+i}, v{p+8+i}")
        rnd(p, p+1, t+8); rnd(p+2, p+3, t+9)
        for i in range(4): e(f"v_mul_f32 v{p+i}, v{GR}, v{p+i}")
        rnd(p, p+1, t+8); rnd(p+2, p+3, t+9)
        for d in range(2):
            e(f"v_lshlrev_b32 v{t+2*d}, 16, v{XR+2*nb+d}\nv_and_b32 v{t+2*d+1}, s63, v{XR+2*nb+d}")
            e(f"v_lshlrev_b32 v{t+4+2*d}, 16, v{16+2*nb+d}\nv_and_b32 v{t+4+2*d+1}, s63, v{16+2*nb+d}")
        for i in range(4): e(f"v_mul_f32 v{t+i}, v{t+i}, v{t+4+i}")
        rnd(t, t+1, t+8); rnd(t+2, t+3, t+9)
        for i in range(4): e(f"v_mul_f32 v{t+i}, v{GR+1}, v{t+i}")
        rnd(t, t+1, t+8); rnd(t+2, t+3, t+9)
        for i in range(4): e(f"v_add_f32 v{t+i}, v{t+i}, v{p+i}")
        e(f"v_cvt_pk_bf16_f32 v{t+10}, v{t}, v{t+1}\nv_cvt_pk_bf16_f32 v{t+11}, v{t+2}, v{t+3}")
        e(f"buffer_store_dwordx2 {vr(t+10,2)}, v12, s[28:31], 0 offen offset:{nb*32}")
    k.stamp(3)
    if Kern.STAMP: e("s_waitcnt vmcnt(0)")
    k.stamp(4)
    k.stamp_flush(14, LY.STAMP_OFF + 65536 * getattr(gen_oproj, "idx", 0), 2)
    k.label("end")
    e("s_endpgm")
    return k
```

```python
from asmlib import *
import layout as LY
import struct, sys
EXP = [a for a in sys.argv if a.startswith('x_')]

def f32bits(x):
    return "0x%08x" % struct.unpack("<I", struct.pack("<f", x))[0]

def gen_proj():
    k = Kern("proj_kernel", 512, 256, 102, 256, 256, 163840)
    e = k.e
    k.stamp_base = 70
    e(f"s_cmp_ge_u32 s2, 256\ns_cbranch_scc1 {k.L('end')}")
    k.stamp(0)
    e("s_load_dwordx8 s[4:11], s[0:1], 0\ns_load_dwordx2 s[12:13], s[0:1], 32\ns_load_dwordx2 s[14:15], s[0:1], 120")
    e("v_lshrrev_b32 v2, 6, v0\nv_and_b32 v1, 63, v0\ns_nop 0\nv_readfirstlane_b32 s44, v2")
    e("""s_and_b32 s46, s2, 7
s_lshl_b32 s46, s46, 2
s_lshr_b32 s47, s2, 3
s_and_b32 s3, s47, 3
s_add_u32 s46, s46, s3
s_lshr_b32 s47, s47, 2
s_lshl_b32 s45, s44, 10""")
    e("""s_lshl_b32 s3, s47, 8
s_lshl_b32 s56, s44, 3
s_add_u32 s3, s3, s56
v_lshrrev_b32 v2, 3, v1
v_and_b32 v3, 7, v1
v_xor_b32 v3, v3, v2
v_lshlrev_b32 v11, 4, v3
v_add_u32 v7, s3, v2
v_lshlrev_b32 v4, 10, v7
v_add_u32 v4, v4, v11
v_mul_u32_u24 v5, 0x500, v7
v_add_u32 v5, v5, v11
v_and_b32 v2, 15, v1
v_lshrrev_b32 v3, 4, v1""")
    e("""s_lshr_b32 s56, s44, 1
s_and_b32 s56, s56, 1
s_lshl_b32 s56, s56, 2
v_or_b32 v6, s56, v3
v_lshrrev_b32 v7, 1, v2
v_xor_b32 v6, v6, v7
v_lshlrev_b32 v6, 1, v6
v_and_b32 v7, 1, v2
v_or_b32 v6, v6, v7
v_lshlrev_b32 v6, 4, v6
v_lshlrev_b32 v7, 13, v3
v_add_u32 v6, v6, v7
s_lshl_b32 s56, s44, 15
s_lshl_b32 s57, s46, 8
s_add_u32 s56, s56, s57
v_add_u32 v6, s56, v6""")
    e("s_waitcnt lgkmcnt(0)")
    k.srd(20, 6, 2048*1024)
    k.srd(28, 10, 512*8192)
    k.srd(32, 12, 512*8192)

    NT = 36
    bufs = []
    def addbuf(kind, k0, size, first, last):
        bufs.append(dict(kind=kind, k0=k0, size=size, first=first, last=last))
    for s in range(8):
        addbuf("xc", 64*s, 32768, 2*s, 2*s+1)
        addbuf("wkv", 64*s, 16384, 2*s, 2*s)
        addbuf("wkv", 64*s+32, 16384, 2*s+1, 2*s+1)
    for s in range(10):
        addbuf("xx", 64*s, 32768, 16+2*s, 16+2*s+1)
        addbuf("wq", 64*s, 16384, 16+2*s, 16+2*s+1)
    xslots = [65536, 98304, 131072]; wslots = [0, 16384, 32768, 49152]
    live = {}
    def alloc(bi):
        b = bufs[bi]
        for c in (xslots if b["kind"][0] == "x" else wslots):
            if c not in live:
                live[c] = bi; b["R"] = c
                return True
        return False
    def find(T, isx):
        for bi, b in enumerate(bufs):
            if b["first"] <= T <= b["last"] and (b["kind"][0] == "x") == isx:
                return bi
    def dma_list(bi):
        b = bufs[bi]; R = b["R"]; k0 = b["k0"]
        out = []
        def d(ldsoff, soff, vo, srd):
            out.append([f"s_add_u32 m0, s45, {ldsoff}", f"s_mov_b32 s56, {soff}",
                        ("vm", f"buffer_load_dwordx4 v{vo}, s[{srd}:{srd+3}], s56 offen lds", bi)])
        if b["kind"] == "xc":
            for i in range(8): d(R + i*4096, i*32*1024 + k0*2, 4, 20)
        elif b["kind"] == "xx":
            for i in range(8): d(R + i*4096, i*32*1280 + k0*2, 5, 16)
        elif b["kind"] == "wkv":
            for mt, srd in ((0, 28), (1, 32)):
                for i in range(2): d(R + mt*8192 + i*4096, (k0 + 16*i)*8192, 6, srd)
        else:
            for i in range(4): d(R + i*4096, (k0 + 16*i)*8192, 6, 24)
        return out
    def emit_item(it):
        for x in it:
            if isinstance(x, tuple):
                if x[0] == "vm" and "x_nodma" in EXP and "lds" in x[1]: continue
                if x[0] == "lg" and "x_nord" in EXP: continue
                if x[0] == "vm": k.vmem(x[1], x[2])
                else: k.lds_op(x[1], x[2])
            else:
                e(x)
    pend = list(range(len(bufs)))
    def issue_what_fits():
        out = []
        full = set()
        for bi in list(pend):
            cls = bufs[bi]["kind"][0]
            if cls in full: continue
            if alloc(bi):
                out += dma_list(bi); pend.remove(bi)
            else:
                full.add(cls)
        return out
    pro = issue_what_fits()
    for it in pro[:12]: emit_item(it)
    k.srd(16, 4, 2048*1280)
    k.srd(24, 8, 640*8192)
    k.srd(36, 14, 16 << 20, LY.QF_OFF)
    k.srd(40, 14, 32 << 20, LY.KVF_OFF)
    for it in pro[12:]: emit_item(it)

    e("""s_lshr_b32 s56, s44, 1
s_lshl_b32 s56, s56, 14
s_add_u32 s56, s56, 0x10000
v_and_b32 v7, 7, v2
v_xor_b32 v7, v7, v3
v_lshlrev_b32 v7, 4, v7
v_lshlrev_b32 v8, 7, v2
v_add_u32 v8, v8, v7
v_add_u32 v8, s56, v8
v_xor_b32 v9, 64, v8
v_add_u32 v10, 0x10000, v8
v_add_u32 v11, 0x10000, v9""")
    e("""v_lshrrev_b32 v7, 2, v2
v_and_b32 v16, 1, v3
v_lshlrev_b32 v16, 2, v16
v_or_b32 v16, v16, v7
v_lshlrev_b32 v27, 3, v3
v_add_u32 v27, v27, v7
v_lshlrev_b32 v27, 8, v27
v_and_b32 v28, 3, v1
v_lshlrev_b32 v28, 3, v28
v_add_u32 v27, v27, v28
s_and_b32 s57, s44, 1
s_lshl_b32 s57, s57, 2""")
    for i in range(4):
        e(f"s_add_u32 s56, s57, {i}")
        e(f"v_xor_b32 v28, s56, v16")
        e(f"v_lshlrev_b32 v28, 5, v28")
        e(f"v_add_u32 v{12+i}, v27, v28")
    e("""v_and_b32 v27, 7, v1
v_and_b32 v28, 8, v1
v_lshlrev_b32 v28, 1, v28
v_or_b32 v27, v27, v28
v_and_b32 v28, 1, v3
v_lshlrev_b32 v29, 5, v28
v_add_u32 v27, v27, v29
v_lshlrev_b32 v27, 4, v27
v_lshrrev_b32 v30, 1, v3
v_lshlrev_b32 v31, 10, v30
v_add_u32 v16, v27, v31
s_lshl_b32 s56, s46, 5
s_lshl_b32 s57, s47, 2
s_add_u32 s56, s56, s57
s_lshr_b32 s57, s44, 1
s_lshl_b32 s57, s57, 1
s_add_u32 s56, s56, s57
s_lshl_b32 s56, s56, 15
s_and_b32 s58, s44, 1
s_lshl_b32 s57, s58, 12
s_add_u32 s57, s57, s56
v_add_u32 v16, s57, v16""")
    e("""v_add_u32 v27, v2, v29
v_lshlrev_b32 v27, 4, v27
v_lshlrev_b32 v31, 12, v30
v_add_u32 v17, v27, v31
s_lshl_b32 s57, s58, 11
s_add_u32 s57, s57, s56
s_add_u32 s57, s57, 16384
v_add_u32 v17, s57, v17""")
    e("""v_lshlrev_b32 v31, 10, v30
v_add_u32 v18, v27, v31
s_lshl_b32 s56, s46, 6
s_lshl_b32 s57, s47, 3
s_add_u32 s56, s56, s57
s_lshr_b32 s57, s44, 1
s_lshl_b32 s57, s57, 2
s_add_u32 s56, s56, s57
s_lshl_b32 s56, s56, 13
s_lshl_b32 s57, s58, 12
s_add_u32 s56, s56, s57
v_add_u32 v18, s56, v18""")
    for f in range(4):
        e(f"s_mov_b32 s{60+f}, {(f>>1)*32768 + (f&1)*8192}")
        e(f"s_mov_b32 s{64+f}, {f*8192}")
    e(f"s_mov_b32 s68, {f32bits(LY.QSCALE)}")

    def XF(T, j): return (128 + 64 * (T & 1) + 4 * j) if T < 16 else (32 + 48 * (T & 1) + 4 * j)
    def WF(T, j): return XF(T, 8 + j)
    def read_list(T):
        xb = bufs[find(T, True)]; wb = bufs[find(T, False)]
        ks = T - xb["first"]
        xs = []; ws_ = []
        for j in range(8):
            addr = xb["R"] - 65536 + j * 2048
            xs.append([("lg", f"ds_read_b128 {vr(XF(T,j),4)}, v{8 + ks + 2*(addr >> 16)} offset:{addr & 0xffff}", ("f", T))])
        if wb["kind"] == "wkv":
            wbs = [wb["R"], wb["R"] + 8192]
        else:
            wbs = [wb["R"] + (T - wb["first"]) * 8192]
        for mt, b in enumerate(wbs):
            for i in range(4):
                for half in range(2):
                    ws_.append([("lg", f"ds_read_b64_tr_b16 {vr(WF(T, mt*4+i) + 2*half, 2)}, v{12+i} offset:{b + half*1024}", ("f", T))])
        res = []
        while xs or ws_:
            if ws_: res.append(ws_.pop(0))
            if ws_ and len(wbs) == 2: res.append(ws_.pop(0))
            if xs: res.append(xs.pop(0))
        return res
    def mfma_list(T):
        out = []
        if T < 16:
            first = (T == 0)
            for rb in range(8):
                for db in range(4):
                    a = (rb * 4 + db) * 4
                    out.append(f"v_mfma_f32_16x16x32_bf16 {ar(a,4)}, {vr(WF(T,db),4)}, {vr(XF(T,rb),4)}, {'0' if first else ar(a,4)}")
                    a += 128
                    out.append(f"v_mfma_f32_16x16x32_bf16 {ar(a,4)}, {vr(XF(T,rb),4)}, {vr(WF(T,4+db),4)}, {'0' if first else ar(a,4)}")
        else:
            first = (T == 16)
            for rb in range(8):
                for db in range(4):
                    a = 128 + (rb * 4 + db) * 4
                    out.append(f"v_mfma_f32_16x16x32_bf16 {vr(a,4)}, {vr(WF(T,db),4)}, {vr(XF(T,rb),4)}, {'0' if first else vr(a,4)}")
        return out
    def kv_epi_items():
        items = []
        def ps(blkA, blkB, voff, soff, imm):
            t = 20
            for i in range(4):
                items.append([f"v_accvgpr_read_b32 v{t+i}, a{blkA+i}"])
            for i in range(4):
                items.append([f"v_accvgpr_read_b32 v{t+4+i}, a{blkB+i}"])
            for i in range(4):
                items.append([f"v_cvt_pk_bf16_f32 v{t+8+i}, v{t+2*i}, v{t+2*i+1}"])
            items.append([("vm", f"buffer_store_dwordx4 {vr(t+8,4)}, v{voff}, s[40:43], s{soff} offen offset:{imm}", "st")])
        for rb in range(8):
            for ee in range(2):
                ps((rb*4 + 2*ee)*4, (rb*4 + 2*ee + 1)*4, 16, 60 + (rb >> 1), ee*2048 + (rb & 1)*128)
        for f in range(4):
            for db in range(4):
                ps(128 + ((2*f)*4 + db)*4, 128 + ((2*f+1)*4 + db)*4, 17, 60 + f, (db >> 1)*1024 + (db & 1)*256)
        return items
    def epi_q():
        e("s_nop 7")
        n = 0
        for rb in range(8):
            for ee in range(2):
                a = 128 + (rb*4 + 2*ee)*4
                t = 32 + 4 * (n % 8); n += 1
                for i in range(8):
                    e(f"v_mul_f32 v{a+i}, s68, v{a+i}")
                for i in range(4):
                    e(f"v_cvt_pk_bf16_f32 v{t+i}, v{a+2*i}, v{a+2*i+1}")
                k.vmem(f"buffer_store_dwordx4 {vr(t,4)}, v18, s[36:39], s{64 + (rb >> 1)} offen offset:{ee*2048 + (rb & 1)*256}", "st")

    k.wait(vmtags=(find(0, True), find(0, False)))
    e("s_barrier")
    k.stamp(1)
    for it in read_list(0): emit_item(it)
    epi = kv_epi_items()
    ET = list(range(16, 34))
    per = -(-len(epi) // len(ET))
    dm_carry = []
    for T in range(NT):
        need = [bi for bi, b in enumerate(bufs) if b["first"] == T + 1]
        dm = dm_carry; dm_carry = []
        if need:
            k.wait(vmtags=tuple(need), lgtags=(("f", T),))
            e("s_barrier")
            for c in [c for c, bi in live.items() if bufs[bi]["last"] <= T]:
                del live[c]
            dm = dm + issue_what_fits()
            if T >= 16 and len(dm) > 6:
                dm_carry = dm[6:]; dm = dm[:6]
        else:
            k.wait(lgtags=(("f", T),))
        if T == 8: k.stamp(2)
        if T == 16: k.stamp(3)
        if T == 26: k.stamp(4)
        ms = mfma_list(T)
        nm = len(ms)
        rdl = read_list(T + 1) if T + 1 < NT else []
        g1 = spread(nm, rdl, 0, max(1, (nm * 3) // 4)) if rdl else {}
        g2 = spread(nm, dm, 1, nm) if dm else {}
        ep = []
        if T in ET:
            ep = epi[:per]; epi = epi[per:]
        g3 = spread(nm, ep, 4 if T == 16 else 0, nm) if ep else {}
        for i, m in enumerate(ms):
            if "x_nomfma" not in EXP: e(m)
            for it in g1.get(i, []): emit_item(it)
            for it in g2.get(i, []): emit_item(it)
            for it in g3.get(i, []): emit_item(it)
    assert not epi and not pend
    k.stamp(5)
    epi_q()
    k.stamp(6)
    if Kern.STAMP:
        e("s_waitcnt vmcnt(0)")
    k.stamp(7)
    k.stamp_flush(14, LY.STAMP_OFF, 2)
    k.label("end")
    e("s_endpgm")
    return k
```

```python
QF_OFF = 0
KVF_OFF = 16 << 20
CTX_OFF = 48 << 20
UT_OFF = 64 << 20
YT_OFF = 68 << 20
G_OFF = 72 << 20
STAMP_OFF = 73 << 20
WS_USED = 74 << 20
QSCALE = 1.4426950408889634 / (128 ** 0.5)

def dslot_map():
    m = {}
    for ks in range(8):
        blk, s = ks >> 1, ks & 1
        for hi in range(2):
            g = 2 * s + hi
            for j in range(8):
                m[(ks, hi, j)] = 32 * blk + (4 * g + j if j < 4 else 16 + 4 * g + j - 4)
    return m

def row2key(r):
    return (r & 7) | ((r & 8) << 1) | ((r & 16) >> 1)

def check(I, ws, out, torch, np, opts):
    dev = "cuda"
    def tobf(a):
        return torch.from_numpy(a.view(np.int16).copy()).view(torch.bfloat16).float().to(dev)
    def rep(name, got, exp):
        d = (got - exp)
        bad = (~torch.isfinite(got)).sum().item()
        print(f"{name}: rel_l2 {(d.norm() / exp.norm()).item():.3e} maxabs {d.abs().max().item():.3e} max|exp| {exp.abs().max().item():.3e} nonfinite {bad}")
    x = I["A_x"][0].float(); c = I["A_c_kv"][0].float()
    q = torch.einsum("qm,mhd->hqd", x, I["A_w_q"].float())
    k = torch.einsum("qm,mhd->hqd", c, I["A_w_uk"].float())
    v = torch.einsum("qm,mhd->hqd", c, I["A_w_uv"].float())
    dm = dslot_map()
    didx = torch.tensor([[[dm[(ks, hi, j)] for j in range(8)] for hi in range(2)] for ks in range(8)], device=dev)
    qf = tobf(ws[QF_OFF:QF_OFF + (16 << 20)]).view(32, 64, 8, 2, 32, 8)
    qe = (q * QSCALE).view(32, 64, 32, 128)[:, :, :, didx]
    if "noq" not in opts:
        rep("Q", qf, qe.permute(0, 1, 3, 4, 2, 5))
    kv = tobf(ws[KVF_OFF:KVF_OFF + (32 << 20)]).view(32, 32, 2, 8192)
    kf = kv[:, :, 0].reshape(32, 32, 2, 8, 2, 32, 8)
    r2k = torch.tensor([row2key(r) for r in range(32)], device=dev)
    ke = k.view(32, 32, 2, 32, 128)[:, :, :, r2k][..., didx]
    rep("K", kf, ke.permute(0, 1, 2, 4, 5, 3, 6))
    vf = kv[:, :, 1].reshape(32, 32, 2, 2, 4, 2, 32, 8)
    kidx = torch.tensor([[[(4 * (2 * s + hi) + j if j < 4 else 16 + 4 * (2 * s + hi) + j - 4) for j in range(8)] for hi in range(2)] for s in range(2)], device=dev)
    ve = v.view(32, 32, 2, 32, 4, 32)[:, :, :, kidx]
    rep("V", vf, ve.permute(0, 1, 2, 3, 6, 4, 7, 5))
    qb = q.bfloat16().float(); kb = k.bfloat16().float(); vb = v.bfloat16().float()
    if "spike" in opts:
        sc = torch.einsum("hqd,hkd->hqk", (q * QSCALE).bfloat16().float(), kb) * 0.6931471805599453
    else:
        sc = torch.einsum("hqd,hkd->hqk", qb, kb) * (128 ** -0.5)
    mask = torch.tril(torch.ones(2048, 2048, dtype=torch.bool, device=dev))
    sc = torch.where(mask[None], sc, torch.tensor(-1e9, device=dev))
    p = torch.softmax(sc, dim=-1)
    ctx = torch.einsum("hqk,hkd->hqd", p, vb)
    del sc, p
    cf = tobf(ws[CTX_OFF:CTX_OFF + (16 << 20)]).view(128, 32, 4, 4, 16, 8)
    cidx = torch.tensor([[16 * (g >> 1) + 4 * (g & 1) + (j if j < 4 else 8 + j - 4) for j in range(8)] for g in range(4)], device=dev)
    ce = ctx.view(32, 128, 16, 4, 32)[..., cidx]
    rep("CTX", cf, ce.permute(1, 0, 3, 4, 2, 5))
    a = torch.einsum("hqd,hdm->qm", ctx.bfloat16().float(), I["A_w_o"].float())
    kk = I["B_k"][0]; vv = I["B_v"][0]; sk = I["B_shift_k"]
    kp = torch.nn.functional.pad(kk, (0, 0, 3, 0))
    ksh = torch.zeros_like(kk)
    for t in range(4):
        ksh = ksh + kp[t:t + 2048] * sk[:, 3 - t][None, :]
    u = (ksh * vv)
    uf = torch.fft.rfft(torch.nn.functional.pad(u.float().T.double(), (0, 2048)))
    hf = torch.fft.rfft(torch.nn.functional.pad(I["B_ssm_k"].double(), (0, 2048)))
    y = torch.fft.irfft(uf * hf, n=4096)[:, :2048].float().bfloat16()
    y2 = y + u.T * I["B_ssm_D"][:, None]
    ut = tobf(ws[UT_OFF:UT_OFF + 640 * 2048 * 2]).view(640, 256, 8).flip(-1).reshape(640, 2048)
    rep("UT", ut, u.float().T)
    yt = tobf(ws[YT_OFF:YT_OFF + 640 * 2048 * 2]).view(640, 2048)
    rep("YT", yt, y2.float())
    g = torch.sigmoid((I["A_x"][0] * I["gate_w"]).float().sum(-1).bfloat16())
    gg = torch.from_numpy(ws[G_OFF:G_OFF + 8192].view(np.float32).copy()).to(dev)
    rep("G", gg, g.float())
    b = I["A_x"][0] * y2.T
    o = g[:, None] * a.bfloat16() + (1 - g[:, None]) * b
    rep("OUT", out.to(dev), o.float())
```

```python
import sys
from asmlib import *
import k_main, k_out, k_out3
HDR = open("gated_mix__compressed_kv_cla__ssm_conv_h3__prompt.s.ref").read().split("; Override launch")[0]
if 'stamp' in sys.argv: Kern.STAMP = True
gens = [k_main.gen_main, (k_out3 if 'x_out3' in sys.argv else k_out).gen_out]
for i, g in enumerate(gens): g.idx = i
kerns = [g() for g in gens]
out = sys.argv[1] if len(sys.argv) > 1 else "gated_mix__compressed_kv_cla__ssm_conv_h3__prompt.s"
write_file(out, HDR, kerns)
```

```python
from asmlib import *
import layout as LY
import prep_streams as PS
import struct, sys
EXP = [a for a in sys.argv if a.startswith('x_')]

def f32bits(x):
    return "0x%08x" % struct.unpack("<I", struct.pack("<f", x))[0]

P_X, P_C, P_WQ, P_WK, P_WV, P_WO = 4, 6, 8, 10, 12, 14
SRD_A, SRD_C, SRD_B, SRD_WK, SRD_WV, SRD_T, SRD_G = 16, 20, 24, 28, 32, 36, 40
S_W, S_W1K, S_H, S_P = 44, 45, 46, 47
S_U0, S_U1, S_M, S_G0 = 48, 49, 50, 51
P_K, P_V, P_SH = 52, 54, 56
S_T0, S_T1, S_T2 = 58, 59, 3
S_SO = 60
S_SCALE = 64
S_DS = 65
P_GW, P_DBG, P_WS = 68, 72, 74
STAMPB = 78
SRD_K, SRD_V = 28, 32
S_N1, S_J, S_KA, S_KB, S_KOFF, S_VOFF, S_DB = 48, 49, 51, 52, 53, 54, 55
S_RX, S_RY, S_W4K, S_WODD, S_HB = 56, 57, 66, 67, 68
S_FC, S_FB, S_N1M3, S_CTXB = 69, 70, 71, 76
S_XSH = 77
MASKP = [4, 6, 8, 10, 12, 14, 16, 18, 20, 22, 24, 26, 36, 38, 60, 62]
OX, OY, QX, QY, VF = 0, 64, 128, 160, 192
KF, SX, SY, PX, PY, NX, NY = 192, 128, 160, 96, 112, 64, 80
V_D0 = 4
V_KA, V_VA, V_CTX, V_D = 8, 9, 10, 11
V_LX, V_LY, V_LB, V_BIG = 12, 13, 14, 15
V_LT, V_M, V_T, V_X, V_E = 16, 18, 19, 24, 32
V_DBG, V_POLL = 63, 62
QL, QLB = 131072, 98304
THR = f32bits(65536.0)
WSB = 80 << 20

import os
SMAP = dict(x.split("=") for x in os.environ.get("SMAP", "start=0,first=1,T16=2,attn=3,tail=4,end=5").split(","))
def gen_main():
    k = Kern("main_kernel", 512, 256, 102, 256, 256, 163840)
    e = k.e; L = k.L
    k.stamp_base = STAMPB
    G = f"s[{SRD_G}:{SRD_G+3}]"
    def ST(name):
        if name in SMAP: k.stamp(int(SMAP[name]))
    e(f"s_cmp_ge_u32 s2, 256\ns_cbranch_scc1 {L('end')}")
    ST("start")
    e(f"""s_load_dwordx8 s[4:11], s[0:1], 0
s_load_dwordx4 s[12:15], s[0:1], 32
s_load_dwordx4 s[52:55], s[0:1], 56
s_load_dwordx2 s[56:57], s[0:1], 72
s_load_dwordx8 s[68:75], s[0:1], 96""")
    e(f"v_lshrrev_b32 v2, 6, v0\nv_and_b32 v1, 63, v0\ns_nop 0\nv_readfirstlane_b32 s{S_W}, v2")
    e(f"""s_and_b32 s{S_H}, s2, 7
s_lshr_b32 s{S_T0}, s2, 6
s_lshl_b32 s{S_T0}, s{S_T0}, 3
s_add_u32 s{S_H}, s{S_H}, s{S_T0}
s_lshr_b32 s{S_P}, s2, 3
s_and_b32 s{S_P}, s{S_P}, 7
s_lshl_b32 s{S_W1K}, s{S_W}, 10
s_mov_b32 s{S_M}, 0xffff0000""")
    e(f"""s_lshl_b32 s{S_T1}, s{S_W}, 3
v_lshrrev_b32 v2, 3, v1
v_and_b32 v3, 7, v1
v_xor_b32 v3, v3, v2
v_lshlrev_b32 v11, 4, v3
s_lshl_b32 s{S_T0}, s{S_P}, 7
s_add_u32 s{S_T0}, s{S_T0}, s{S_T1}
v_add_u32 v7, s{S_T0}, v2
v_lshl_add_u32 v26, v7, 10, v11
v_mul_u32_u24 v19, 0x500, v7
v_add_u32 v19, v19, v11
s_sub_u32 s{S_T0}, 15, s{S_P}
s_lshl_b32 s{S_T0}, s{S_T0}, 7
s_add_u32 s{S_T0}, s{S_T0}, s{S_T1}
v_add_u32 v7, s{S_T0}, v2
v_lshl_add_u32 v4, v7, 10, v11
v_mul_u32_u24 v5, 0x500, v7
v_add_u32 v5, v5, v11
v_and_b32 v2, 15, v1
v_lshrrev_b32 v3, 4, v1""")
    e(f"""s_lshr_b32 s{S_T0}, s{S_W}, 1
s_lshl_b32 s{S_T0}, s{S_T0}, 2
v_or_b32 v6, s{S_T0}, v3
v_lshrrev_b32 v7, 1, v2
v_xor_b32 v6, v6, v7
v_lshlrev_b32 v6, 1, v6
v_and_b32 v7, 1, v2
v_or_b32 v6, v6, v7
v_lshlrev_b32 v6, 4, v6
v_lshlrev_b32 v7, 13, v3
v_add_u32 v6, v6, v7
s_lshl_b32 s{S_T0}, s{S_W}, 15
s_lshl_b32 s{S_T1}, s{S_H}, 8
s_add_u32 s{S_T0}, s{S_T0}, s{S_T1}
v_add_u32 v6, s{S_T0}, v6""")
    e(f"""s_lshr_b32 s{S_T0}, s2, 1
s_lshl_b32 s{S_T0}, s{S_T0}, 5
s_add_u32 s{S_T0}, s{S_T0}, s{S_W}
s_mul_i32 s{S_T0}, s{S_T0}, 1280
s_and_b32 s{S_T1}, s2, 1
s_mul_i32 s{S_T1}, s{S_T1}, 640
s_add_u32 s{S_T0}, s{S_T0}, s{S_T1}
v_cmp_gt_u32 vcc, 40, v1
v_lshlrev_b32 v20, 4, v1
v_add_u32 v20, s{S_T0}, v20
v_mov_b32 v7, 0x7ffffff0
v_cndmask_b32 v20, v7, v20, vcc""")
    e("s_waitcnt lgkmcnt(0)")
    k.srd(SRD_C, P_C, 2048*1024)
    k.srd(SRD_WK, P_WK, 512*8192)
    k.srd(SRD_WV, P_WV, 512*8192)

    NT = 36
    xb, wb = [], []
    for s in range(8):
        xb.append(dict(kind="xc", k0=64*s, first=2*s, last=2*s+1))
        if s == 1: xb.append(dict(kind="wo", first=4, last=4))
        wb.append(dict(kind="wkv", k0=64*s, first=2*s, last=2*s))
        wb.append(dict(kind="wkv", k0=64*s+32, first=2*s+1, last=2*s+1))
    for s in range(10):
        xb.append(dict(kind="xx", k0=64*s, first=16+2*s, last=16+2*s+1))
        wb.append(dict(kind="wq", k0=64*s, first=16+2*s, last=16+2*s+1))
    xs_ = [131072, 98304, 65536]; ws_ = [16384, 49152, 0, 32768]
    for i, b in enumerate(xb):
        b["R"] = xs_[(len(xb) - 1 - i) % 3]; b["prev"] = xb[i-3] if i >= 3 else None; b["id"] = ("x", i)
    for i, b in enumerate(wb):
        b["R"] = ws_[(len(wb) - 1 - i) % 4]; b["prev"] = wb[i-4] if i >= 4 else None; b["id"] = ("w", i)
    order = sorted(xb + wb, key=lambda b: (b["first"], b["kind"][0] != "x"))
    def find(T, lst):
        for b in lst:
            if b["first"] <= T <= b["last"] and b["kind"] != "wo": return b
    def dma_list(b):
        R = b["R"]; out = []
        def d(ldsoff, soff, vo, srd):
            out.append([f"s_add_u32 m0, s{S_W1K}, {ldsoff}", f"s_mov_b32 s{S_DS}, {soff}",
                        ("vm", f"buffer_load_dwordx4 v{vo}, s[{srd}:{srd+3}], s{S_DS} offen lds", b["id"])])
        kd = b["kind"]
        if kd == "xc":
            for i in range(8): d(R + i*4096, (i & 3)*32*1024 + b["k0"]*2, 4 if i < 4 else 26, SRD_C)
        elif kd == "xx":
            for i in range(8): d(R + i*4096, (i & 3)*32*1280 + b["k0"]*2, 5 if i < 4 else 19, SRD_A)
        elif kd == "wkv":
            for mt, srd in ((0, SRD_WK), (1, SRD_WV)):
                for i in range(2): d(R + mt*8192 + i*4096, (b["k0"] + 16*i)*8192, 6, srd)
        elif kd == "wq":
            for i in range(4): d(R + i*4096, (b["k0"] + 16*i)*8192, 6, SRD_B)
        else:
            for i in range(8): d(R + i*4096, i*4*1280, 20, SRD_T)
        return out
    def emit_item(it):
        for x in it:
            if isinstance(x, tuple):
                if x[0] == "vm": k.vmem(x[1], x[2])
                elif x[0] == "lg": k.lds_op(x[1], x[2])
                elif x[0] == "wait": k.wait(vmtags=(x[1],))
                elif x[0] == "label": k.label(x[1])
            else:
                e(x)
    pend = list(order)
    def issue_ready(T):
        out = []
        for b in list(pend):
            if b["prev"] is None or b["prev"]["last"] <= T:
                out += dma_list(b); pend.remove(b)
        return out
    pro = issue_ready(-1)
    wo_dma = pro[-8:]; pro = pro[:-8]
    assert all("v20," in it[2][1] for it in wo_dma)
    for it in pro: emit_item(it)
    k.srd(SRD_A, P_X, 2048*1280)
    k.srd(SRD_B, P_WQ, 640*8192)
    e(f"""s_lshl_b32 s76, s2, 2
s_add_u32 s76, s76, s{S_W}
v_lshlrev_b32 v25, 4, v1
v_add_u32 v23, 0x1000, v25""")
    def pf(srd, per, offs):
        out = [[f"s_mul_i32 s{S_G0}, s76, {per}"]]
        for o in offs:
            out.append([("vm", f"buffer_load_dwordx4 v[28:31], v{25 if o < 4096 else 23}, s[{srd}:{srd+3}], s{S_G0} offen offset:{o & 4095} {PFF}", "t")])
        return out
    PFF = os.environ.get("PFF", "")
    pf1 = pf(SRD_C, 2048, [0, 1024]) + pf(SRD_WK, 4096, [0, 1024, 2048, 3072]) + pf(SRD_WV, 4096, [0, 1024, 2048, 3072])
    pf2 = pf(SRD_A, 2560, [0, 1024, 1536]) + pf(SRD_B, 5120, [0, 1024, 2048, 3072, 4096])
    k.srd(SRD_T, P_WO, 4096*1280)
    k.srd(SRD_G, P_WS, WSB)
    def srd_items(d, p, n):
        return [[f"s_mov_b32 s{d}, s{p}", f"s_mov_b32 s{d+1}, s{p+1}"], [f"s_mov_b32 s{d+2}, {hex(n)}", f"s_mov_b32 s{d+3}, 0x00020000"]]
    u_ld, u_cp = PS.u_stream(32, 2, S_W, 1, SRD_A, SRD_B, SRD_T, SRD_G, S_M, S_U0, S_U1)
    u_ld = srd_items(SRD_A, P_K, 2048*1280) + srd_items(SRD_B, P_V, 2048*1280) + srd_items(SRD_T, P_SH, 640*8) + u_ld + [[f"v_add_u32 v35, {hex(LY.UT_OFF)}, v35"]]
    u_ld += srd_items(SRD_A, P_X, 2048*1280) + srd_items(SRD_B, P_WQ, 640*8192) + srd_items(SRD_T, P_GW, 1280)
    announce = [[f"""s_getreg_b32 s{S_XSH}, hwreg(HW_REG_XCC_ID, 0, 3)
s_lshl_b32 s{S_XSH}, s{S_XSH}, 2
s_lshl_b32 s{S_T0}, 1, s{S_XSH}
v_mov_b32 v27, s{S_T0}
s_cmp_lg_u32 s{S_W}, 0
s_cbranch_scc1 {L('noan')}
s_mov_b64 exec, 1
global_atomic_add v7, v27, s[{P_DBG}:{P_DBG+1}] offset:128 sc1
s_mov_b64 exec, -1""", ("label", "noan")]]

    e(f"""s_lshr_b32 s{S_T0}, s{S_W}, 1
s_lshl_b32 s{S_T0}, s{S_T0}, 14
s_add_u32 s{S_T0}, s{S_T0}, 0x10000
v_and_b32 v7, 7, v2
v_xor_b32 v7, v7, v3
v_lshlrev_b32 v7, 4, v7
v_lshlrev_b32 v8, 7, v2
v_add_u32 v8, v8, v7
v_add_u32 v8, s{S_T0}, v8
v_xor_b32 v9, 64, v8
v_add_u32 v10, 0x10000, v8
v_add_u32 v11, 0x10000, v9""")
    e(f"""v_lshrrev_b32 v7, 2, v2
v_and_b32 v16, 1, v3
v_lshlrev_b32 v16, 2, v16
v_or_b32 v16, v16, v7
v_lshlrev_b32 v27, 3, v3
v_add_u32 v27, v27, v7
v_lshlrev_b32 v27, 8, v27
v_and_b32 v28, 3, v1
v_lshlrev_b32 v28, 3, v28
v_add_u32 v27, v27, v28
s_and_b32 s{S_T1}, s{S_W}, 1
s_lshl_b32 s{S_T1}, s{S_T1}, 2""")
    for i in range(4):
        e(f"s_add_u32 s{S_T0}, s{S_T1}, {i}\nv_xor_b32 v29, s{S_T0}, v16\nv_lshlrev_b32 v29, 5, v29\nv_add_u32 v{12+i}, v27, v29")
    woR = [b for b in xb if b["kind"] == "wo"][0]["R"]
    e(f"""v_lshrrev_b32 v21, 1, v3
v_lshlrev_b32 v21, 4, v21
v_add_u32 v21, v21, v16
v_lshlrev_b32 v21, 10, v21
s_mul_i32 s{S_T0}, s{S_W}, 160
s_add_u32 s{S_T0}, s{S_T0}, {woR}
v_add3_u32 v21, v21, v28, s{S_T0}""")
    e(f"""s_and_b32 s{S_T0}, s2, 1
s_lshl_b32 s{S_T0}, s{S_T0}, 2
s_add_u32 s{S_T0}, s{S_T0}, s{S_W}
s_lshl_b32 s{S_T0}, s{S_T0}, 7
s_lshr_b32 s{S_T1}, s2, 1
s_add_u32 s{S_T0}, s{S_T0}, s{S_T1}
s_mul_i32 s{S_T0}, s{S_T0}, 5120
s_add_u32 s{S_T0}, s{S_T0}, {hex(LY.WOF_OFF)}
v_lshlrev_b32 v24, 4, v1
v_add_u32 v24, s{S_T0}, v24
v_add_u32 v22, 0x1000, v24""")
    e(f"""v_and_b32 v27, 7, v1
v_and_b32 v28, 8, v1
v_lshlrev_b32 v28, 1, v28
v_or_b32 v27, v27, v28
v_and_b32 v28, 1, v3
v_lshlrev_b32 v29, 5, v28
v_add_u32 v27, v27, v29
v_lshlrev_b32 v27, 4, v27
v_lshrrev_b32 v30, 1, v3
v_lshlrev_b32 v31, 10, v30
v_add_u32 v16, v27, v31
s_lshl_b32 s{S_T0}, s{S_H}, 5
s_sub_u32 s{S_T1}, 15, s{S_P}
s_cmp_lt_u32 s{S_W}, 2
s_cselect_b32 s{S_T1}, s{S_T1}, s{S_P}
s_lshl_b32 s{S_T1}, s{S_T1}, 1
s_add_u32 s{S_T0}, s{S_T0}, s{S_T1}
s_lshl_b32 s{S_T0}, s{S_T0}, 15
s_add_u32 s{S_T0}, s{S_T0}, {hex(LY.KVF_OFF)}
s_and_b32 s{S_T2}, s{S_W}, 1
s_lshl_b32 s{S_T1}, s{S_T2}, 12
s_add_u32 s{S_T1}, s{S_T1}, s{S_T0}
v_add_u32 v16, s{S_T1}, v16
v_add_u32 v27, v2, v29
v_lshlrev_b32 v27, 4, v27
v_lshlrev_b32 v31, 12, v30
v_add_u32 v17, v27, v31
s_lshl_b32 s{S_T1}, s{S_T2}, 11
s_add_u32 s{S_T1}, s{S_T1}, s{S_T0}
s_add_u32 s{S_T1}, s{S_T1}, 16384
v_add_u32 v17, s{S_T1}, v17
v_lshlrev_b32 v31, 10, v30
v_add_u32 v18, v27, v31
s_lshr_b32 s{S_T0}, s{S_W}, 1
s_lshl_b32 s{S_T0}, s{S_T0}, 15
s_sub_u32 s{S_T0}, {QL}, s{S_T0}
s_lshl_b32 s{S_T1}, s{S_T2}, 12
s_add_u32 s{S_T0}, s{S_T0}, s{S_T1}
v_add_u32 v18, s{S_T0}, v18""")
    for f in range(4):
        e(f"s_mov_b32 s{S_SO+f}, {(f>>1)*32768 + (f&1)*8192}")
    e(f"s_mov_b32 s{S_SCALE}, {f32bits(LY.QSCALE)}")
    e(f"s_lshl_b32 s{S_T0}, s{S_H}, 2\nv_mov_b32 v7, s{S_T0}")

    def XF(T, j): return (128 + 64 * (T & 1) + 4 * j) if T < 16 else (32 + 48 * (T & 1) + 4 * j)
    def WF(T, j): return XF(T, 8 + j)
    def read_list(T):
        xbuf = find(T, xb); wbuf = find(T, wb)
        ks = T - xbuf["first"]
        xs = []; wl = []
        for j in range(8):
            addr = xbuf["R"] - 65536 + j * 2048
            xs.append([("lg", f"ds_read_b128 {vr(XF(T,j),4)}, v{8 + ks + 2*(addr >> 16)} offset:{addr & 0xffff}", ("f", T))])
        wbs = [wbuf["R"], wbuf["R"] + 8192] if wbuf["kind"] == "wkv" else [wbuf["R"] + (T - wbuf["first"]) * 8192]
        for mt, b in enumerate(wbs):
            for i in range(4):
                for half in range(2):
                    wl.append([("lg", f"ds_read_b64_tr_b16 {vr(WF(T, mt*4+i) + 2*half, 2)}, v{12+i} offset:{b + half*1024}", ("f", T))])
        res = []
        while xs or wl:
            if wl: res.append(wl.pop(0))
            if wl and len(wbs) == 2: res.append(wl.pop(0))
            if xs: res.append(xs.pop(0))
        return res
    def mfma_list(T):
        out = []
        for rb in range(8):
            for db in range(4):
                a = (rb * 4 + db) * 4
                if T < 16:
                    out.append(f"v_mfma_f32_16x16x32_bf16 {ar(a,4)}, {vr(WF(T,db),4)}, {vr(XF(T,rb),4)}, {'0' if T == 0 else ar(a,4)}")
                    out.append(f"v_mfma_f32_16x16x32_bf16 {ar(a+128,4)}, {vr(XF(T,rb),4)}, {vr(WF(T,4+db),4)}, {'0' if T == 0 else ar(a+128,4)}")
                else:
                    out.append(f"v_mfma_f32_16x16x32_bf16 {vr(128+a,4)}, {vr(WF(T,db),4)}, {vr(XF(T,rb),4)}, {'0' if T == 16 else vr(128+a,4)}")
        return out
    def kv_epi_items():
        items = []
        def ps(blkA, blkB, voff, soff, imm):
            t = 20
            for i in range(4): items.append([f"v_accvgpr_read_b32 v{t+i}, a{blkA+i}"])
            for i in range(4): items.append([f"v_accvgpr_read_b32 v{t+4+i}, a{blkB+i}"])
            for i in range(4): items.append([f"v_cvt_pk_bf16_f32 v{t+8+i}, v{t+2*i}, v{t+2*i+1}"])
            items.append([("vm", f"buffer_store_dwordx4 {vr(t+8,4)}, v{voff}, {G}, s{soff} offen offset:{imm}", "kv")])
        for rb in range(8):
            for ee in range(2):
                ps((rb*4 + 2*ee)*4, (rb*4 + 2*ee + 1)*4, 16, S_SO + (rb >> 1), ee*2048 + (rb & 1)*128)
        for f in range(4):
            for db in range(4):
                ps(128 + ((2*f)*4 + db)*4, 128 + ((2*f+1)*4 + db)*4, 17, S_SO + f, (db >> 1)*1024 + (db & 1)*256)
        return items

    fill = {T: [] for T in range(NT)}
    def plan(items, Ts):
        if not items: return
        per = -(-len(items) // len(Ts))
        for T in Ts:
            fill[T] += items[:per]; items = items[per:]
        assert not items
    WOR = 104
    GR_BASE = 88
    PLAN = os.environ.get("PLAN", "a")
    fill[0] += announce
    fill[2] += [[f"""s_cmp_lg_u32 s2, 0
s_cbranch_scc1 {L('nofl')}
v_mov_b32 v40, 0
v_mov_b32 v41, 0
v_mov_b32 v42, 0
v_mov_b32 v43, 0
v_lshlrev_b32 v44, 4, v0
s_mov_b32 s{S_T0}, {hex(LY.FL_OFF)}
buffer_store_dwordx4 v[40:43], v44, {G}, s{S_T0} offen""", ("label", "nofl")]]
    if "x_notouch" not in EXP:
        if PLAN == "a":
            plan(pf1, [0, 1, 2, 3]); plan(pf2, [3, 4, 5])
        else:
            plan(pf2, [1, 2, 3, 4, 5])
    if "x_noprep" in EXP:
        wo_dma = []; u_ld = []; u_cp = []
    if PLAN == "c":
        fill = {T: [] for T in range(NT)}
        fill[0] += announce
        for it in pf1: emit_item(it)
        plan(pf2, [2, 3, 4, 5, 6, 7])
    fill[1] += wo_dma
    fill[3] += [[("lg", f"ds_read_b64_tr_b16 {vr(WOR+4*nb+2*h,2)}, v21 offset:{h*8192 + nb*32}", ("f", 4))] for nb in range(5) for h in range(2)]
    fill[4] += [[("vm", f"buffer_store_dwordx4 {vr(WOR+4*nb,4)}, v{24 if nb < 4 else 22}, {G}, 0 offen offset:{(nb&3)*1024}", "st")] for nb in range(5)]
    plan(u_ld, [6, 7])
    g_ld, g_cp = PS.gate_stream(GR_BASE, 2, S_W, 1, SRD_A, SRD_T, SRD_G, S_M, S_G0)
    g_ld.append([f"v_add_u32 v{GR_BASE+1}, {hex(LY.G_OFF)}, v{GR_BASE+1}"])
    if "x_noprep" in EXP: g_ld = []; g_cp = []
    plan(g_ld, [8])
    plan(g_cp, [9, 10])
    plan(u_cp, list(range(10, 15)))
    plan(kv_epi_items(), list(range(16, 32)))
    ai = []
    for s in f"""s_lshl_b32 s{S_N1}, s{S_P}, 1
s_add_u32 s{S_N1}, s{S_N1}, 2
s_lshl_b32 s{S_W4K}, s{S_W}, 12
s_and_b32 s{S_WODD}, s{S_W}, 1
s_lshl_b32 s{S_HB}, s{S_H}, 20
s_add_u32 s{S_HB}, s{S_HB}, {hex(LY.KVF_OFF)}
s_add_u32 s{S_HB}, s{S_HB}, s{S_W4K}
s_sub_u32 s{S_RX}, 15, s{S_P}
s_lshl_b32 s{S_RX}, s{S_RX}, 2
s_add_u32 s{S_RX}, s{S_RX}, s{S_W}
s_lshl_b32 s{S_RY}, s{S_P}, 2
s_add_u32 s{S_RY}, s{S_RY}, s{S_W}
s_mov_b32 s{SRD_K}, s{SRD_G}
s_mov_b32 s{SRD_K+1}, s{SRD_G+1}
s_mov_b32 s{SRD_K+2}, {hex(WSB)}
s_mov_b32 s{SRD_K+3}, 0x00020000
s_mov_b32 s{SRD_V}, s{SRD_G}
s_mov_b32 s{SRD_V+1}, s{SRD_G+1}
s_mov_b32 s{SRD_V+2}, {hex(WSB)}
s_mov_b32 s{SRD_V+3}, 0x00020000
s_sub_u32 s{S_T0}, s{S_N1}, 2
s_lshl_b32 s{S_T0}, s{S_T0}, 15
s_add_u32 s{S_KA}, s{S_HB}, s{S_T0}
s_add_u32 s{S_KOFF}, s{S_KA}, 0x8000
s_add_u32 s{S_KB}, s{S_KA}, 0x10000
s_cmp_eq_u32 s{S_N1}, 2
s_cselect_b32 s{S_KB}, s{S_KB}, s{S_HB}
s_add_u32 s{S_DB}, s{S_W4K}, 0x10000
s_sub_i32 s{S_N1M3}, s{S_N1}, 3
s_lshl_b32 s{S_FC}, 11, s{S_N1}
s_lshr_b32 s{S_FC}, s{S_FC}, 3
s_or_b32 s{S_FC}, s{S_FC}, 0x1c002
s_sub_u32 s{S_T0}, s{S_N1}, 1
s_lshl_b32 s{S_FB}, 1, s{S_T0}
s_or_b32 s{S_FB}, s{S_FB}, 0x8000
v_mov_b32 v23, 1
v_lshlrev_b32 v24, 4, v1
v_add_u32 v25, 0x8000, v24
v_add_u32 v26, 0x4000, v24""".split("\n"): ai.append([s])
    ai2 = []
    for it in ai:
        if it[0].startswith("s_cselect"): ai2[-1] = ai2[-1] + it
        else: ai2.append(it)
    plan(ai2, [32])
    plan([[f"v_accvgpr_write_b32 a{r}, 0"] for r in range(128)], [33, 34, 35])

    k.wait(vmtags=(find(0, xb)["id"], find(0, wb)["id"]))
    e("s_barrier")
    ST("first")
    for it in read_list(0): emit_item(it)
    dm_carry = []
    def dma4(m0expr, voff, srd, soff, tag=None):
        mk = (lambda s: ("vm", s, tag)) if tag else (lambda s: s)
        out = [[m0expr, "NOPIF", mk(f"buffer_load_dwordx4 v{voff}, s[{srd}:{srd+3}], s{soff} offen lds")]]
        for i in range(1, 4):
            out.append([mk(f"buffer_load_dwordx4 v{voff}, s[{srd}:{srd+3}], s{soff} offen offset:{i*1024} lds")])
        return out
    for T in range(NT):
        need = [b["id"] for b in xb + wb if b["first"] == T + 1]
        dm = dm_carry; dm_carry = []
        ST(f"P{T}")
        if T == 33:
            e("s_waitcnt vmcnt(0)"); k.vm = []
        if need or T == 35:
            k.wait(vmtags=tuple(need), lgtags=(("f", T),))
            e("s_barrier")
            dm = dm + issue_ready(T)
            if T >= 16 and len(dm) > 6:
                dm_carry = dm[6:]; dm = dm[:6]
        else:
            k.wait(lgtags=(("f", T),))
        if T == 30:
            k.vmem(f"global_load_dword v3, v7, s[{P_DBG}:{P_DBG+1}] offset:128 sc1", "co")
        if T == 33:
            e(f"s_cmp_lg_u32 s{S_W}, 0\ns_cbranch_scc1 {L('noat')}")
            e(f"""v_readfirstlane_b32 s{S_T0}, v3
s_lshr_b32 s{S_T0}, s{S_T0}, s{S_XSH}
s_and_b32 s{S_T0}, s{S_T0}, 15
s_cmp_eq_u32 s{S_T0}, {99 if "x_slow" in EXP else 8}
s_cbranch_scc1 {L('coloc')}
buffer_wbl2 sc1
s_waitcnt vmcnt(0)""")
            k.label("coloc")
            e(f"s_mov_b64 exec, 1\nglobal_atomic_add v7, v23, s[{P_DBG}:{P_DBG+1}] sc1\ns_mov_b64 exec, -1")
            k.label("noat")
            fix = lambda l: [[("s_nop 0" if x == "NOPIF" else x) for x in it] for it in l]
            dm = dm + fix(dma4(f"s_add_u32 m0, s{S_W4K}, 0x10000", 24, SRD_G, S_KA, "k0"))
            dm_carry = fix(dma4(f"s_add_u32 m0, s{S_W4K}, 0x8000", 26, SRD_G, S_KA, "v0")) + fix(dma4(f"s_mov_b32 m0, s{S_W4K}", 25, SRD_G, S_KA, "k1"))
        ST(f"T{T}")
        ms = mfma_list(T); nm = len(ms)
        rdl = read_list(T + 1) if T + 1 < NT else []
        g1 = spread(nm, rdl, 0, max(1, (nm * 3) // 4)) if rdl else {}
        g2 = spread(nm, dm, 1, nm) if dm else {}
        g3 = spread(nm, fill[T], 4 if T == 16 else 0, nm) if fill[T] else {}
        for i, m in enumerate(ms):
            e(m)
            for it in g1.get(i, []): emit_item(it)
            for it in g2.get(i, []): emit_item(it)
            for it in g3.get(i, []): emit_item(it)
    assert not pend and not dm_carry
    e(f"""v_mov_b32 v31, v7
v_mov_b32 v{V_D0}, v24
v_mov_b32 v{V_D0+1}, v25
v_mov_b32 v{V_D0+2}, v26
v_add_u32 v{V_D0+3}, 0xc000, v24
v_and_b32 v2, 31, v1
v_lshrrev_b32 v3, 5, v1
v_lshlrev_b32 v{V_D}, 2, v3
v_sub_u32 v{V_D}, v2, v{V_D}""")
    n = 0
    for rb in range(8):
        for ee in range(2):
            a = 128 + (rb*4 + 2*ee)*4
            t = 32 + 4 * (n % 8); n += 1
            for i in range(8): e(f"v_mul_f32 v{a+i}, s{S_SCALE}, v{a+i}")
            for i in range(4): e(f"v_cvt_pk_bf16_f32 v{t+i}, v{a+2*i}, v{a+2*i+1}")
            e(f"ds_write_b128 v18, {vr(t,4)} offset:{(rb >> 1)*8192 + ee*2048 + (rb & 1)*256}")
    for r in range(16):
        f = LY.row2key(8 * (r >> 2) + (r & 3))
        e(f"v_cmp_le_i32 s[{MASKP[r]}:{MASKP[r]+1}], {f}, v{V_D}")
    e(f"""v_lshrrev_b32 v{V_T}, 4, v2
v_lshlrev_b32 v{V_T}, 17, v{V_T}
v_lshlrev_b32 v{V_T+1}, 8, v3
v_add_u32 v{V_T}, v{V_T}, v{V_T+1}
v_and_b32 v{V_T+1}, 15, v2
v_lshlrev_b32 v{V_T+1}, 4, v{V_T+1}
v_add_u32 v{V_T}, v{V_T}, v{V_T+1}
s_lshl_b32 s{S_T0}, s{S_H}, 12
s_add_u32 s{S_T0}, s{S_T0}, {hex(LY.CTX_OFF)}
v_add_u32 v{V_CTX}, s{S_T0}, v{V_T}
v_mov_b32 v{V_BIG}, {f32bits(-1e30)}
v_mov_b32 v{V_LX}, 0
v_mov_b32 v{V_LY}, 0
v_add_u32 v{V_KA}, 0x10000, v{V_D0}
v_add_u32 v{V_VA}, 0x10000, v{V_D0}
s_lshl_b32 s{S_T0}, s{S_W}, 13
s_add_u32 s{S_T0}, s{S_T0}, {QLB}
v_add_u32 v{V_T}, s{S_T0}, v{V_D0}""")
    for r in range(32): e(f"v_mov_b32 v{NX+r}, 0")
    e(f"s_waitcnt vmcnt(8) lgkmcnt(0)\nv_mov_b32 v{V_DBG}, v31\ns_barrier")
    ST("attn")
    for i in range(8):
        e(f"ds_read_b128 {ar(QX+4*i,4)}, v{V_T} offset:{32768 + i*1024}")
        e(f"ds_read_b128 {vr(KF+4*i,4)}, v{V_KA} offset:{i*1024}")
    for i in range(8, 16):
        e(f"ds_read_b128 {vr(KF+4*i,4)}, v{V_KA} offset:{i*1024}")
    for i in range(8):
        e(f"ds_read_b128 {ar(QY+4*i,4)}, v{V_T} offset:{i*1024}")

    def regs(Z):
        return dict(S=SX, Q=QX, N=NX, O=OX, P=PX, L=V_LX, R=S_RX) if Z == "X" else dict(S=SY, Q=QY, N=NY, O=OY, P=PY, L=V_LY, R=S_RY)
    def qk(Z):
        r = regs(Z); out = []
        for kb in range(2):
            for ks in range(8):
                c = vr(r["N"], 16) if ks == 0 else vr(r["S"] + 16*kb, 16)
                out.append(f"v_mfma_f32_32x32x16_bf16 {vr(r['S']+16*kb,16)}, {vr(KF+4*(8*kb+ks),4)}, {ar(r['Q']+4*ks,4)}, {c}")
        return out
    def pv(Z):
        r = regs(Z); out = []
        for db in range(4):
            for s in range(4):
                out.append(f"v_mfma_f32_32x32x16_bf16 {ar(r['O']+16*db,16)}, {ar(VF+4*(4*db+s),4)}, {vr(r['P']+4*s,4)}, {ar(r['O']+16*db,16)}")
        return out
    def sm_core(Z):
        r = regs(Z); S, P = r["S"], r["P"]
        t = lambda i: V_X + (i % 8)
        it = []
        for pi in range(17):
            post = []
            if pi >= 1:
                q = pi - 1
                post.append((1, [f"v_cvt_pk_bf16_f32 v{P+q}, v{t(2*q)}, v{t(2*q+1)}"]))
                if q == 1:
                    post.append((1, [f"v_add_f32 v{V_LT}, v{t(0)}, v{t(2)}"]))
                    post.append((1, [f"v_add_f32 v{V_LT+1}, v{t(1)}, v{t(3)}"]))
                elif q >= 2:
                    post.append((1, [f"v_add_f32 v{V_LT}, v{V_LT}, v{t(2*q)}"]))
                    post.append((1, [f"v_add_f32 v{V_LT+1}, v{V_LT+1}, v{t(2*q+1)}"]))
            if pi < 16:
                it.append((2, [f"v_exp_f32 v{t(2*pi)}, v{S+2*pi}"]))
                if post: it.append(post.pop())
                it.append((2, [f"v_exp_f32 v{t(2*pi+1)}, v{S+2*pi+1}"]))
            elif post:
                it.append((1, ["s_nop 0"]))
            it += post
        it.append((1, [f"v_add_f32 v{V_LT}, v{V_LT}, v{V_LT+1}"]))
        return it
    redo_sites = []
    def sm(Z, tag):
        r = regs(Z)
        it = sm_core(Z)
        lab = f"rd{Z}{tag}"
        it.append((1, [f"v_cmp_nge_f32 vcc, {THR}, v{V_LT}"]))
        it.append((1, [f"s_cbranch_vccnz {L(lab)}", ("label", lab + "r")]))
        it.append((1, [f"v_add_f32 v{r['L']}, v{r['L']}, v{V_LT}"]))
        redo_sites.append((Z, lab))
        return it
    def emit(x):
        if isinstance(x, tuple): k.label(x[1])
        elif x == "NOPIF": e("s_nop 0")
        else: e(x)
    def weave(mf, fixed, stream, lo=0):
        n = len(mf)
        fw = [sum(w for w, _ in fixed.get(g, [])) for g in range(n)]
        tot = sum(w for w, _ in stream) + sum(fw)
        per = tot / n
        acc = 0.0; si = 0
        for g in range(n):
            if mf[g]: e(mf[g])
            gw = 0
            for w, ins in fixed.get(g, []):
                for x in ins: emit(x)
                acc += w; gw += w
            while g >= lo and si < len(stream) and (g == n - 1 or (acc + stream[si][0] * 0.5 <= per * (g + 1) + 0.01 and gw + stream[si][0] <= 6)):
                for x in stream[si][1]: emit(x)
                acc += stream[si][0]; gw += stream[si][0]; si += 1
    def add(fx, g, ins, w=None):
        fx.setdefault(g, []).append((len(ins) if w is None else w, ins))
    def vlds(i): return 32768 + ((i & 3) * 4 + (i >> 2)) * 1024
    NV1 = 6
    def dma_items(n16):
        items = []
        def unit(m0, voff, srd, soff):
            d = dma4(m0, voff, srd, soff)
            items.append([d[0][0]]); items.append([d[0][2]]); items.extend(d[1:])
        items.append([f"s_mov_b32 s{S_VOFF}, s{S_KOFF}", f"s_mov_b32 s{S_KOFF}, s{S_KB}"])
        items.append([f"s_add_u32 s{S_KB}, s{S_KB}, {0x10000 if n16 else 0x8000}", f"s_xor_b32 s{S_DB}, s{S_DB}, 0x10000"])
        pre = len(items)
        unit(f"s_add_u32 m0, s{S_DB}, 0x8000", V_D0+2, SRD_V, S_VOFF)
        if n16: unit(f"s_add_u32 m0, s{S_DB}, 0xc000", V_D0+3, SRD_V, S_VOFF)
        unit(f"s_mov_b32 m0, s{S_DB}", V_D0, SRD_K, S_KOFF)
        if n16: unit(f"s_add_u32 m0, s{S_DB}, 0x4000", V_D0+1, SRD_K, S_KOFF)
        return items[:pre], items[pre:]
    def body(tag, n16):
        mf = qk("X") + pv("X") + qk("Y") + pv("Y")
        fx = {}
        e(f"s_waitcnt lgkmcnt({NV1})")
        for i in range(NV1, 16):
            add(fx, int((i - NV1) * 1.25), [f"ds_read_b128 {ar(VF+4*i,4)}, v{V_VA} offset:{vlds(i)}"])
        pre, dm = dma_items(n16)
        for i, it in enumerate(pre): add(fx, 13 + i, it)
        add(fx, 15, ["s_waitcnt vmcnt(0) lgkmcnt(0)", "s_barrier"])
        span = 30 if n16 else 24
        for i, it in enumerate(dm): add(fx, 16 + (i * span) // len(dm), it)
        add(fx, 29, [f"v_xor_b32 v{V_KA}, 0x10000, v{V_KA}"])
        add(fx, 30, [f"v_xor_b32 v{V_VA}, 0x10000, v{V_VA}"])
        for i in range(16):
            add(fx, 32 + 2 + int(i * 1.35), [f"ds_read_b128 {vr(KF+4*i,4)}, v{V_KA} offset:{i*1024}"])
        for i in range(NV1):
            add(fx, 32 + 24 + int(i * 1.3), [f"ds_read_b128 {ar(VF+4*i,4)}, v{V_VA} offset:{vlds(i)}"])
        weave(mf[:32], {g: v for g, v in fx.items() if g < 32}, sm("Y", tag))
        if n16:
            e(f"s_bitcmp1_b32 s{S_FB}, s{S_J}\ns_cbranch_scc1 {L('hB')}")
            k.label("hBr")
        weave(mf[32:], {g - 32: v for g, v in fx.items() if g >= 32}, sm("X", tag))
        e(f"s_add_u32 s{S_J}, s{S_J}, 1")
    def tile_max_items(S):
        it = [[f"v_max3_f32 v{V_M}, v{S}, v{S+1}, v{S+2}"], [f"v_max3_f32 v{V_T}, v{S+3}, v{S+4}, v{S+5}"]]
        i = 6; tog = 0
        while i < 32:
            d = V_M if tog == 0 else V_T
            it.append([f"v_max3_f32 v{d}, v{d}, v{S+i}, v{S+i+1}"]); i += 2; tog ^= 1
        it.append([f"v_max_f32 v{V_M}, v{V_M}, v{V_T}"])
        it.append([f"v_mov_b32 v{V_T}, v{V_M}", "s_nop 1", f"v_permlane32_swap_b32 v{V_T}, v{V_M}", "s_nop 1", f"v_max_f32 v{V_M}, v{V_M}, v{V_T}"])
        return it
    def tile_max(S):
        for it in tile_max_items(S):
            for x in it: e(x)
    def first_items(Z):
        r = regs(Z); S, N = r["S"], r["N"]
        it = tile_max_items(S)
        it.append([f"v_sub_f32 v{N}, v{N}, v{V_M}"])
        for i in range(32): it.append([f"v_sub_f32 v{S+i}, v{S+i}, v{V_M}"])
        for i in range(1, 16): it.append([f"v_mov_b32 v{N+i}, v{N}"])
        return it
    def first_block(Z):
        for it in first_items(Z):
            for x in it: e(x)

    e("s_waitcnt lgkmcnt(8)")
    fx = {}
    add(fx, 12, [f"global_load_dword v{V_POLL}, v{V_DBG}, s[{P_DBG}:{P_DBG+1}] sc1"])
    add(fx, 15, ["s_waitcnt vmcnt(1) lgkmcnt(0)", "s_barrier"])
    weave(qk("X"), fx, [])
    fx = {}
    for i, it in enumerate(dma4(f"s_add_u32 m0, s{S_DB}, 0x8000", V_D0+2, SRD_V, S_KOFF)): add(fx, i, it)
    add(fx, 4, [f"v_xor_b32 v{V_KA}, 0x10000, v{V_KA}", f"v_xor_b32 v{V_VA}, 0x10000, v{V_VA}"])
    for i in range(11):
        add(fx, 5 + i, [f"ds_read_b128 {vr(KF+4*i,4)}, v{V_KA} offset:{i*1024}"])
    weave(qk("Y"), fx, [(0, [])] * 0 + [(len(it), it) for it in first_items("X")], lo=4)
    for i in range(11, 16):
        e(f"ds_read_b128 {vr(KF+4*i,4)}, v{V_KA} offset:{i*1024}")
    for i in range(NV1):
        e(f"ds_read_b128 {ar(VF+4*i,4)}, v{V_VA} offset:{vlds(i)}")
    e(f"s_cmp_lg_u32 s{S_W}, 0\ns_cbranch_scc1 {L('pollok')}")
    e(f"s_waitcnt vmcnt(4)\nv_readfirstlane_b32 s{S_T0}, v{V_POLL}\ns_cmp_lt_u32 s{S_T0}, 8\ns_cbranch_scc1 {L('spin')}")
    k.label("spinr")
    e("buffer_inv sc1")
    k.label("pollok")
    for w, ins in sm("X", "p"):
        for x in ins: emit(x)
    e(f"""s_mov_b32 s{S_KOFF}, s{S_KB}
s_cmp_eq_u32 s{S_N1}, 2
s_cselect_b32 s{S_T0}, 2, 1
s_lshl_b32 s{S_T0}, s{S_T0}, 15
s_add_u32 s{S_KB}, s{S_KB}, s{S_T0}
s_mov_b32 s{S_J}, 0
s_waitcnt vmcnt(0)
s_barrier""")
    ST("sync")
    for it in dma4(f"s_mov_b32 m0, s{S_DB}", V_D0, SRD_K, S_KOFF) + dma4(f"s_add_u32 m0, s{S_DB}, 0x4000", V_D0+1, SRD_K, S_KOFF):
        for x in it: emit(x)
    e(f"s_branch {L('hC')}")
    k.label("loop8")
    body("a", False)
    e(f"s_bitcmp1_b32 s{S_FC}, s{S_J}\ns_cbranch_scc0 {L('loop8')}\ns_branch {L('hC')}")
    k.label("loop16")
    body("b", True)
    e(f"s_bitcmp1_b32 s{S_FC}, s{S_J}\ns_cbranch_scc0 {L('loop16')}")
    k.label("hC")
    e(f"s_cmp_lg_u32 s{S_J}, s{S_N1}\ns_cbranch_scc1 {L('hC1')}")
    D = V_T
    e(f"""v_mov_b32 v{D}, v{V_LB}
s_nop 1
v_permlane32_swap_b32 v{D}, v{V_LB}
s_nop 1
v_add_f32 v{D}, v{D}, v{V_LB}
v_rcp_f32 v{D}, v{D}
s_nop 7""")
    for db in range(4):
        for s in range(2):
            t = V_E + 12 * ((2*db+s) % 2)
            b = 16*db + 8*s
            for i in range(8): e(f"v_accvgpr_read_b32 v{t+i}, a{OY+b+i}")
            for i in range(8): e(f"v_accvgpr_write_b32 a{OY+b+i}, 0")
            for i in range(8): e(f"v_mul_f32 v{t+i}, v{t+i}, v{D}")
            for i in range(4): e(f"v_cvt_pk_bf16_f32 v{t+8+i}, v{t+2*i}, v{t+2*i+1}")
            e(f"buffer_store_dwordx4 {vr(t+8,4)}, v{V_CTX}, {G}, s{S_CTXB} offen offset:{db*1024 + s*512}")
    k.label("hC1")
    e(f"""s_add_u32 s{S_T0}, s{S_J}, 2
s_cmp_eq_u32 s{S_T0}, s{S_N1}
s_cselect_b32 s{S_T0}, s{S_WODD}, 0
s_lshl_b32 s{S_T0}, s{S_T0}, 14
v_add_u32 v{V_KA}, s{S_T0}, v{V_KA}
s_cmp_ge_u32 s{S_J}, 14
s_cselect_b32 s{SRD_K+2}, 0, s{SRD_K+2}
s_cmp_ge_u32 s{S_J}, 15
s_cselect_b32 s{SRD_V+2}, 0, s{SRD_V+2}
s_lshl_b32 s{S_T0}, s{S_N1}, 15
s_add_u32 s{S_T0}, s{S_T0}, s{S_HB}
s_cmp_eq_u32 s{S_J}, s{S_N1M3}
s_cselect_b32 s{S_KB}, s{S_T0}, s{S_KB}
s_sub_u32 s{S_T0}, 32, s{S_N1}
s_add_u32 s{S_T0}, s{S_T0}, s{S_WODD}
s_cmp_eq_u32 s{S_J}, 16
s_cselect_b32 s{S_T0}, s{S_T0}, -64
s_add_u32 s{S_T1}, s{S_N1}, s{S_J}
s_sub_u32 s{S_T1}, s{S_T1}, 2
s_cmp_lt_u32 s{S_J}, 2
s_cselect_b32 s{S_T0}, s{S_T1}, s{S_T0}
s_lshl_b32 s{S_T0}, s{S_T0}, 1
s_sub_u32 s{S_T0}, s{S_T0}, s{S_RY}""")
    def mask_code(S, nm):
        e(f"s_cmp_lt_i32 s{S_T0}, -1\ns_cbranch_scc1 {L(nm + 'r')}")
        e(f"s_cmp_eq_i32 s{S_T0}, -1\ns_cbranch_scc1 {L(nm + 'a')}")
        e(f"s_cmp_eq_i32 s{S_T0}, 0\ns_cbranch_scc1 {L(nm + 'b')}")
        for r in range(32): e(f"v_mov_b32 v{S+r}, v{V_BIG}")
        e(f"s_branch {L(nm + 'r')}")
        k.label(nm + "a")
        for r in range(16):
            e(f"v_cndmask_b32 v{S+16+r}, v{V_BIG}, v{S+16+r}, s[{MASKP[r]}:{MASKP[r]+1}]")
        e(f"s_branch {L(nm + 'r')}")
        k.label(nm + "b")
        for r in range(16):
            e(f"v_cndmask_b32 v{S+r}, v{V_BIG}, v{S+r}, s[{MASKP[r]}:{MASKP[r]+1}]")
            e(f"v_mov_b32 v{S+16+r}, v{V_BIG}")
        k.label(nm + "r")
    mask_code(SY, "mY")
    e(f"s_cmp_eq_u32 s{S_J}, 0\ns_cbranch_scc1 {L('hCf')}\ns_cmp_lg_u32 s{S_J}, s{S_N1}\ns_cbranch_scc1 {L('hC2')}")
    k.label("hCf")
    first_block("Y")
    k.label("hC2")
    e(f"s_cmp_lt_i32 s{S_J}, s{S_N1M3}\ns_cbranch_scc1 {L('loop8')}")
    e(f"s_cmp_lt_u32 s{S_J}, 16\ns_cbranch_scc1 {L('loop16')}")
    ST("tail")
    for i in range(NV1, 16):
        e(f"ds_read_b128 {ar(VF+4*i,4)}, v{V_VA} offset:{vlds(i)}")
    st = sm("Y", "e")
    for w, ins in st[:12]:
        for x in ins: emit(x)
    e("s_waitcnt lgkmcnt(0)")
    weave(pv("X"), {}, st[12:])
    e("s_nop 1")
    for m in pv("Y"): e(m)
    e("s_waitcnt vmcnt(0)\ns_barrier")
    e(f"s_mul_i32 s{S_T0}, s{S_W}, {18*1024}\nv_add_u32 v{V_T}, s{S_T0}, v{V_D0}")
    e(f"v_mov_b32 v{NY+1}, v{V_LY}\ns_nop 7")
    for i in range(16):
        e(f"ds_write_b128 v{V_T}, {ar(OY+4*i,4)} offset:{i*1024}")
    e(f"ds_write_b128 v{V_T}, {vr(NY,4)} offset:{16*1024}")
    e(f"s_xor_b32 s{S_T0}, s{S_W}, 1\ns_mul_i32 s{S_T0}, s{S_T0}, {18*1024}\nv_add_u32 v{V_T}, s{S_T0}, v{V_D0}")
    e("s_waitcnt lgkmcnt(0)\ns_barrier")
    e(f"ds_read_b128 {vr(NY,4)}, v{V_T} offset:{16*1024}")
    for i in range(16):
        e(f"ds_read_b128 {vr(128+4*i,4)}, v{V_T} offset:{i*1024}")
    e("s_waitcnt lgkmcnt(15)")
    A, B, C, D = V_T+1, V_T+2, V_T+3, V_T+4
    e(f"""v_min_f32 v{A}, v{NX}, v{NY}
v_sub_f32 v{B}, v{A}, v{NX}
v_sub_f32 v{C}, v{A}, v{NY}
v_exp_f32 v{B}, v{B}
v_exp_f32 v{C}, v{C}
s_nop 0
v_mul_f32 v{V_LX}, v{V_LX}, v{B}
v_fma_f32 v{V_LX}, v{NY+1}, v{C}, v{V_LX}
v_mov_b32 v{D}, v{V_LX}
s_nop 1
v_permlane32_swap_b32 v{D}, v{V_LX}
s_nop 1
v_add_f32 v{D}, v{D}, v{V_LX}
v_rcp_f32 v{D}, v{D}
s_nop 0
v_mul_f32 v{B}, v{B}, v{D}
v_mul_f32 v{C}, v{C}, v{D}
s_lshl_b32 s{S_CTXB}, s{S_RX}, 18
s_waitcnt lgkmcnt(0)""")
    for db in range(4):
        for s in range(2):
            t = V_E + 12 * ((2*db+s) % 2)
            b = 16*db + 8*s
            for i in range(8): e(f"v_accvgpr_read_b32 v{t+i}, a{OX+b+i}")
            for i in range(8): e(f"v_mul_f32 v{128+b+i}, v{128+b+i}, v{C}")
            for i in range(8): e(f"v_fma_f32 v{t+i}, v{t+i}, v{B}, v{128+b+i}")
            for i in range(4): e(f"v_cvt_pk_bf16_f32 v{t+8+i}, v{t+2*i}, v{t+2*i+1}")
            e(f"buffer_store_dwordx4 {vr(t+8,4)}, v{V_CTX}, {G}, s{S_CTXB} offen offset:{db*1024 + s*512}")
    if Kern.STAMP: e("s_waitcnt vmcnt(0)")
    ST("end")
    k.stamp_flush(SRD_G, LY.STAMP_OFF + 65536 * getattr(gen_main, "idx", 0), 2)
    k.label("end")
    e("s_endpgm")

    k.label("spin")
    e(f"s_mov_b32 s{S_T1}, 0x100000")
    k.label("spinl")
    e(f"""s_sleep 2
global_load_dword v{V_POLL}, v{V_DBG}, s[{P_DBG}:{P_DBG+1}] sc1
s_waitcnt vmcnt(0)
v_readfirstlane_b32 s{S_T0}, v{V_POLL}
s_sub_u32 s{S_T1}, s{S_T1}, 1
s_cmp_eq_u32 s{S_T1}, 0
s_cbranch_scc1 {L('spinr')}
s_cmp_lt_u32 s{S_T0}, 8
s_cbranch_scc1 {L('spinl')}
s_branch {L('spinr')}""")
    k.label("hB")
    e(f"s_add_u32 s{S_T0}, s{S_J}, 1\ns_cmp_lg_u32 s{S_T0}, s{S_N1}\ns_cbranch_scc1 {L('hB1')}")
    e(f"s_xor_b32 s{S_T0}, s{S_W}, 1\ns_lshl_b32 s{S_T0}, s{S_T0}, 13\ns_add_u32 s{S_T0}, s{S_T0}, {QL}\nv_add_u32 v{V_T}, s{S_T0}, v{V_D0}")
    for i in range(8):
        e(f"ds_read_b128 {ar(QY+4*i,4)}, v{V_T} offset:{i*1024}")
    e(f"v_mov_b32 v{V_LB}, v{V_LY}\nv_mov_b32 v{V_LY}, 0")
    for r in range(16): e(f"v_mov_b32 v{NY+r}, 0")
    e(f"""s_lshl_b32 s{S_CTXB}, s{S_RY}, 18
s_xor_b32 s{S_RY}, s{S_RX}, 1
s_lshl_b32 s{S_T0}, s{S_WODD}, 14
v_add_u32 v{V_VA}, s{S_T0}, v{V_VA}
s_waitcnt lgkmcnt(0)""")
    k.label("hB1")
    e(f"s_cmp_lg_u32 s{S_J}, 15\ns_cbranch_scc1 {L('hBr')}")
    e(f"""s_sub_u32 s{S_T0}, 32, s{S_N1}
s_add_u32 s{S_T0}, s{S_T0}, s{S_WODD}
s_lshl_b32 s{S_T0}, s{S_T0}, 1
s_sub_u32 s{S_T0}, s{S_T0}, s{S_RX}""")
    mask_code(SX, "mX")
    e(f"s_branch {L('hBr')}")
    for Z, lab in redo_sites:
        r = regs(Z); S, N, O, Lr = r["S"], r["N"], r["O"], r["L"]
        k.label(lab)
        tile_max(S)
        e(f"v_max_f32 v{V_M}, 0, v{V_M}\nv_sub_f32 v{N}, v{N}, v{V_M}\nv_sub_f32 v{V_T}, 0, v{V_M}\nv_exp_f32 v{V_T}, v{V_T}")
        for i in range(32): e(f"v_sub_f32 v{S+i}, v{S+i}, v{V_M}")
        for i in range(1, 16): e(f"v_mov_b32 v{N+i}, v{N}")
        e(f"v_mul_f32 v{Lr}, v{Lr}, v{V_T}")
        for r0 in range(0, 64, 8):
            for i in range(8): e(f"v_accvgpr_read_b32 v{V_E+i}, a{O+r0+i}")
            for i in range(8): e(f"v_mul_f32 v{V_E+i}, v{V_E+i}, v{V_T}")
            for i in range(8): e(f"v_accvgpr_write_b32 a{O+r0+i}, v{V_E+i}")
        for w, ins in sm_core(Z):
            for x in ins: e(x)
        e(f"s_nop 1\ns_branch {L(lab + 'r')}")
    return k
```

```python
from asmlib import *
import layout as LY
import struct, sys, os
EXP = [a for a in sys.argv if a.startswith('x_')]
DEPTH = 4
PART = 20480
YL = 4 * PART
YROW = 144
CVL = YL + 80 * YROW
CS = 4160; UB = 4 * CS; CH = 21504

def gen_out():
    k = Kern("out_kernel", 256, 256, 102, 256, 448, CVL + 3 * CH)
    e = k.e; L = k.L
    k.stamp_base = 70
    e(f"s_cmp_ge_u32 s2, 256\ns_cbranch_scc1 {L('end')}")
    k.stamp(0)
    e("s_load_dwordx4 s[12:15], s[0:1], 112\ns_load_dwordx2 s[6:7], s[0:1], 0\ns_load_dwordx2 s[8:9], s[0:1], 104\ns_load_dwordx4 s[64:67], s[0:1], 80")
    e("v_lshrrev_b32 v2, 6, v0\nv_and_b32 v1, 63, v0\ns_nop 0\nv_readfirstlane_b32 s44, v2\nv_lshlrev_b32 v4, 4, v1")
    e(f"s_cmp_lt_u32 s44, 3\ns_cbranch_scc1 {L('conv')}\ns_sub_u32 s44, s44, 3\nv_subrev_u32 v0, 192, v0")
    e(f"""s_and_b32 s3, s2, 7
s_lshr_b32 s47, s2, 3
s_lshr_b32 s45, s3, 1
s_lshl_b32 s45, s45, 3
s_and_b32 s48, s47, 7
s_add_u32 s45, s45, s48
s_and_b32 s46, s3, 1
s_lshl_b32 s46, s46, 2
s_lshr_b32 s48, s47, 3
s_add_u32 s46, s46, s48
s_mul_i32 s47, s44, {PART}
s_lshl_b32 s48, s45, 19
s_lshl_b32 s49, s44, 15
s_add_u32 s48, s48, s49
v_add_u32 v5, s48, v4
s_lshl_b32 s48, s46, 7
s_lshl_b32 s49, s44, 5
s_add_u32 s48, s48, s49
s_mul_i32 s48, s48, 5120
v_add_u32 v6, s48, v4
v_add_u32 v7, 0x1000, v6
s_lshl_b32 s48, s46, 9
s_add_u32 s48, s48, {hex(LY.FL_OFF)}
v_min_u32 v8, 39, v1
v_lshlrev_b32 v8, 3, v8
v_add_u32 v8, s48, v8""")
    for i in range(4): e(f"s_mov_b32 s{52+i}, {i*131072}")
    e("s_waitcnt lgkmcnt(0)")
    k.srd(16, 14, 4096 * 1280, LY.WOF_OFF)
    k.srd(20, 14, 16 << 20, LY.CTX_OFF)
    ACC = 16; FR = 96
    def F(T, i): return FR + 36 * (T % DEPTH) + 4 * i
    def loads(T):
        out = [[f"s_mov_b32 s50, {T*5120}"]]
        if T % 4 == 0 and T:
            out.append(["v_add_u32 v5, 0x1000, v5"])
        for i in range(5):
            out.append([("vm", f"buffer_load_dwordx4 {vr(F(T,i),4)}, v{6 if i < 4 else 7}, s[16:19], s50 offen offset:{(i&3)*1024}", T)])
            if i < 4:
                out.append([("vm", f"buffer_load_dwordx4 {vr(F(T,5+i),4)}, v5, s[20:23], s{52+i} offen offset:{(T%4)*1024}", T)])
        return out
    def emit_item(it):
        for x in it:
            if isinstance(x, tuple): k.vmem(x[1], x[2])
            else: e(x)
    for T in range(DEPTH - 1):
        for it in loads(T): emit_item(it)
    k.srd(24, 6, 2048 * 1280)
    k.srd(28, 8, 2048 * 1280)
    k.srd(32, 14, 640 * 4096, LY.YT_OFF)
    k.srd(36, 14, 8192, LY.G_OFF)
    XR, GR = 240, 250
    TP = 28
    YR = None
    for T in range(32):
        k.wait(vmtags=(T,))
        if T == 0: k.stamp(1)
        if T == TP:
            k.stamp(2)
            k.wait(vmtags=("poll",))
            e(f"s_cmp_lg_u32 s44, 0\ns_cbranch_scc1 {L('pok')}")
            e(f"v_and_b32 v10, v10, v11\nv_cmp_ne_u32 vcc, 1, v10\ns_cbranch_vccnz {L('spin')}")
            k.label("pok")
            k.stamp(3)
            e("s_barrier")
            k.stamp(4)
        ms = []
        for tb in range(4):
            for nb in range(5):
                a = ACC + 4 * (tb*5 + nb)
                ms.append(f"v_mfma_f32_16x16x32_bf16 {vr(a,4)}, {vr(F(T,nb),4)}, {vr(F(T,5+tb),4)}, {'0' if T == 0 else vr(a,4)}")
        ld = loads(T + DEPTH - 1) if T + DEPTH - 1 < 32 else []
        if T == TP - 3:
            ld.append([("vm", "global_load_dwordx2 v[10:11], v8, s[14:15] sc1", "poll")])
        if T == 10:
            ld.append([f"""s_lshl_b32 s48, s45, 6
s_lshl_b32 s49, s44, 4
s_add_u32 s48, s48, s49
v_and_b32 v12, 15, v1
v_add_u32 v12, s48, v12
v_lshlrev_b32 v13, 2, v12
v_mul_u32_u24 v12, 0x500, v12
v_lshrrev_b32 v14, 4, v1
v_lshlrev_b32 v14, 3, v14
s_mul_i32 s49, s46, 160
v_add3_u32 v12, v12, v14, s49"""])
            for nb in range(5):
                ld.append([("vm", f"buffer_load_dwordx2 {vr(XR+2*nb,2)}, v12, s[24:27], 0 offen offset:{nb*32}", "x")])
            ld.append([("vm", f"buffer_load_dword v{GR}, v13, s[36:39], 0 offen", "x")])
        if T == 11:
            ld.append([f"""v_lshrrev_b32 v14, 3, v0
v_and_b32 v15, 7, v0
s_mul_i32 s49, s46, 80
v_add_u32 v13, s49, v14
v_lshlrev_b32 v13, 12, v13
v_lshlrev_b32 v15, 4, v15
s_lshl_b32 s49, s45, 7
v_add3_u32 v13, v13, v15, s49
v_mul_u32_u24 v14, {YROW}, v14
v_add_u32 v14, v14, v15
v_add_u32 v14, {YL}, v14
s_mov_b32 s56, 0x20000
s_mov_b32 s57, 0x40000"""])
        if T == 32 - DEPTH + 1:
            YR = F(T - 1, 0)
            for i in range(3):
                ld.append([("vm", f"buffer_load_dwordx4 {vr(YR+4*i,4)}, v13, s[32:35], {['0','s56','s57'][i]} offen sc1", "y")])
        if T == 31:
            ld.append([("w", "y")])
        g2 = spread(20, ld, 0 if T < 31 else 8, 20) if ld else {}
        for i, m in enumerate(ms):
            e(m)
            for it in g2.get(i, []):
                if it[0] == ("w", "y"):
                    k.wait(vmtags=("y",))
                    e(f"ds_write_b128 v14, {vr(YR,4)}\nds_write_b128 v14, {vr(YR+4,4)} offset:{32*YROW}")
                    e(f"v_cmp_gt_u32 vcc, 128, v0\ns_and_saveexec_b64 s[40:41], vcc\nds_write_b128 v14, {vr(YR+8,4)} offset:{64*YROW}\ns_mov_b64 exec, s[40:41]")
                    e("v_add_u32 v15, s47, v4")
                else:
                    emit_item(it)
    k.stamp(5)
    for b in range(20):
        if b == 12: e("s_nop 3")
        e(f"ds_write_b128 v15, {vr(ACC+4*b,4)} offset:{b*1024}")
    e(f"""s_mul_i32 s48, s44, 5120
v_add_u32 v15, s48, v4
v_add_u32 v13, {2*PART}, v15
v_lshrrev_b32 v5, 2, v1
v_mul_u32_u24 v5, {YROW}, v5
v_and_b32 v6, 3, v1
v_lshlrev_b32 v6, 3, v6
s_lshl_b32 s48, s44, 5
s_add_u32 s48, s48, {YL}
v_add3_u32 v5, v5, v6, s48
s_mov_b32 s63, 0xffff0000
v_sub_f32 v{GR+1}, 1.0, v{GR}
v_cvt_pk_bf16_f32 v{GR+1}, v{GR+1}, v{GR+1}
v_lshlrev_b32 v{GR+1}, 16, v{GR+1}""")
    e("s_waitcnt lgkmcnt(0)\ns_barrier")
    YY = 180
    for nb in range(5):
        e(f"ds_read_b64_tr_b16 {vr(YY+2*nb,2)}, v5 offset:{nb*16*YROW}")
    for nb in range(5):
        for p in range(4):
            e(f"ds_read_b128 {vr(96+16*nb+4*p,4)}, v{15 if p < 2 else 13} offset:{(p&1)*PART + nb*1024}")
    def rnd(a, b, pk):
        e(f"v_cvt_pk_bf16_f32 v{pk}, v{a}, v{b}\nv_lshlrev_b32 v{a}, 16, v{pk}\nv_and_b32 v{b}, s63, v{pk}")
    e("s_waitcnt lgkmcnt(15)")
    for nb in range(5):
        t = 16 + 12*nb
        for d in range(2):
            e(f"v_lshlrev_b32 v{t+2*d}, 16, v{XR+2*nb+d}\nv_and_b32 v{t+2*d+1}, s63, v{XR+2*nb+d}")
            e(f"v_lshlrev_b32 v{t+4+2*d}, 16, v{YY+2*nb+d}\nv_and_b32 v{t+4+2*d+1}, s63, v{YY+2*nb+d}")
        for i in range(4): e(f"v_mul_f32 v{t+i}, v{t+i}, v{t+4+i}")
        rnd(t, t+1, t+8); rnd(t+2, t+3, t+9)
        for i in range(4): e(f"v_mul_f32 v{t+i}, v{GR+1}, v{t+i}")
        rnd(t, t+1, t+8); rnd(t+2, t+3, t+9)
    e("s_waitcnt lgkmcnt(0)")
    for nb in range(5):
        p = 96 + 16*nb; t = 16 + 12*nb
        for i in range(4):
            e(f"v_add_f32 v{p+i}, v{p+i}, v{p+4+i}\nv_add_f32 v{p+8+i}, v{p+8+i}, v{p+12+i}")
        for i in range(4):
            e(f"v_add_f32 v{p+i}, v{p+i}, v{p+8+i}")
        rnd(p, p+1, t+8); rnd(p+2, p+3, t+9)
        for i in range(4): e(f"v_mul_f32 v{p+i}, v{GR}, v{p+i}")
        rnd(p, p+1, t+8); rnd(p+2, p+3, t+9)
        for i in range(4): e(f"v_add_f32 v{t+i}, v{t+i}, v{p+i}")
        e(f"v_cvt_pk_bf16_f32 v{t+10}, v{t}, v{t+1}\nv_cvt_pk_bf16_f32 v{t+11}, v{t+2}, v{t+3}")
        e(f"buffer_store_dwordx2 {vr(t+10,2)}, v12, s[28:31], 0 offen offset:{nb*32}")
    if Kern.STAMP: e("s_waitcnt vmcnt(0)")
    k.stamp(6)
    k.stamp_flush(14, LY.STAMP_OFF + 65536 * getattr(gen_out, "idx", 0), 2)
    k.label("end")
    e("s_endpgm")
    k.label("spin")
    e("s_mov_b32 s49, 0x100000")
    k.label("spinl")
    e(f"""s_sleep 16
global_load_dwordx2 v[10:11], v8, s[14:15] sc1
s_waitcnt vmcnt(0)
v_and_b32 v10, v10, v11
v_cmp_ne_u32 vcc, 1, v10
s_sub_u32 s49, s49, 1
s_cmp_eq_u32 s49, 0
s_cbranch_scc1 {L('pok')}
s_cbranch_vccnz {L('spinl')}
s_branch {L('pok')}""")

    k.label("conv")
    k.vm = []; k.lg = []
    e(f"""s_and_b32 s3, s2, 1
s_add_u32 s45, s44, s3
s_cmp_ge_u32 s45, 3
s_cbranch_scc1 {L('end')}
s_lshr_b32 s46, s2, 1
s_mul_i32 s46, s46, 5
s_mul_i32 s3, s3, 3
s_add_u32 s46, s46, s3
s_add_u32 s46, s46, s44
s_mul_i32 s47, s44, {CH}
s_add_u32 s47, s47, {CVL}
v_mov_b32 v7, 0x7ffffff0
s_lshl_b32 s49, s46, 12
s_waitcnt lgkmcnt(0)""")
    k.srd(24, 64, 640 * 4096)
    k.srd(20, 14, 640 * 4096, LY.UT_OFF)
    e("s_lshr_b32 s3, s46, 1\ns_lshl_b32 s3, s3, 2\ns_add_u32 s66, s66, s3\ns_addc_u32 s67, s67, 0\ns_load_dword s60, s[66:67], 0")
    for s in range(4):
        e(f"s_add_u32 m0, s47, {s*CS + 32}\ns_add_u32 s50, s49, {2*s}")
        for i in range(4):
            e(f"buffer_load_dwordx4 v4, s[24:27], s50 offen offset:{i*1024} lds")
    e(f"s_add_u32 m0, s47, {UB + 512}\ns_nop 0")
    for i in range(4):
        e(f"buffer_load_dwordx4 v4, s[20:23], s49 offen offset:{i*1024} lds")
    e(f"""v_lshrrev_b32 v8, 4, v1
v_and_b32 v9, 15, v1
v_add_u32 v10, v8, v9
v_subrev_u32 v10, 16, v10
v_cmp_gt_i32 vcc, 0, v10
v_lshlrev_b32 v10, 1, v10
v_add_u32 v10, s49, v10
v_cndmask_b32 v10, v10, v7, vcc
buffer_load_ushort v16, v10, s[24:27], 0 offen
v_mul_u32_u24 v17, {CS}, v8
v_lshlrev_b32 v13, 1, v9
v_add_u32 v17, v17, v13
v_add_u32 v17, s47, v17
v_mov_b32 v14, 0
v_mov_b32 v15, 0
v_lshlrev_b32 v13, 3, v1
v_add_u32 v13, s47, v13
ds_write_b64 v13, v[14:15] offset:{UB}
s_waitcnt lgkmcnt(0)""")
    k.srd(28, 14, 640 * 4096, LY.YT_OFF)
    e("""s_and_b32 s3, s46, 1
s_cmp_eq_u32 s3, 0
s_cselect_b32 s3, 16, 0
s_lshl_b32 s62, s60, s3
s_and_b32 s62, s62, 0xffff0000
s_mov_b32 s63, 0xffff0000""")
    e(f"""v_lshrrev_b32 v10, 1, v8
v_sub_u32 v10, v9, v10
v_lshlrev_b32 v10, 5, v10
v_and_b32 v11, 1, v8
v_lshlrev_b32 v12, 4, v11
v_add_u32 v10, v10, v12
v_add_u32 v10, s47, v10
v_add_u32 v10, {UB + 512 - 448}, v10
v_add_u32 v12, 1, v9
v_and_b32 v13, 3, v12
v_sub_u32 v12, v12, v13
v_lshrrev_b32 v14, 1, v8
v_lshlrev_b32 v14, 4, v14
v_add_u32 v12, v12, v14
v_lshlrev_b32 v14, 3, v11
v_sub_u32 v12, v12, v14
v_add_u32 v12, 8, v12
v_lshlrev_b32 v12, 1, v12
v_mul_u32_u24 v13, {CS}, v13
v_add_u32 v12, v12, v13
v_add_u32 v12, s47, v12
v_lshlrev_b32 v13, 5, v9
v_lshrrev_b32 v14, 1, v8
v_lshlrev_b32 v14, 4, v14
v_add_u32 v13, v13, v14
v_xor_b32 v14, 1, v11
v_lshlrev_b32 v14, 3, v14
v_add_u32 v13, v13, v14
v_add_u32 v13, s47, v13
v_lshlrev_b32 v14, 5, v9
v_lshlrev_b32 v15, 3, v8
v_add_u32 v14, v14, v15
v_add_u32 v14, s47, v14""")
    e("s_waitcnt vmcnt(0)\nds_write_b16 v17, v16\ns_waitcnt lgkmcnt(0)")
    k.stamp(1)
    CACC, AF, UE, BF = 32, 64, 96, 128
    NA = 8; PF = 3
    steps = [(mu, [n for n in range(4, 8) if 8*(n+1) > mu], 1) for mu in range(64)] + [(mu, [n for n in range(4) if 8*(n+1) > mu], 0) for mu in range(32)]
    loaded = set()
    def fetch(si):
        if si >= len(steps): return
        mu, ns, ps = steps[si]
        r = AF + 4 * (si % NA)
        k.lds_op(f"ds_read_b64 {vr(r,2)}, v12 offset:{64*mu}", ("A", si))
        k.lds_op(f"ds_read_b64 {vr(r+2,2)}, v12 offset:{64*mu + 8}", ("A", si))
        for n in ns:
            d = 8*n - mu + 7
            if (ps, d) not in loaded:
                loaded.add((ps, d))
                k.lds_op(f"ds_read_b128 {vr(bslot(ps, d),4)}, v10 offset:{64*d}", ("B", ps, d))
    def bslot(ps, d): return BF + 4 * (d % 32)
    for si in range(PF): fetch(si)
    for si, (mu, ns, ps) in enumerate(steps):
        k.wait(lgtags=[("A", si)] + [("B", ps, 8*n - mu + 7) for n in ns])
        first = True
        for n in ns:
            d = 8*n - mu + 7
            c = "0" if mu == 0 else vr(CACC+4*n, 4)
            e(f"v_mfma_f32_16x16x32_bf16 {vr(CACC+4*n,4)}, {vr(AF+4*(si%NA),4)}, {vr(bslot(ps,d),4)}, {c}")
            if first:
                fetch(si + PF); first = False
        if si == 80:
            for n in range(8):
                k.lds_op(f"ds_read_b64 {vr(UE+2*n,2)}, v13 offset:{UB + 512 + n*512}", "U")
    e("s_nop 7\ns_waitcnt lgkmcnt(0)")
    k.stamp(2)
    for n in range(8):
        a = CACC + 4*n; u = UE + 2*n; t = 160 + 8 * (n % 4)
        e(f"""v_and_b32 v{t}, s63, v{u+1}
v_lshlrev_b32 v{t+1}, 16, v{u+1}
v_and_b32 v{t+2}, s63, v{u}
v_lshlrev_b32 v{t+3}, 16, v{u}""")
        for i in range(4): e(f"v_mul_f32 v{t+i}, s62, v{t+i}")
        rnd(t, t+1, t+4); rnd(t+2, t+3, t+5)
        rnd(a, a+1, t+4); rnd(a+2, a+3, t+5)
        for i in range(4): e(f"v_add_f32 v{t+i}, v{t+i}, v{a+i}")
        e(f"v_cvt_pk_bf16_f32 v{t+6}, v{t}, v{t+1}\nv_cvt_pk_bf16_f32 v{t+7}, v{t+2}, v{t+3}")
        e(f"ds_write_b64 v14, {vr(t+6,2)} offset:{n*512}")
    e("v_add_u32 v15, s47, v4\ns_waitcnt lgkmcnt(0)")
    for i in range(4):
        e(f"ds_read_b128 {vr(64+4*i,4)}, v15 offset:{i*1024}")
    for i in range(4):
        e(f"s_waitcnt lgkmcnt({3-i})\nbuffer_store_dwordx4 {vr(64+4*i,4)}, v4, s[28:31], s49 offen offset:{i*1024} sc1")
    e(f"""s_mul_i32 s3, s46, 0x334
s_lshr_b32 s3, s3, 16
s_mul_i32 s3, s3, 48
s_add_u32 s3, s3, s46
s_lshl_b32 s3, s3, 2
s_add_u32 s3, s3, {hex(LY.FL_OFF)}
v_mov_b32 v2, s3
v_mov_b32 v3, 1
s_waitcnt vmcnt(0)
s_mov_b64 exec, 1
global_store_dword v2, v3, s[14:15] sc1""")
    if Kern.STAMP:
        k.stamp(3)
        e("s_waitcnt vmcnt(0)")
        k.stamp(4); k.stamp(5); k.stamp(6)
        e("s_mov_b64 exec, -1")
        k.stamp_flush(14, LY.STAMP_OFF + 65536 * 2, 2)
    e("s_endpgm")
    return k
assert all((c * 0x334) >> 16 == c // 80 for c in range(640))
```

```python
QF_OFF = 0
KVF_OFF = 16 << 20
CTX_OFF = 48 << 20
UT_OFF = 64 << 20
YT_OFF = 68 << 20
G_OFF = 72 << 20
FL_OFF = (72 << 20) + 65536
WOF_OFF = 74 << 20
STAMP_OFF = 73 << 20
WS_USED = 80 << 20
QSCALE = 1.4426950408889634 / (128 ** 0.5)

def dslot_map():
    m = {}
    for ks in range(8):
        blk, s = ks >> 1, ks & 1
        for hi in range(2):
            g = 2 * s + hi
            for j in range(8):
                m[(ks, hi, j)] = 32 * blk + (4 * g + j if j < 4 else 16 + 4 * g + j - 4)
    return m

def row2key(r):
    return (r & 7) | ((r & 8) << 1) | ((r & 16) >> 1)

def check(I, ws, out, torch, np, opts):
    dev = "cuda"
    def tobf(a):
        return torch.from_numpy(a.view(np.int16).copy()).view(torch.bfloat16).float().to(dev)
    def rep(name, got, exp):
        d = (got - exp)
        bad = (~torch.isfinite(got)).sum().item()
        print(f"{name}: rel_l2 {(d.norm() / exp.norm()).item():.3e} maxabs {d.abs().max().item():.3e} max|exp| {exp.abs().max().item():.3e} nonfinite {bad}")
    x = I["A_x"][0].float(); c = I["A_c_kv"][0].float()
    q = torch.einsum("qm,mhd->hqd", x, I["A_w_q"].float())
    k = torch.einsum("qm,mhd->hqd", c, I["A_w_uk"].float())
    v = torch.einsum("qm,mhd->hqd", c, I["A_w_uv"].float())
    dm = dslot_map()
    didx = torch.tensor([[[dm[(ks, hi, j)] for j in range(8)] for hi in range(2)] for ks in range(8)], device=dev)
    qf = tobf(ws[QF_OFF:QF_OFF + (16 << 20)]).view(32, 64, 8, 2, 32, 8)
    qe = (q * QSCALE).view(32, 64, 32, 128)[:, :, :, didx]
    if "noq" not in opts:
        rep("Q", qf, qe.permute(0, 1, 3, 4, 2, 5))
    kv = tobf(ws[KVF_OFF:KVF_OFF + (32 << 20)]).view(32, 32, 2, 8192)
    kf = kv[:, :, 0].reshape(32, 32, 2, 8, 2, 32, 8)
    r2k = torch.tensor([row2key(r) for r in range(32)], device=dev)
    ke = k.view(32, 32, 2, 32, 128)[:, :, :, r2k][..., didx]
    rep("K", kf, ke.permute(0, 1, 2, 4, 5, 3, 6))
    vf = kv[:, :, 1].reshape(32, 32, 2, 2, 4, 2, 32, 8)
    kidx = torch.tensor([[[(4 * (2 * s + hi) + j if j < 4 else 16 + 4 * (2 * s + hi) + j - 4) for j in range(8)] for hi in range(2)] for s in range(2)], device=dev)
    ve = v.view(32, 32, 2, 32, 4, 32)[:, :, :, kidx]
    rep("V", vf, ve.permute(0, 1, 2, 3, 6, 4, 7, 5))
    qb = q.bfloat16().float(); kb = k.bfloat16().float(); vb = v.bfloat16().float()
    if "spike" in opts:
        sc = torch.einsum("hqd,hkd->hqk", (q * QSCALE).bfloat16().float(), kb) * 0.6931471805599453
    else:
        sc = torch.einsum("hqd,hkd->hqk", qb, kb) * (128 ** -0.5)
    mask = torch.tril(torch.ones(2048, 2048, dtype=torch.bool, device=dev))
    sc = torch.where(mask[None], sc, torch.tensor(-1e9, device=dev))
    p = torch.softmax(sc, dim=-1)
    ctx = torch.einsum("hqk,hkd->hqd", p, vb)
    del sc, p
    cf = tobf(ws[CTX_OFF:CTX_OFF + (16 << 20)]).view(128, 32, 4, 4, 16, 8)
    cidx = torch.tensor([[16 * (g >> 1) + 4 * (g & 1) + (j if j < 4 else 8 + j - 4) for j in range(8)] for g in range(4)], device=dev)
    ce = ctx.view(32, 128, 16, 4, 32)[..., cidx]
    rep("CTX", cf, ce.permute(1, 0, 3, 4, 2, 5))
    wf = tobf(ws[WOF_OFF:WOF_OFF + 4096 * 1280]).view(8, 128, 5, 4, 16, 8)
    we = I["A_w_o"].float().view(128, 32, 8, 5, 16)[:, cidx]
    rep("WOF", wf, we.permute(3, 0, 4, 1, 5, 2))
    a = torch.einsum("hqd,hdm->qm", ctx.bfloat16().float(), I["A_w_o"].float())
    kk = I["B_k"][0]; vv = I["B_v"][0]; sk = I["B_shift_k"]
    kp = torch.nn.functional.pad(kk, (0, 0, 3, 0))
    ksh = torch.zeros_like(kk)
    for t in range(4):
        ksh = ksh + kp[t:t + 2048] * sk[:, 3 - t][None, :]
    u = (ksh * vv)
    uf = torch.fft.rfft(torch.nn.functional.pad(u.float().T.double(), (0, 2048)))
    hf = torch.fft.rfft(torch.nn.functional.pad(I["B_ssm_k"].double(), (0, 2048)))
    y = torch.fft.irfft(uf * hf, n=4096)[:, :2048].float().bfloat16()
    y2 = y + u.T * I["B_ssm_D"][:, None]
    ut = tobf(ws[UT_OFF:UT_OFF + 640 * 2048 * 2]).view(640, 256, 8).flip(-1).reshape(640, 2048)
    rep("UT", ut, u.float().T)
    yt = tobf(ws[YT_OFF:YT_OFF + 640 * 2048 * 2]).view(640, 2048)
    rep("YT", yt, y2.float())
    g = torch.sigmoid((I["A_x"][0] * I["gate_w"]).float().sum(-1).bfloat16())
    gg = torch.from_numpy(ws[G_OFF:G_OFF + 8192].view(np.float32).copy()).to(dev)
    rep("G", gg, g.float())
    b = I["A_x"][0] * y2.T
    o = g[:, None] * a.bfloat16() + (1 - g[:, None]) * b
    rep("OUT", out.to(dev), o.float())
```

```python
from asmlib import *
import layout as LY
import struct
def f32bits(x):
    return "0x%08x" % struct.unpack("<I", struct.pack("<f", x))[0]

BIG = "0x7ffffff0"

def u_stream(R, S_WG, S_W, V_LANE, srd_k, srd_v, srd_sw, srd_ut, S_M, st0, st1):
    a_main, a_halo, a_w, a_out = R, R+1, R+2, R+3
    t0, t1, t2 = R+4, R+5, R+6
    KR, VR, WR = R+8, R+30, R+46
    W, KU, U = R+54, R+62, R+84
    L = []
    def i(s): L.append([s])
    i(f"v_cmp_le_u32 vcc, 20, v{V_LANE}")
    i(f"s_lshr_b32 s{st0}, s{S_WG}, 3")
    i(f"s_lshl_b32 s{st0}, s{st0}, 2")
    i(f"v_cndmask_b32 v{t0}, 0, 1, vcc")
    i(f"s_add_u32 s{st0}, s{st0}, s{S_W}")
    i(f"s_lshl_b32 s{st0}, s{st0}, 4")
    i(f"v_mul_u32_u24 v{t1}, 20, v{t0}")
    i(f"v_sub_u32 v{t1}, v{V_LANE}, v{t1}")
    i(f"v_lshlrev_b32 v{t0}, 3, v{t0}")
    i(f"v_add_u32 v{t0}, s{st0}, v{t0}")
    i(f"s_and_b32 s{st1}, s{S_WG}, 7")
    i(f"s_mul_i32 s{st1}, s{st1}, 80")
    i(f"v_lshlrev_b32 v{t1}, 2, v{t1}")
    i(f"v_add_u32 v{t1}, s{st1}, v{t1}")
    i(f"v_mul_u32_u24 v{a_main}, 0x500, v{t0}")
    i(f"v_lshl_add_u32 v{a_main}, v{t1}, 1, v{a_main}")
    i(f"v_subrev_u32 v{a_halo}, 0xf00, v{a_main}")
    i(f"v_cmp_eq_u32 vcc, 0, v{t0}")
    i(f"v_mov_b32 v{t2}, {BIG}")
    i(f"v_lshlrev_b32 v{a_w}, 3, v{t1}")
    i(f"v_cndmask_b32 v{a_halo}, v{a_halo}, v{t2}, vcc")
    i(f"v_lshlrev_b32 v{a_out}, 12, v{t1}")
    i(f"v_cmp_le_u32 vcc, 40, v{V_LANE}")
    i(f"v_lshl_add_u32 v{a_out}, v{t0}, 1, v{a_out}")
    i(f"s_mov_b32 s{st0}, 5120")
    for a in (a_main, a_halo, a_w, a_out):
        i(f"v_cndmask_b32 v{a}, v{a}, v{t2}, vcc")
    i(f"s_mov_b32 s{st1}, 8192")
    def vm(s, tag): L.append([("vm", s, tag)])
    vm(f"buffer_load_dwordx4 {vr(WR,4)}, v{a_w}, s[{srd_sw}:{srd_sw+3}], 0 offen", "u")
    vm(f"buffer_load_dwordx4 {vr(WR+4,4)}, v{a_w}, s[{srd_sw}:{srd_sw+3}], 0 offen offset:16", "u")
    for r in range(3):
        vm(f"buffer_load_dwordx2 {vr(KR+2*r,2)}, v{a_halo}, s[{srd_k}:{srd_k+3}], 0 offen offset:{r*1280}", "u")
    for r in range(8):
        so = "0" if r < 4 else f"s{st0}"
        vm(f"buffer_load_dwordx2 {vr(KR+6+2*r,2)}, v{a_main}, s[{srd_k}:{srd_k+3}], {so} offen offset:{(r&3)*1280}", "u")
        vm(f"buffer_load_dwordx2 {vr(VR+2*r,2)}, v{a_main}, s[{srd_v}:{srd_v+3}], {so} offen offset:{(r&3)*1280}", "u")
    loads = L; L = []
    L.append([("wait", "u")])
    i(f"v_add_u32 v{a_halo}, 0x1000, v{a_out}")
    for d in range(2):
        for cc in range(2):
            c = 2*d + cc
            for j in range(4):
                src = WR + 2*c + (j >> 1)
                i(f"v_and_b32 v{W+4*cc+j}, s{S_M}, v{src}" if j & 1 else f"v_lshlrev_b32 v{W+4*cc+j}, 16, v{src}")
        for r in range(11):
            i(f"v_lshlrev_b32 v{KU+r}, 16, v{KR+2*r+d}")
            i(f"v_and_b32 v{KU+11+r}, s{S_M}, v{KR+2*r+d}")
        for cc in range(2):
            c = 2*d + cc
            for sp in range(4):
                for q, s in enumerate((7-2*sp, 6-2*sp)):
                    t = U + 4 + 2*q
                    i(f"v_mul_f32 v{t}, v{W+4*cc+3}, v{KU+11*cc+s}")
                    i(f"v_and_b32 v{t+1}, s{S_M}, v{VR+2*s+d}" if cc else f"v_lshlrev_b32 v{t+1}, 16, v{VR+2*s+d}")
                    for tt in range(1, 4):
                        i(f"v_fmac_f32 v{t}, v{W+4*cc+3-tt}, v{KU+11*cc+s+tt}")
                    i(f"v_mul_f32 v{t}, v{t}, v{t+1}")
                i(f"v_cvt_pk_bf16_f32 v{U+sp if cc == 0 else U+8+sp}, v{U+4}, v{U+6}")
            vm(f"buffer_store_dwordx4 {vr(U if cc == 0 else U+8,4)}, v{a_out if cc == 0 else a_halo}, s[{srd_ut}:{srd_ut+3}], {'0' if d == 0 else 's%d' % st1} offen", "st")
    return loads, L

def gate_stream(R, S_WG, S_W, V_LANE, srd_x, srd_gw, srd_g, S_M, st0):
    L = []
    def i(s): L.append([s])
    def vm(s, tag): L.append([("vm", s, tag)])
    a, ao = R, R+1
    GW, X, GU, A, T = R+2, R+7, R+17, R+28, R+30
    i(f"s_lshl_b32 s{st0}, s{S_WG}, 2")
    i(f"s_add_u32 s{st0}, s{st0}, s{S_W}")
    i(f"v_lshlrev_b32 v{a}, 2, v{V_LANE}")
    i(f"v_mov_b32 v{ao}, s{st0}")
    i(f"v_cmp_eq_u32 vcc, 63, v{V_LANE}")
    i(f"s_mul_i32 s{st0}, s{st0}, 2560")
    i(f"v_lshlrev_b32 v{ao}, 3, v{ao}")
    i(f"v_mov_b32 v{T}, {BIG}")
    i(f"v_cndmask_b32 v{ao}, v{T}, v{ao}, vcc")
    for j in range(5):
        vm(f"buffer_load_dword v{GW+j}, v{a}, s[{srd_gw}:{srd_gw+3}], 0 offen offset:{256*j}", "g")
    for r in range(2):
        for j in range(5):
            vm(f"buffer_load_dword v{X+5*r+j}, v{a}, s[{srd_x}:{srd_x+3}], s{st0} offen offset:{r*1280 + 256*j}", "g")
    loads = L; L = []
    L.append([("wait", "g")])
    def rnd(x, y, pk):
        i(f"v_cvt_pk_bf16_f32 v{pk}, v{x}, v{y}")
        i(f"v_lshlrev_b32 v{x}, 16, v{pk}")
        i(f"v_and_b32 v{y}, s{S_M}, v{pk}")
    for j in range(5):
        i(f"v_lshlrev_b32 v{GU+2*j}, 16, v{GW+j}")
        i(f"v_and_b32 v{GU+2*j+1}, s{S_M}, v{GW+j}")
    for r in range(2):
        for j in range(5):
            x = X + 5*r + j
            i(f"v_lshlrev_b32 v{T}, 16, v{x}")
            i(f"v_and_b32 v{T+1}, s{S_M}, v{x}")
            i(f"v_mul_f32 v{T}, v{T}, v{GU+2*j}")
            i(f"v_mul_f32 v{T+1}, v{T+1}, v{GU+2*j+1}")
            rnd(T, T+1, T+2)
            if j == 0:
                i(f"v_add_f32 v{A+r}, v{T}, v{T+1}")
            else:
                i(f"v_add_f32 v{A+r}, v{A+r}, v{T}")
                i(f"v_add_f32 v{A+r}, v{A+r}, v{T+1}")
    for ctl in ("row_shr:1", "row_shr:2", "row_shr:4", "row_shr:8", "row_bcast:15 row_mask:0xa", "row_bcast:31 row_mask:0xc"):
        L.append(["s_nop 1"] + [f"v_add_f32_dpp v{A+r}, v{A+r}, v{A+r} {ctl}" + (" bound_ctrl:0" if "shr" in ctl else "") for r in range(2)])
    rnd(A, A+1, T)
    for r in range(2): i(f"v_mul_f32 v{A+r}, {f32bits(-1.4426950408889634)}, v{A+r}")
    for r in range(2): i(f"v_exp_f32 v{A+r}, v{A+r}")
    i("s_nop 0")
    for r in range(2): i(f"v_add_f32 v{A+r}, 1.0, v{A+r}")
    for r in range(2): i(f"v_rcp_f32 v{A+r}, v{A+r}")
    i("s_nop 0")
    rnd(A, A+1, T)
    vm(f"buffer_store_dwordx2 {vr(A,2)}, v{ao}, s[{srd_g}:{srd_g+3}], 0 offen", "st")
    return loads, L
```

```python
from asmlib import *
import layout as LY
import prep_streams as PS
import struct, sys, os
EXP = [a for a in sys.argv if a.startswith('x_')]
SMAP = dict(x.split("=") for x in os.environ.get("SMAP", "start=0,first=1,T16=2,attn=3,tail=4,end=5").split(","))

def f32bits(x):
    return "0x%08x" % struct.unpack("<I", struct.pack("<f", x))[0]

P_X, P_C, P_WQ, P_WK, P_WV, P_WO = 4, 6, 8, 10, 12, 14
SRD_X, SRD_C, SRD_WQ, SRD_WKV, SRD_T, SRD_G = 16, 20, 24, 28, 36, 40
S_CA, S_CB, S_XA, S_XB = 32, 33, 34, 35
S_W, S_W4K, S_H, S_P = 44, 45, 46, 47
S_WBK, S_WBQ, S_M, S_G0 = 48, 49, 50, 51
P_K, P_V, P_SH = 52, 54, 56
S_T0, S_T1, S_T2 = 58, 59, 3
S_SO = 60
S_SCALE, S_DS = 64, 65
P_GW, P_DBG, P_WS = 68, 72, 74
S_PFI, S_XSH = 76, 77
STAMPB = 78
TK, TV, TW, TS = 4, 8, 12, 20
SRD_K, SRD_V = 28, 32
S_N1, S_J, S_KA, S_KB, S_KOFF, S_VOFF, S_DB = 48, 49, 51, 52, 53, 54, 55
S_RX, S_RY, S_KX, S_WODD, S_HB = 56, 57, 66, 67, 68
S_FC, S_FB, S_N1M3, S_CTXB = 69, 70, 71, 76
S_N1M2, S_KX2 = 74, 75
MASKP = [4, 6, 8, 10, 12, 14, 16, 18, 20, 22, 24, 26, 36, 38, 60, 62]
OX, OY, QX, QY, VF = 0, 64, 128, 160, 192
KF, SX, SY, PX, PY, NX, NY = 192, 128, 160, 96, 112, 64, 80
V_D0 = 4
V_KA, V_VA, V_CTX, V_NP = 8, 9, 10, 11
V_LX, V_LY, V_LB, V_BIG = 12, 13, 14, 15
V_LT, V_M, V_T, V_X, V_E = 16, 18, 20, 24, 32
V_DBG, V_POLL = 2, 3
QL, QLB = 131072, 98304
THR = f32bits(65536.0)
WSB = 80 << 20

NTQ = " nt" if "x_ntq" in EXP else ""
NTK = " nt" if "x_ntk" in EXP else ""
NTC = " nt" if "x_ntc" in EXP else ""
def gen_main():
    k = Kern("main_kernel", 512, 256, 102, 256, 256, 163840)
    e = k.e; L = k.L
    k.stamp_base = STAMPB
    G = f"s[{SRD_G}:{SRD_G+3}]"
    def ST(name):
        if name in SMAP: k.stamp(int(SMAP[name]))
    e(f"s_cmp_ge_u32 s2, 256\ns_cbranch_scc1 {L('end')}")
    ST("start")
    e(f"s_getpc_b64 s[{SRD_T}:{SRD_T+1}]")
    k.label("pc")
    e(f"""s_sub_u32 s{SRD_T}, s{SRD_T}, {L('pc')}-main_kernel
s_subb_u32 s{SRD_T+1}, s{SRD_T+1}, 0
s_mov_b32 s{SRD_T+2}, all_code_end-main_kernel
s_mov_b32 s{SRD_T+3}, 0x00020000
s_lshr_b32 s{S_T0}, s2, 3
s_lshl_b32 s{S_T0}, s{S_T0}, 12
v_lshlrev_b32 v25, 4, v0""")
    k.vmem(f"buffer_load_dwordx4 v[124:127], v25, s[{SRD_T}:{SRD_T+3}], s{S_T0} offen", "t")
    e(f"""s_load_dwordx8 s[4:11], s[0:1], 0
s_load_dwordx4 s[12:15], s[0:1], 32
s_load_dwordx4 s[52:55], s[0:1], 56
s_load_dwordx2 s[56:57], s[0:1], 72
s_load_dwordx8 s[68:75], s[0:1], 96
v_lshrrev_b32 v2, 6, v0
v_and_b32 v1, 63, v0
s_and_b32 s{S_H}, s2, 7
v_readfirstlane_b32 s{S_W}, v2
s_lshr_b32 s{S_T0}, s2, 6
s_lshl_b32 s{S_T0}, s{S_T0}, 3
s_add_u32 s{S_H}, s{S_H}, s{S_T0}
s_lshr_b32 s{S_P}, s2, 3
s_and_b32 s{S_P}, s{S_P}, 7
s_lshl_b32 s{S_W4K}, s{S_W}, 12
s_sub_u32 s{S_T0}, 15, s{S_P}
s_lshl_b32 s{S_CA}, s{S_T0}, 17
s_lshl_b32 s{S_CB}, s{S_P}, 17
s_mul_i32 s{S_XA}, s{S_T0}, {128*1280}
s_mul_i32 s{S_XB}, s{S_P}, {128*1280}
s_and_b32 s{S_WBK}, s{S_W}, 1
s_lshl_b32 s{S_WBK}, s{S_WBK}, 17
s_lshl_b32 s{S_WBQ}, s{S_W}, 17""")
    VC = [32, 33, 34, 35]; VX = [4, 5, 19, 26]; VW = [6, 27, 28, 29]
    e(f"""s_lshl_b32 s{S_T1}, s{S_W}, 5
v_lshrrev_b32 v2, 3, v1
v_and_b32 v3, 7, v1
v_xor_b32 v3, v3, v2
v_lshlrev_b32 v11, 4, v3
v_add_u32 v7, s{S_T1}, v2
v_lshl_add_u32 v{VC[0]}, v7, 10, v11
v_mul_u32_u24 v{VX[0]}, 0x500, v7
v_add_u32 v{VX[0]}, v{VX[0]}, v11""")
    for i in range(1, 4):
        e(f"v_add_u32 v{VC[i]}, {i*(8192-1024)}, v{VC[0]}")
    e(f"""v_and_b32 v2, 15, v1
v_lshrrev_b32 v3, 4, v1
v_lshrrev_b32 v7, 1, v2
v_xor_b32 v7, v7, v3
v_lshlrev_b32 v7, 1, v7
v_and_b32 v8, 1, v2
v_or_b32 v7, v7, v8
v_lshlrev_b32 v7, 4, v7
v_lshl_add_u32 v7, v3, 13, v7
s_lshl_b32 s{S_T1}, s{S_H}, 8
v_add_u32 v{VW[0]}, s{S_T1}, v7
v_add_u32 v{VW[1]}, {32768-1024}, v{VW[0]}
v_xor_b32 v{VW[2]}, 0x80, v{VW[0]}
v_add_u32 v{VW[2]}, {2*(32768-1024)}, v{VW[2]}
v_add_u32 v{VW[3]}, {32768-1024}, v{VW[2]}
s_cmp_lt_u32 s{S_W}, 2
s_waitcnt lgkmcnt(0)
s_cselect_b32 s{SRD_WKV}, s{P_WK}, s{P_WV}
s_cselect_b32 s{SRD_WKV+1}, s{P_WK+1}, s{P_WV+1}
s_mov_b32 s{SRD_WKV+2}, {hex(512*8192)}
s_mov_b32 s{SRD_WKV+3}, 0x00020000""")
    k.srd(SRD_C, P_C, 2048*1024)

    NT = 36
    xb, wb = [], []
    for s in range(8):
        xb.append(dict(kind="xc", k0=64*s, first=2*s, last=2*s+1))
        wb.append(dict(kind="wkv", k0=64*s, first=2*s, last=2*s))
        wb.append(dict(kind="wkv", k0=64*s+32, first=2*s+1, last=2*s+1))
    for s in range(10):
        xb.append(dict(kind="xx", k0=64*s, first=16+2*s, last=16+2*s+1))
        wb.append(dict(kind="wq", k0=64*s, first=16+2*s, last=16+2*s+1))
    xs_ = [131072, 98304, 65536]; ws_ = [16384, 49152, 0, 32768]
    for i, b in enumerate(xb):
        b["R"] = xs_[(len(xb) - 1 - i) % 3]; b["prev"] = xb[i-3] if i >= 3 else None; b["id"] = ("x", i)
    for i, b in enumerate(wb):
        b["R"] = ws_[(len(wb) - 1 - i) % 4]; b["prev"] = wb[i-4] if i >= 4 else None; b["id"] = ("w", i)
    order = sorted(xb + wb, key=lambda b: (b["first"], b["kind"][0] != "x"))
    def find(T, lst):
        for b in lst:
            if b["first"] <= T <= b["last"]: return b
    def dma_list(b):
        R = b["R"]; out = []
        def grp(ldsoff, sbase, sadd, vos, srd):
            for i in range(4):
                ld = ("vm", f"buffer_load_dwordx4 v{vos[i]}, s[{srd}:{srd+3}], s{S_DS} offen offset:{i*1024}{NTQ if srd in (SRD_X, SRD_WQ) else NTK} lds", b["id"])
                if i == 0: out.append([f"s_add_u32 m0, s{S_W4K}, {ldsoff}", f"s_add_u32 s{S_DS}, s{sbase}, {sadd}", ld])
                else: out.append([ld])
        kd = b["kind"]
        if kd == "xc":
            grp(R, S_CA, b["k0"]*2, VC, SRD_C); grp(R + 16384, S_CB, b["k0"]*2, VC, SRD_C)
        elif kd == "xx":
            grp(R, S_XA, b["k0"]*2, VX, SRD_X); grp(R + 16384, S_XB, b["k0"]*2, VX, SRD_X)
        elif kd == "wkv":
            grp(R, S_WBK, b["k0"]*8192, VW, SRD_WKV)
        else:
            grp(R, S_WBQ, b["k0"]*8192, VW, SRD_WQ)
        return out
    def emit_item(it):
        for x in it:
            if isinstance(x, tuple):
                if x[0] == "vm": k.vmem(x[1], x[2])
                elif x[0] == "lg": k.lds_op(x[1], x[2])
                elif x[0] == "wait": k.wait(vmtags=(x[1],))
                elif x[0] == "label": k.label(x[1])
            else:
                e(x)
    pend = list(order)
    def issue_ready(T):
        out = []
        for b in list(pend):
            if b["prev"] is None or b["prev"]["last"] <= T:
                out += dma_list(b); pend.remove(b)
        return out
    pro = issue_ready(-1)
    N0, N1 = 16, 32
    for it in pro[:N0]: emit_item(it)
    pro_b = pro[N0:N1]; pro_c = pro[N1:]
    k.srd(SRD_X, P_X, 2048*1280)
    k.srd(SRD_WQ, P_WQ, 640*8192)
    k.srd(SRD_T, P_GW, 1280)
    k.srd(SRD_G, P_WS, WSB)
    for i in range(1, 4):
        e(f"v_add_u32 v{VX[i]}, {i*(10240-1024)}, v{VX[0]}")
    e(f"""s_lshl_b32 s{S_PFI}, s2, 2
s_add_u32 s{S_PFI}, s{S_PFI}, s{S_W}
v_lshlrev_b32 v36, 4, v1
v_add_u32 v37, 0x1000, v36
s_mov_b32 s{S_M}, 0xffff0000""")
    def pf(srd, pre, offs):
        out = [pre]
        for o in offs:
            out.append([("vm", f"buffer_load_dwordx4 v[124:127], v{36 if o < 4096 else 37}, s[{srd}:{srd+3}], s{S_G0} offen offset:{o & 4095}", "t")])
        return out
    pf1 = pf(SRD_C, [f"s_mul_i32 s{S_G0}, s{S_PFI}, 2048"], [0, 1024])
    pf1 += pf(SRD_WKV, [f"s_lshl_b32 s{S_G0}, s2, 14", f"s_lshr_b32 s{S_T0}, s{S_WBK}, 4", f"s_add_u32 s{S_G0}, s{S_G0}, s{S_T0}"], [i*1024 for i in range(8)])
    pf2 = pf(SRD_X, [f"s_mul_i32 s{S_G0}, s{S_PFI}, 2560"], [0, 1024, 1536]) + pf(SRD_WQ, [f"s_mul_i32 s{S_G0}, s{S_PFI}, 5120"], [0, 1024, 2048, 3072, 4096])
    zeroflag = [[f"""s_lshl_b32 s{S_T0}, s{S_H}, 7
s_lshl_b32 s{S_T1}, s{S_P}, 2
s_add_u32 s{S_T0}, s{S_T0}, s{S_T1}
s_add_u32 s{S_T0}, s{S_T0}, {hex(LY.FL2_OFF)}
v_mov_b32 v39, s{S_T0}
v_mov_b32 v38, 0
s_cmp_lg_u32 s{S_W}, 0
s_cbranch_scc1 {L('nozf')}
s_mov_b64 exec, 1
buffer_store_dword v38, v39, {G}, 0 offen sc1
s_mov_b64 exec, -1""", ("label", "nozf")]]
    announce = [[f"""s_getreg_b32 s{S_XSH}, hwreg(HW_REG_XCC_ID, 0, 3)
s_lshl_b32 s{S_XSH}, s{S_XSH}, 2
s_lshl_b32 s{S_T0}, 1, s{S_XSH}
v_mov_b32 v38, s{S_T0}
s_cmp_lg_u32 s{S_W}, 0
s_cbranch_scc1 {L('noan')}
s_mov_b64 exec, 1
global_atomic_add v7, v38, s[{P_DBG}:{P_DBG+1}] sc1
s_mov_b64 exec, -1""", ("label", "noan")]]
    coload = [[f"""s_cmp_lg_u32 s{S_W}, 0
s_cbranch_scc1 {L('noco')}
global_load_dword v3, v7, s[{P_DBG}:{P_DBG+1}] sc1""", ("label", "noco")]]

    e(f"""s_lshr_b32 s{S_T0}, s{S_W}, 1
s_lshl_b32 s{S_T0}, s{S_T0}, 14
s_add_u32 s{S_T0}, s{S_T0}, 0x10000
v_and_b32 v7, 7, v2
v_xor_b32 v7, v7, v3
v_lshlrev_b32 v7, 4, v7
v_lshlrev_b32 v8, 7, v2
v_add_u32 v8, v8, v7
v_add_u32 v8, s{S_T0}, v8
v_xor_b32 v9, 64, v8
v_add_u32 v10, 0x10000, v8
v_add_u32 v11, 0x10000, v9
v_lshrrev_b32 v7, 2, v2
v_and_b32 v16, 1, v3
v_lshlrev_b32 v16, 2, v16
v_or_b32 v16, v16, v7
v_lshlrev_b32 v40, 3, v3
v_add_u32 v40, v40, v7
v_lshlrev_b32 v40, 8, v40
v_and_b32 v41, 3, v1
v_lshlrev_b32 v41, 3, v41
v_add_u32 v40, v40, v41
s_and_b32 s{S_T1}, s{S_W}, 1
s_lshl_b32 s{S_T1}, s{S_T1}, 2""")
    for i in range(4):
        e(f"s_add_u32 s{S_T0}, s{S_T1}, {i}\nv_xor_b32 v42, s{S_T0}, v16\nv_lshlrev_b32 v42, 5, v42\nv_add_u32 v{12+i}, v40, v42")
    e(f"s_lshl_b32 s{S_T0}, s{S_H}, 2\nv_mov_b32 v7, s{S_T0}")
    setup2 = [[x] for x in f"""v_and_b32 v40, 7, v1
v_and_b32 v41, 8, v1
v_lshlrev_b32 v41, 1, v41
v_or_b32 v40, v40, v41
v_and_b32 v41, 1, v3
v_lshlrev_b32 v42, 5, v41
v_add_u32 v40, v40, v42
v_lshlrev_b32 v40, 4, v40
v_lshrrev_b32 v43, 1, v3
v_lshlrev_b32 v44, 10, v43
v_add_u32 v16, v40, v44
s_lshl_b32 s{S_T0}, s{S_H}, 5
s_sub_u32 s{S_T1}, 15, s{S_P}
s_cmp_lt_u32 s{S_W}, 2|s_cselect_b32 s{S_T1}, s{S_T1}, s{S_P}
s_lshl_b32 s{S_T1}, s{S_T1}, 1
s_add_u32 s{S_T0}, s{S_T0}, s{S_T1}
s_lshl_b32 s{S_T0}, s{S_T0}, 15
s_add_u32 s{S_T0}, s{S_T0}, {hex(LY.KVF_OFF)}
s_and_b32 s{S_T2}, s{S_W}, 1
s_lshl_b32 s{S_T1}, s{S_T2}, 12
s_add_u32 s{S_T1}, s{S_T1}, s{S_T0}
v_add_u32 v16, s{S_T1}, v16
v_add_u32 v40, v2, v42
v_lshlrev_b32 v40, 4, v40
v_lshlrev_b32 v45, 12, v43
v_add_u32 v17, v40, v45
s_lshl_b32 s{S_T1}, s{S_T2}, 11
s_add_u32 s{S_T1}, s{S_T1}, s{S_T0}
s_add_u32 s{S_T1}, s{S_T1}, 16384
v_add_u32 v17, s{S_T1}, v17
v_add_u32 v18, v40, v44
s_lshr_b32 s{S_T0}, s{S_W}, 1
s_lshl_b32 s{S_T0}, s{S_T0}, 15
s_sub_u32 s{S_T0}, {QL}, s{S_T0}
s_lshl_b32 s{S_T1}, s{S_T2}, 12
s_add_u32 s{S_T0}, s{S_T0}, s{S_T1}
v_add_u32 v18, s{S_T0}, v18
s_mov_b32 s{S_SO}, 0
s_mov_b32 s{S_SO+1}, 8192
s_mov_b32 s{S_SO+2}, 32768
s_mov_b32 s{S_SO+3}, 40960
s_mov_b32 s{S_SCALE}, {f32bits(LY.QSCALE)}""".split("\n")]
    setup2 = [it[0].split("|") for it in setup2]

    def XF(T, j): return (128 + 64 * (T & 1) + 4 * j) if T < 16 else (32 + 48 * (T & 1) + 4 * j)
    def WF(T, j): return XF(T, 8 + j)
    def read_list(T):
        xbuf = find(T, xb); wbuf = find(T, wb)
        ks = T - xbuf["first"]
        xs = []; wl = []
        for j in range(8):
            addr = xbuf["R"] - 65536 + j * 2048
            xs.append([("lg", f"ds_read_b128 {vr(XF(T,j),4)}, v{8 + ks + 2*(addr >> 16)} offset:{addr & 0xffff}", ("f", T))])
        wbs = [wbuf["R"], wbuf["R"] + 8192] if wbuf["kind"] == "wkv" else [wbuf["R"] + (T - wbuf["first"]) * 8192]
        for mt, b in enumerate(wbs):
            for i in range(4):
                for half in range(2):
                    wl.append([("lg", f"ds_read_b64_tr_b16 {vr(WF(T, mt*4+i) + 2*half, 2)}, v{12+i} offset:{b + half*1024}", ("f", T))])
        res = []
        while xs or wl:
            if wl: res.append(wl.pop(0))
            if wl and len(wbs) == 2: res.append(wl.pop(0))
            if xs: res.append(xs.pop(0))
        return res
    def mfma_list(T):
        out = []
        for rb in range(8):
            for db in range(4):
                a = (rb * 4 + db) * 4
                if T < 16:
                    out.append(f"v_mfma_f32_16x16x32_bf16 {ar(a,4)}, {vr(WF(T,db),4)}, {vr(XF(T,rb),4)}, {'0' if T == 0 else ar(a,4)}")
                    out.append(f"v_mfma_f32_16x16x32_bf16 {ar(a+128,4)}, {vr(XF(T,rb),4)}, {vr(WF(T,4+db),4)}, {'0' if T == 0 else ar(a+128,4)}")
                else:
                    out.append(f"v_mfma_f32_16x16x32_bf16 {vr(128+a,4)}, {vr(WF(T,db),4)}, {vr(XF(T,rb),4)}, {'0' if T == 16 else vr(128+a,4)}")
        return out
    ET = [20, 21, 22, 23, 24, 25, 30, 31]
    def kv_epi_items():
        items = []
        def ps(blkA, blkB, voff, soff, imm):
            for i in range(4): items.append([f"v_accvgpr_read_b32 v{ET[4+i]}, a{blkB+i}"])
            for i in range(4): items.append([f"v_accvgpr_read_b32 v{ET[i]}, a{blkA+i}"])
            for i in range(4): items.append([f"v_cvt_pk_bf16_f32 v{ET[i]}, v{ET[2*i]}, v{ET[2*i+1]}"])
            items.append([("vm", f"buffer_store_dwordx4 v[20:23], v{voff}, {G}, s{soff} offen offset:{imm}", "kv")])
        for rb in range(8):
            for ee in range(2):
                ps((rb*4 + 2*ee)*4, (rb*4 + 2*ee + 1)*4, 16, S_SO + (rb >> 1), ee*2048 + (rb & 1)*128)
        for f in range(4):
            for db in range(4):
                ps(128 + ((2*f)*4 + db)*4, 128 + ((2*f+1)*4 + db)*4, 17, S_SO + f, (db >> 1)*1024 + (db & 1)*256)
        return items

    fill = {T: [] for T in range(NT)}
    def plan(items, Ts):
        if not items: return
        per = -(-len(items) // len(Ts))
        for T in Ts:
            fill[T] += items[:per]; items = items[per:]
        assert not items
    def srd_items(d, p, n):
        return [[f"s_mov_b32 s{d}, s{p}", f"s_mov_b32 s{d+1}, s{p+1}"], [f"s_mov_b32 s{d+2}, {hex(n)}", f"s_mov_b32 s{d+3}, 0x00020000"]]
    fill[0] += zeroflag
    fill[5] += announce
    fill[13] += coload
    plan(pf1, [0, 1, 2, 3]); plan(pf2, [4, 5, 6, 7])
    fill[8] += [[f"""s_cmp_gt_u32 s2, 2
s_cbranch_scc1 {L('nofl')}
v_mov_b32 v48, 0
v_mov_b32 v49, 0
v_mov_b32 v50, 0
v_mov_b32 v51, 0
v_lshlrev_b32 v52, 4, v0
s_lshl_b32 s{S_T0}, s2, 12
s_add_u32 s{S_T0}, s{S_T0}, {hex(LY.FL_OFF)}
buffer_store_dwordx4 v[48:51], v52, {G}, s{S_T0} offen""", ("label", "nofl")]]
    plan(setup2, [9])
    GR_BASE = 88
    g_ld, g_cp = PS.gate_stream(GR_BASE, 2, S_W, 1, SRD_X, SRD_T, SRD_G, S_M, S_G0)
    g_ld.append([f"v_add_u32 v{GR_BASE+1}, {hex(LY.G_OFF)}, v{GR_BASE+1}"])
    plan(g_ld, [10])
    plan(g_cp, [12, 13, 14])
    def code_pf(srd, vtmp, dst, tracked=True):
        lab = k.newlabel("pc")
        ld = f"buffer_load_dwordx4 {dst}, v{vtmp}, s[{srd}:{srd+3}], s{S_T0} offen"
        return [[f"s_getpc_b64 s[{srd}:{srd+1}]", ("label", lab), f"s_sub_u32 s{srd}, s{srd}, {L(lab)}-main_kernel", f"s_subb_u32 s{srd+1}, s{srd+1}, 0"],
                [f"s_mov_b32 s{srd+2}, all_code_end-main_kernel", f"s_mov_b32 s{srd+3}, 0x00020000"],
                [f"s_lshr_b32 s{S_T0}, s2, 3", f"s_lshl_b32 s{S_T0}, s{S_T0}, 12"],
                [f"v_lshlrev_b32 v{vtmp}, 4, v0"],
                [("vm", ld, "t") if tracked else ld]]
    if "x_nocpf" not in EXP:
        fill[11] += code_pf(SRD_T, 36, "v[124:127]")
        fill[29] += code_pf(SRD_T, 2, "a[0:3]")
    plan(kv_epi_items(), list(range(16, 32)))
    ai = [x.split("|") for x in f"""s_lshl_b32 s{S_N1}, s{S_P}, 1
s_add_u32 s{S_N1}, s{S_N1}, 2
s_and_b32 s{S_WODD}, s{S_W}, 1
s_lshl_b32 s{S_HB}, s{S_H}, 20
s_add_u32 s{S_HB}, s{S_HB}, {hex(LY.KVF_OFF)}
s_add_u32 s{S_HB}, s{S_HB}, s{S_W4K}
s_sub_u32 s{S_RX}, 15, s{S_P}
s_lshl_b32 s{S_RX}, s{S_RX}, 2
s_add_u32 s{S_RX}, s{S_RX}, s{S_W}
s_lshl_b32 s{S_RY}, s{S_P}, 2
s_add_u32 s{S_RY}, s{S_RY}, s{S_W}
s_mov_b32 s{SRD_K}, s{SRD_G}
s_mov_b32 s{SRD_K+1}, s{SRD_G+1}
s_mov_b32 s{SRD_K+2}, {hex(WSB)}
s_mov_b32 s{SRD_K+3}, 0x00020000
s_mov_b32 s{SRD_V}, s{SRD_G}
s_mov_b32 s{SRD_V+1}, s{SRD_G+1}
s_mov_b32 s{SRD_V+2}, {hex(WSB)}
s_mov_b32 s{SRD_V+3}, 0x00020000
s_sub_u32 s{S_N1M2}, s{S_N1}, 2
s_lshl_b32 s{S_T0}, s{S_N1M2}, 15
s_add_u32 s{S_KA}, s{S_HB}, s{S_T0}
s_add_u32 s{S_KOFF}, s{S_KA}, 0x8000
s_add_u32 s{S_KB}, s{S_KA}, 0x10000
s_cmp_eq_u32 s{S_N1}, 2|s_cselect_b32 s{S_KB}, s{S_KB}, s{S_HB}
s_add_u32 s{S_DB}, s{S_W4K}, 0x10000
s_sub_i32 s{S_N1M3}, s{S_N1}, 3
s_lshl_b32 s{S_FC}, 9, s{S_N1}
s_lshr_b32 s{S_FC}, s{S_FC}, 3
s_or_b32 s{S_FC}, s{S_FC}, 0x10002
s_sub_u32 s{S_T0}, s{S_N1}, 1
s_lshl_b32 s{S_FB}, 1, s{S_T0}
s_or_b32 s{S_FB}, s{S_FB}, 0xc000
s_lshl_b32 s{S_KX2}, s{S_WODD}, 14
s_or_b32 s{S_KX2}, s{S_KX2}, 0x10000
s_lshl_b32 s{S_T0}, s{S_H}, 7
s_lshl_b32 s{S_T1}, s{S_P}, 2
s_add_u32 s{S_T0}, s{S_T0}, s{S_T1}
s_add_u32 s{S_T0}, s{S_T0}, {hex(LY.FL2_OFF)}
v_mov_b32 v31, s{S_T0}
v_mov_b32 v23, 1
v_lshlrev_b32 v24, 4, v1
v_add_u32 v25, 0x8000, v24
v_add_u32 v30, 0x4000, v24""".split("\n")]
    plan(ai, [32])
    plan([[f"v_accvgpr_write_b32 a{r}, 0"] for r in range(128)], [33, 34, 35])

    for it in pro_b: emit_item(it)
    k.wait(vmtags=(find(0, xb)["id"], find(0, wb)["id"]))
    e("s_barrier")
    ST("first")
    for it in read_list(0): emit_item(it)
    dm_carry = pro_c
    def dma4(m0expr, voff, srd, soff, tag=None):
        mk = (lambda s: ("vm", s, tag)) if tag else (lambda s: s)
        out = [[m0expr, "s_nop 0", mk(f"buffer_load_dwordx4 v{voff}, s[{srd}:{srd+3}], s{soff} offen lds")]]
        for i in range(1, 4):
            out.append([mk(f"buffer_load_dwordx4 v{voff}, s[{srd}:{srd+3}], s{soff} offen offset:{i*1024} lds")])
        return out
    for T in range(NT):
        need = [b["id"] for b in xb + wb if b["first"] == T + 1]
        dm = dm_carry; dm_carry = []
        ST(f"P{T}")
        if T == 33:
            e("s_waitcnt vmcnt(0)"); k.vm = []
        if need or T == 35:
            k.wait(vmtags=tuple(need), lgtags=(("f", T),))
            e("s_barrier")
            dm = dm + issue_ready(T)
            if T >= 16 and len(dm) > 8:
                dm_carry = dm[8:]; dm = dm[:8]
        else:
            k.wait(lgtags=(("f", T),))
        if T == 33:
            e(f"s_cmp_lg_u32 s{S_W}, 0\ns_cbranch_scc1 {L('noat')}")
            e(f"""v_readfirstlane_b32 s{S_T0}, v3
s_lshr_b32 s{S_T0}, s{S_T0}, s{S_XSH}
s_and_b32 s{S_T0}, s{S_T0}, 15
s_cmp_eq_u32 s{S_T0}, {99 if "x_slow" in EXP else 8}
s_mov_b64 exec, 1
s_cbranch_scc0 {L('slowpub')}
buffer_store_dword v23, v31, {G}, 0 offen""")
            k.label("coloc")
            e("s_mov_b64 exec, -1")
            k.label("noat")
            dm = dm + dma4(f"s_add_u32 m0, s{S_W4K}, 0x10000", 24, SRD_G, S_KA, "k0")
            dm_carry = dma4(f"s_add_u32 m0, s{S_W4K}, 0x8000", 30, SRD_G, S_KA, "v0") + dma4(f"s_mov_b32 m0, s{S_W4K}", 25, SRD_G, S_KA, "k1")
        ST(f"T{T}")
        ms = mfma_list(T); nm = len(ms)
        rdl = read_list(T + 1) if T + 1 < NT else []
        g1 = spread(nm, rdl, 0, (nm * 3) // 4) if rdl else {}
        g2 = spread(nm, dm, 1, nm) if dm else {}
        pre = [[it for it in g1.get(i, [])] + [it for it in g2.get(i, [])] for i in range(nm)]
        load = [sum(len(it) for it in pre[i]) for i in range(nm)]
        fl = fill[T]; lo = 4 if T == 16 else 0
        tot = sum(load[lo:]) + sum(min(len(it), 4) for it in fl)
        fi = 0; acc = 0.0
        for i in range(nm):
            e(ms[i])
            for it in pre[i]: emit_item(it)
            if i < lo: continue
            acc += load[i]
            tgt = tot * (i - lo + 1) / (nm - lo)
            while fi < len(fl) and (i == nm - 1 or acc + 0.5 * min(len(fl[fi]), 4) <= tgt + 0.01):
                emit_item(fl[fi]); acc += min(len(fl[fi]), 4); fi += 1
    assert not pend and not dm_carry
    import k_main_attn
    k_main_attn.gen(k, globals(), locals())
    return k
```

```python
from asmlib import *
import layout as LY
import prep_streams as PS

def gen(k, GL, LC):
    globals().update({n: v for n, v in GL.items() if n.isupper() or n[0] in "SVP" or n in ("f32bits", "gen_main", "EXP")})
    e = k.e; L = k.L
    G, ST, dma4, emit_item = LC["G"], LC["ST"], LC["dma4"], LC["emit_item"]
    pk = lambda r: vr(r, 2)
    ST("q0")
    e(f"""s_lshl_b32 s{S_T0}, s{S_H}, 7
s_add_u32 s{S_T0}, s{S_T0}, {hex(LY.FL2_OFF)}
v_min_u32 v{V_DBG}, 7, v1
v_lshlrev_b32 v{V_DBG}, 2, v{V_DBG}
v_add_u32 v{V_DBG}, s{S_T0}, v{V_DBG}
v_mov_b32 v{V_D0}, v24
v_mov_b32 v{V_D0+1}, v25
v_mov_b32 v{V_D0+2}, v30
v_add_u32 v{V_D0+3}, 0xc000, v24""")
    e(f"v_mov_b32 v104, v18\nv_mov_b32 v{V_M}, s{S_SCALE}\nv_mov_b32 v{V_M+1}, s{S_SCALE}")
    n = 0
    for rb in range(8):
        for ee in range(2):
            a = 128 + (rb*4 + 2*ee)*4
            t = 64 + 4 * (n % 4); n += 1
            for i in range(4): e(f"v_pk_mul_f32 {pk(a+2*i)}, {pk(a+2*i)}, {pk(V_M)}")
            for i in range(4): e(f"v_cvt_pk_bf16_f32 v{t+i}, v{a+2*i}, v{a+2*i+1}")
            e(f"ds_write_b128 v104, {vr(t,4)} offset:{(rb >> 1)*8192 + ee*2048 + (rb & 1)*256}")
    e(f"""v_and_b32 v105, 31, v1
v_lshrrev_b32 v106, 5, v1
v_lshlrev_b32 v{V_LB}, 2, v106
v_sub_u32 v{V_LB}, v105, v{V_LB}
v_lshrrev_b32 v{V_T}, 4, v105
v_lshlrev_b32 v{V_T}, 17, v{V_T}
v_lshlrev_b32 v{V_T+1}, 8, v106
v_add_u32 v{V_T}, v{V_T}, v{V_T+1}
v_and_b32 v{V_T+1}, 15, v105
v_lshlrev_b32 v{V_T+1}, 4, v{V_T+1}
v_add_u32 v{V_T}, v{V_T}, v{V_T+1}
s_lshl_b32 s{S_T0}, s{S_H}, 12
s_add_u32 s{S_T0}, s{S_T0}, {hex(LY.CTX_OFF)}
v_add_u32 v{V_CTX}, s{S_T0}, v{V_T}
v_mov_b32 v{V_BIG}, {f32bits(-1e30)}
v_mov_b32 v{V_LX}, 0
v_mov_b32 v{V_LY}, 0
v_add_u32 v{V_KA}, 0x10000, v{V_D0}
v_add_u32 v{V_VA}, 0x10000, v{V_D0}
s_lshl_b32 s{S_T0}, s{S_W}, 13
s_add_u32 s{S_T0}, s{S_T0}, {QLB}
v_add_u32 v{V_T}, s{S_T0}, v{V_D0}""")
    ST("qe")
    k.wait(vmtags=("k0",))
    e("s_waitcnt lgkmcnt(0)\ns_barrier")
    ST("attn")
    for i in range(8):
        e(f"ds_read_b128 {ar(QX+4*i,4)}, v{V_T} offset:{32768 + i*1024}")
        e(f"ds_read_b128 {vr(KF+4*i,4)}, v{V_KA} offset:{i*1024}")
    for i in range(8, 16):
        e(f"ds_read_b128 {vr(KF+4*i,4)}, v{V_KA} offset:{i*1024}")
    for i in range(8):
        e(f"ds_read_b128 {ar(QY+4*i,4)}, v{V_T} offset:{i*1024}")

    def regs(Z):
        return dict(S=SX, Q=QX, N=NX, O=OX, P=PX, L=V_LX) if Z == "X" else dict(S=SY, Q=QY, N=NY, O=OY, P=PY, L=V_LY)
    def qk(Z, zero=False):
        r = regs(Z); out = []
        for kb in range(2):
            for ks in range(8):
                c = ("0" if zero else vr(r["N"], 16)) if ks == 0 else vr(r["S"] + 16*kb, 16)
                out.append(f"v_mfma_f32_32x32x16_bf16 {vr(r['S']+16*kb,16)}, {vr(KF+4*(8*kb+ks),4)}, {ar(r['Q']+4*ks,4)}, {c}")
        return out
    def pv(Z):
        r = regs(Z); out = []
        for db in range(4):
            for s in range(4):
                out.append(f"v_mfma_f32_32x32x16_bf16 {ar(r['O']+16*db,16)}, {ar(VF+4*(4*db+s),4)}, {vr(r['P']+4*s,4)}, {ar(r['O']+16*db,16)}")
        return out
    def sm_core(Z):
        r = regs(Z); S, P = r["S"], r["P"]
        t = lambda i: V_X + (i % 8)
        it = []
        for pi in range(17):
            post = []
            if pi >= 1:
                q = pi - 1
                post.append((1, [f"v_cvt_pk_bf16_f32 v{P+q}, v{t(2*q)}, v{t(2*q+1)}"]))
                if q == 1:
                    post.append((1, [f"v_add_f32 v{V_LT}, v{t(0)}, v{t(2)}"]))
                    post.append((1, [f"v_add_f32 v{V_LT+1}, v{t(1)}, v{t(3)}"]))
                elif q >= 2:
                    post.append((1, [f"v_add_f32 v{V_LT}, v{V_LT}, v{t(2*q)}"]))
                    post.append((1, [f"v_add_f32 v{V_LT+1}, v{V_LT+1}, v{t(2*q+1)}"]))
            if pi < 16:
                it.append((2, [f"v_exp_f32 v{t(2*pi)}, v{S+2*pi}"]))
                if post: it.append(post.pop())
                it.append((2, [f"v_exp_f32 v{t(2*pi+1)}, v{S+2*pi+1}"]))
            it += post
        it.append((1, [f"v_add_f32 v{V_LT}, v{V_LT}, v{V_LT+1}"]))
        return it
    redo_sites = []
    def sm(Z, tag):
        r = regs(Z)
        it = sm_core(Z)
        lab = f"rd{Z}{tag}"
        it.append((1, [f"v_cmp_nge_f32 vcc, {THR}, v{V_LT}"]))
        it.append((1, [f"s_cbranch_vccnz {L(lab)}", ("label", lab + "r")]))
        it.append((1, [f"v_add_f32 v{r['L']}, v{r['L']}, v{V_LT}"]))
        redo_sites.append((Z, lab))
        return it
    def emit(x):
        if isinstance(x, tuple): k.label(x[1])
        else: e(x)
    def weave(mf, fixed, stream, lo=0):
        n = len(mf)
        fw = [sum(w for w, _ in fixed.get(g, [])) for g in range(n)]
        tot = sum(w for w, _ in stream) + sum(fw)
        per = tot / n
        acc = 0.0; si = 0
        for g in range(n):
            if mf[g]: e(mf[g])
            gw = 0
            for w, ins in fixed.get(g, []):
                for x in ins: emit(x)
                acc += w; gw += w
            while g >= lo and si < len(stream) and (g == n - 1 or (acc + stream[si][0] * 0.5 <= per * (g + 1) + 0.01 and gw + stream[si][0] <= 6)):
                for x in stream[si][1]: emit(x)
                acc += stream[si][0]; gw += stream[si][0]; si += 1
    def add(fx, g, ins, w=None):
        fx.setdefault(g, []).append((len(ins) if w is None else w, ins))
    def vlds(i): return 32768 + ((i & 3) * 4 + (i >> 2)) * 1024
    NV1 = 6
    def unit(m0, voff, srd, soff):
        d = dma4(m0, voff, srd, soff)
        return [[d[0][0]], [d[0][2]]] + d[1:]
    def body(tag, n16):
        mf = qk("X") + pv("X") + qk("Y") + pv("Y")
        fx = {}
        e(f"s_waitcnt lgkmcnt({NV1})")
        for i in range(NV1, 16):
            add(fx, int((i - NV1) * 1.25), [f"ds_read_b128 {ar(VF+4*i,4)}, v{V_VA} offset:{vlds(i)}"])
        add(fx, 13, [f"s_mov_b32 s{S_VOFF}, s{S_KOFF}", f"s_mov_b32 s{S_KOFF}, s{S_KB}"])
        add(fx, 14, [f"s_add_u32 s{S_KB}, s{S_KB}, {0x10000 if n16 else 0x8000}", f"s_xor_b32 s{S_DB}, s{S_DB}, 0x10000"])
        add(fx, 15, ["s_waitcnt vmcnt(0) lgkmcnt(0)", "s_barrier"])
        dv = unit(f"s_add_u32 m0, s{S_DB}, 0x8000", V_D0+2, SRD_V, S_VOFF)
        dk = unit(f"s_mov_b32 m0, s{S_DB}", V_D0, SRD_K, S_KOFF)
        if n16:
            dv += unit(f"s_add_u32 m0, s{S_DB}, 0xc000", V_D0+3, SRD_V, S_VOFF)
            dk += unit(f"s_add_u32 m0, s{S_DB}, 0x4000", V_D0+1, SRD_K, S_KOFF)
            for i, it in enumerate(dv): add(fx, 16 + (i * 13) // len(dv), it)
            for i, it in enumerate(dk): add(fx, 32 + (i * (10 if "x_kearly" in EXP else 15)) // len(dk), it)
            add(fx, 29, [f"s_cmp_eq_u32 s{S_J}, s{S_N1M2}", f"s_cselect_b32 s{S_KX}, s{S_KX2}, 0x10000"])
            add(fx, 30, [f"v_xor_b32 v{V_KA}, s{S_KX}, v{V_KA}"])
        else:
            for i, it in enumerate(dv + dk): add(fx, 16 + (i * 14) // 10, it)
            add(fx, 30, [f"v_xor_b32 v{V_KA}, 0x10000, v{V_KA}"])
        add(fx, 31, [f"v_xor_b32 v{V_VA}, 0x10000, v{V_VA}"])
        for i in range(16):
            add(fx, 32 + 2 + int(i * 1.35), [f"ds_read_b128 {vr(KF+4*i,4)}, v{V_KA} offset:{i*1024}"])
        for i in range(NV1):
            add(fx, 32 + 24 + int(i * 1.3), [f"ds_read_b128 {ar(VF+4*i,4)}, v{V_VA} offset:{vlds(i)}"])
        weave(mf[:32], {g: v for g, v in fx.items() if g < 32}, sm("Y", tag))
        if n16:
            e(f"s_bitcmp1_b32 s{S_FB}, s{S_J}\ns_cbranch_scc1 {L('hB')}")
            k.label("hBr")
        weave(mf[32:], {g - 32: v for g, v in fx.items() if g >= 32}, sm("X", tag))
        e(f"s_add_u32 s{S_J}, s{S_J}, 1\ns_bitcmp1_b32 s{S_FC}, s{S_J}")
    def tile_max_items(S):
        it = [[f"v_max3_f32 v{V_M}, v{S}, v{S+1}, v{S+2}"], [f"v_max3_f32 v{V_M+1}, v{S+3}, v{S+4}, v{S+5}"]]
        i = 6; tog = 0
        while i < 32:
            d = V_M + tog
            it.append([f"v_max3_f32 v{d}, v{d}, v{S+i}, v{S+i+1}"]); i += 2; tog ^= 1
        it.append([f"v_max_f32 v{V_M}, v{V_M}, v{V_M+1}"])
        it.append([f"v_mov_b32 v{V_M+1}, v{V_M}", "s_nop 1", f"v_permlane32_swap_b32 v{V_M+1}, v{V_M}", "s_nop 1", f"v_max_f32 v{V_M}, v{V_M}, v{V_M+1}"])
        return it
    def first_items(Z, packed):
        r = regs(Z); S, N = r["S"], r["N"]
        it = tile_max_items(S)
        it.append([f"v_sub_f32 v{N}, 0, v{V_M}"])
        it.append([f"v_sub_f32 v{N+1}, 0, v{V_M}"])
        if packed:
            for i in range(16): it.append([f"v_pk_add_f32 {pk(S+2*i)}, {pk(S+2*i)}, {pk(N)}"])
            for i in range(1, 8): it.append([f"v_pk_mov_b32 {pk(N+2*i)}, {pk(N)}, {pk(N)}"])
        else:
            for i in range(32): it.append([f"v_add_f32 v{S+i}, v{S+i}, v{N}"])
            for i in range(2, 16): it.append([f"v_mov_b32 v{N+i}, v{N}"])
        return it
    def flat(items):
        for it in items:
            for x in it: emit(x)
    def mask_code(S, nm):
        e(f"s_cmp_lt_i32 s{S_T0}, -1\ns_cbranch_scc1 {L(nm + 'r')}")
        e(f"s_cmp_eq_i32 s{S_T0}, -1\ns_cbranch_scc1 {L(nm + 'a')}")
        e(f"v_mov_b32 v{S+16}, v{V_BIG}\nv_mov_b32 v{S+17}, v{V_BIG}")
        for r in range(1, 8): e(f"v_pk_mov_b32 {pk(S+16+2*r)}, {pk(S+16)}, {pk(S+16)}")
        e(f"s_cmp_eq_i32 s{S_T0}, 0\ns_cbranch_scc1 {L(nm + 'b')}")
        for r in range(8): e(f"v_pk_mov_b32 {pk(S+2*r)}, {pk(S+16)}, {pk(S+16)}")
        e(f"s_branch {L(nm + 'r')}")
        k.label(nm + "a")
        for r in range(16):
            e(f"v_cndmask_b32 v{S+16+r}, v{V_BIG}, v{S+16+r}, s[{MASKP[r]}:{MASKP[r]+1}]")
        e(f"s_branch {L(nm + 'r')}")
        k.label(nm + "b")
        for r in range(16):
            e(f"v_cndmask_b32 v{S+r}, v{V_BIG}, v{S+r}, s[{MASKP[r]}:{MASKP[r]+1}]")
        k.label(nm + "r")

    for r in range(16):
        f = LY.row2key(8 * (r >> 2) + (r & 3))
        e(f"v_cmp_le_i32 s[{MASKP[r]}:{MASKP[r]+1}], {f}, v{V_LB}")
    e("s_waitcnt lgkmcnt(8)")
    fx = {}
    add(fx, 15, ["s_waitcnt vmcnt(0) lgkmcnt(0)", "s_barrier"])
    weave(qk("X", True), fx, [])
    fx = {}
    for i, it in enumerate(dma4(f"s_add_u32 m0, s{S_DB}, 0x8000", V_D0+2, SRD_V, S_KOFF)): add(fx, i, it)
    add(fx, 4, [f"v_xor_b32 v{V_KA}, 0x10000, v{V_KA}", f"v_xor_b32 v{V_VA}, 0x10000, v{V_VA}"])
    add(fx, 4, [f"s_cmp_lg_u32 s{S_W}, 0", f"s_cbranch_scc1 {L('nopl')}", f"buffer_load_dword v{V_POLL}, v{V_DBG}, {G}, 0 offen sc1", ("label", "nopl")])
    for i in range(11):
        add(fx, 5 + i, [f"ds_read_b128 {vr(KF+4*i,4)}, v{V_KA} offset:{i*1024}"])
    weave(qk("Y", True), fx, [(len(it), it) for it in first_items("X", False)], lo=4)
    for i in range(11, 16):
        e(f"ds_read_b128 {vr(KF+4*i,4)}, v{V_KA} offset:{i*1024}")
    e(f"""s_lshl_b32 s{S_T0}, s{S_W}, 8
s_add_u32 s{S_T0}, s{S_T0}, {16384}
v_lshlrev_b32 v{V_T}, 2, v1
v_add_u32 v{V_T}, s{S_T0}, v{V_T}
ds_write_b32 v{V_T}, v{NX}
v_xor_b32 v{V_NP}, 0x100, v{V_T}""")
    ST("s1")
    e(f"s_mov_b32 s{S_T2}, 0\ns_cmp_lg_u32 s{S_W}, 0\ns_cbranch_scc1 {L('pollok')}")
    e(f"s_waitcnt vmcnt(0)\nv_cmp_ne_u32 vcc, 1, v{V_POLL}\ns_mov_b32 s{S_T2}, 1\ns_cbranch_vccnz {L('pollok')}")
    e(f"buffer_inv sc1\ns_mov_b32 s{S_T2}, 0")
    k.label("pollok")
    for i, (w, ins) in enumerate(sm("X", "p")):
        for x in ins: emit(x)
    ST("s2")
    e(f"s_cmp_eq_u32 s{S_T2}, 1\ns_cbranch_scc1 {L('spin')}")
    k.label("spinr")
    e(f"""s_mov_b32 s{S_KOFF}, s{S_KB}
s_cmp_eq_u32 s{S_N1}, 2
s_cselect_b32 s{S_T0}, 2, 1
s_lshl_b32 s{S_T0}, s{S_T0}, 15
s_add_u32 s{S_KB}, s{S_KB}, s{S_T0}
s_mov_b32 s{S_J}, 0
s_waitcnt vmcnt(0) lgkmcnt(0)
s_barrier""")
    ST("sync")
    flat(dma4(f"s_mov_b32 m0, s{S_DB}", V_D0, SRD_K, S_KOFF))
    e(f"s_cmp_lg_u32 s{S_N1}, 2\ns_cbranch_scc1 {L('nok2')}")
    flat(dma4(f"s_add_u32 m0, s{S_DB}, 0x4000", V_D0+1, SRD_K, S_KOFF))
    k.label("nok2")
    e(f"ds_read_b32 v{V_NP}, v{V_NP}")
    for i in range(NV1):
        e(f"ds_read_b128 {ar(VF+4*i,4)}, v{V_VA} offset:{vlds(i)}")
    e(f"s_lshl_b32 s{S_T0}, s{S_N1M2}, 1\ns_sub_u32 s{S_T0}, s{S_T0}, s{S_RY}")
    mask_code(SY, "m0")
    flat(first_items("Y", True))
    e(f"s_cmp_lt_i32 s{S_N1M3}, 1\ns_cbranch_scc1 {L('loop16')}")
    k.label("loop8")
    body("a", False)
    e(f"s_cbranch_scc0 {L('loop8')}\ns_branch {L('hC')}")
    k.label("loop16")
    body("b", True)
    e(f"s_cbranch_scc0 {L('loop16')}")
    k.label("hC")
    def STJ(name, cond):
        if name in SMAP and Kern.STAMP:
            lab = k.newlabel("sj")
            e(f"s_cmp_lg_u32 s{S_J}, {cond}\ns_cbranch_scc1 {L(lab)}")
            ST(name); k.label(lab)
    STJ("inn1", f"s{S_N1}"); STJ("in1", 1); STJ("inm3", f"s{S_N1M3}")
    e(f"s_cmp_eq_u32 s{S_J}, s{S_N1}\ns_cbranch_scc1 {L('sw2')}")
    k.label("hCa")
    e(f"s_and_b32 s{S_T0}, s{S_J}, 15\ns_cmp_le_u32 s{S_T0}, 1\ns_cbranch_scc1 {L('mY')}")
    k.label("hCb")
    STJ("outn1", f"s{S_N1}"); STJ("out1", 1)
    e(f"""s_cmp_lt_i32 s{S_J}, s{S_N1M3}
s_cbranch_scc1 {L('loop8')}
s_add_u32 s{S_T0}, s{S_KA}, 0x10000
s_cmp_eq_u32 s{S_J}, s{S_N1M3}
s_cselect_b32 s{S_KB}, s{S_T0}, s{S_KB}
s_branch {L('loop16')}""")
    k.label("mY")
    e(f"""s_sub_u32 s{S_T0}, 32, s{S_N1}
s_add_u32 s{S_T0}, s{S_T0}, s{S_WODD}
s_sub_u32 s{S_T1}, s{S_N1}, 1
s_cmp_eq_u32 s{S_J}, 1
s_cselect_b32 s{S_T0}, s{S_T1}, s{S_T0}
s_lshl_b32 s{S_T0}, s{S_T0}, 1
s_sub_u32 s{S_T0}, s{S_T0}, s{S_RY}""")
    mask_code(SY, "m1")
    e(f"s_cmp_eq_u32 s{S_J}, 1\ns_cbranch_scc1 {L('hCb')}")
    ST("tail")
    for i in range(NV1, 16):
        e(f"ds_read_b128 {ar(VF+4*i,4)}, v{V_VA} offset:{vlds(i)}")
    KRL = [32 + 2*r for r in range(11)]; VRL = [54, 56, 58, 60, 62, 66, 68, 70]; WR = 72
    e(f"""s_load_dwordx2 s[4:5], s[0:1], 72
v_min_u32 v{V_T}, 39, v1
s_mul_i32 s{S_T0}, s{S_W}, 40
v_add_u32 v{V_T}, s{S_T0}, v{V_T}
v_lshlrev_b32 v{V_T+1}, 3, v{V_T}
v_lshlrev_b32 v{V_T+2}, 5, v{V_T}
v_lshlrev_b32 v2, 14, v{V_T}
s_lshl_b32 s{S_T0}, s{S_KA}, 4
s_add_u32 s{S_T0}, s{S_T0}, {hex(LY.UT_OFF)}
v_add_u32 v2, s{S_T0}, v2
v_add_u32 v3, 0x1000, v2
s_cmp_eq_u32 s{S_KA}, 0
s_cselect_b32 s{S_T0}, 0, 3840
s_cselect_b32 s{S_T1}, 16384, 0
s_add_u32 s{S_T0}, s{S_T0}, 0x10000
s_add_u32 s{S_T1}, s{S_T1}, 0x10000
v_add_u32 v{V_KA}, s{S_T0}, v{V_T+1}
v_add_u32 v{V_NP}, s{S_T1}, v{V_T+1}
v_add_u32 v{V_T+1}, {98304}, v{V_T+1}
s_mov_b32 s6, 5120
s_mov_b32 s7, 0x00020000
s_mov_b32 s{S_DS}, 8192""")
    e(f"""v_bfe_u32 v5, v1, 4, 1
v_lshlrev_b32 v5, 2, v5
v_bfe_u32 v6, v1, 2, 2
v_add_u32 v5, v5, v6
v_mul_u32_u24 v5, 0x500, v5
v_and_b32 v6, 3, v1
v_lshl_add_u32 v5, v6, 3, v5
v_lshrrev_b32 v6, 5, v1
v_lshl_add_u32 v5, v6, 5, v5
s_mul_i32 s{S_T0}, s{S_W}, 320
v_add_u32 v5, s{S_T0}, v5""")
    e(f"""s_lshr_b32 s{S_T0}, s2, 1
s_lshl_b32 s{S_T1}, s{S_W}, 8
s_add_u32 s{S_T0}, s{S_T0}, s{S_T1}
s_mul_i32 s{S_T0}, s{S_T0}, 5120
s_and_b32 s{S_T1}, s2, 1
s_lshl_b32 s{S_T1}, s{S_T1}, 9
s_add_u32 s{S_T0}, s{S_T0}, s{S_T1}
s_add_u32 s{S_T0}, s{S_T0}, {hex(LY.WOF_OFF)}
v_and_b32 v7, 31, v1
v_lshlrev_b32 v7, 4, v7
v_add_u32 v7, s{S_T0}, v7
v_mul_u32_u24 v{V_LB}, {128*5120 - 4096}, v6
v_add_u32 v{V_LB}, v{V_LB}, v7
v_lshl_add_u32 v7, v6, 10, v7
s_mov_b32 s8, 4096
s_mov_b32 s9, {128*5120}""")
    st = sm("Y", "e")
    e("s_waitcnt vmcnt(0) lgkmcnt(0)\ns_barrier")
    fx = {}
    rd = [f"buffer_load_dwordx4 {vr(WR,4)}, v{V_T+2}, s[4:7], 0 offen", f"buffer_load_dwordx4 {vr(WR+4,4)}, v{V_T+2}, s[4:7], 0 offen offset:16"]
    for r in range(3): rd.append(f"ds_read_b64 {pk(KRL[r])}, v{V_NP} offset:{r*1280}")
    for r in range(8):
        rd.append(f"ds_read_b64 {pk(KRL[3+r])}, v{V_KA} offset:{r*1280}")
        rd.append(f"ds_read_b64 {pk(VRL[r])}, v{V_T+1} offset:{r*1280}")
    WOR = QX
    for i in range(5):
        for h in range(2):
            rd.append(f"ds_read_b64_tr_b16 {ar(WOR+4*i+2*h,2)}, v5 offset:{h*8*1280 + i*64}")
    for i, x in enumerate(rd): add(fx, i // 2, [x])
    weave(pv("X"), fx, st)
    MB = lambda wreg: f"s_and_b32 s{S_T0}, {wreg}, 1\ns_mul_i32 s{S_T0}, s{S_T0}, {18*1024}\ns_lshr_b32 s{S_T1}, {wreg}, 1\ns_mul_i32 s{S_T1}, s{S_T1}, {88*1024}\ns_add_u32 s{S_T0}, s{S_T0}, s{S_T1}\ns_add_u32 s{S_T0}, s{S_T0}, {24*1024}"
    e(MB(f"s{S_W}") + f"\nv_add_u32 v{V_T}, s{S_T0}, v{V_D0}\nv_mov_b32 v{NY+1}, v{V_LY}")
    e(f"ds_write_b64 v{V_T}, {pk(NY)} offset:{16*1024}")
    fx = {}
    for r in range(64):
        add(fx, 1 + r // 5 if r < 48 else 11 + (r - 48) // 4, [f"v_accvgpr_read_b32 v{192+r}, a{OX+r}"])
    for db in range(3):
        for q in range(4):
            add(fx, min(15, 4*db + 7 + q), [f"ds_write_b128 v{V_T}, {ar(OY+16*db+4*q,4)} offset:{(4*db+q)*1024}"])
    weave(pv("Y"), fx, [])
    e(f"s_xor_b32 s{S_T2}, s{S_W}, 1\n" + MB(f"s{S_T2}") + f"\nv_add_u32 v{V_T+1}, s{S_T0}, v{V_D0}\ns_lshl_b32 s{S_CTXB}, s{S_RX}, 18\ns_nop 1")
    for q in range(4):
        e(f"ds_write_b128 v{V_T}, {ar(OY+48+4*q,4)} offset:{(12+q)*1024}")
    e("s_waitcnt vmcnt(0) lgkmcnt(15)")
    for i, (vo, so, imm) in enumerate([(7, "0", 0), (7, "0", 2048), (V_LB, "s8", 0), (7, "s9", 1024), (7, "s9", 3072)]):
        e(f"buffer_store_dwordx4 {ar(WOR+4*i,4)}, v{vo}, {G}, {so} offen offset:{imm}")
    uc = PS.u_compute(KRL, VRL, WR, 96, list(range(104, 126)), 84, 2, 3, G, S_M, S_DS)
    for x in uc[:100]: e(x)
    e("s_waitcnt lgkmcnt(0)\ns_barrier")
    e(f"ds_read_b64 {pk(NY)}, v{V_T+1} offset:{16*1024}")
    for i in range(16):
        e(f"ds_read_b128 {vr(128+4*i,4)}, v{V_T+1} offset:{i*1024}")
    for x in uc[100:]: e(x)
    e("s_waitcnt lgkmcnt(0)")
    A, D, B, C = 24, 25, 26, 28
    e(f"""v_min_f32 v{A}, v{NX}, v{NY}
v_sub_f32 v{B}, v{A}, v{NX}
v_sub_f32 v{C}, v{A}, v{NY}
v_exp_f32 v{B}, v{B}
v_exp_f32 v{C}, v{C}
s_nop 0
v_mul_f32 v{V_LX}, v{V_LX}, v{B}
v_fma_f32 v{V_LX}, v{NY+1}, v{C}, v{V_LX}
v_mov_b32 v{D}, v{V_LX}
s_nop 1
v_permlane32_swap_b32 v{D}, v{V_LX}
s_nop 1
v_add_f32 v{D}, v{D}, v{V_LX}
v_rcp_f32 v{D}, v{D}
s_nop 0
v_mul_f32 v{B}, v{B}, v{D}
v_mul_f32 v{C}, v{C}, v{D}
v_mov_b32 v{B+1}, v{B}
v_mov_b32 v{C+1}, v{C}""")
    for i in range(32): e(f"v_pk_mul_f32 {pk(192+2*i)}, {pk(192+2*i)}, {pk(B)}")
    for db in range(4):
        for s in range(2):
            t = V_E + 4 * (2*db+s)
            b = 16*db + 8*s
            for i in range(4): e(f"v_pk_fma_f32 {pk(192+b+2*i)}, {pk(128+b+2*i)}, {pk(C)}, {pk(192+b+2*i)}")
            for i in range(4): e(f"v_cvt_pk_bf16_f32 v{t+i}, v{192+b+2*i}, v{192+b+2*i+1}")
            e(f"buffer_store_dwordx4 {vr(t,4)}, v{V_CTX}, {G}, s{S_CTXB} offen offset:{db*1024 + s*512}{NTC}")
    if Kern.STAMP: e("s_waitcnt vmcnt(0)")
    ST("end")
    k.stamp_flush(SRD_G, LY.STAMP_OFF + 65536 * getattr(gen_main, "idx", 0), 2)
    k.label("end")
    e("s_endpgm")

    k.label("sw2")
    D = V_M
    e(f"""v_mov_b32 v{D}, v{V_LB}
v_mov_b32 v{V_T}, 0
v_mov_b32 v{V_T+1}, 0
v_permlane32_swap_b32 v{D}, v{V_LB}
v_mov_b32 v{V_T+2}, 0
v_mov_b32 v{V_T+3}, 0
v_add_f32 v{D}, v{D}, v{V_LB}
v_rcp_f32 v{D}, v{D}
s_nop 1
v_mov_b32 v{D+1}, v{D}""")
    for db in range(4):
        t = V_E + 16 * (db % 2)
        for i in range(16): e(f"v_accvgpr_read_b32 v{t+i}, a{OY+16*db+i}")
        e(f"v_mfma_f32_32x32x16_bf16 {ar(OY+16*db,16)}, {vr(V_T,4)}, {vr(V_T,4)}, 0")
        for i in range(8): e(f"v_pk_mul_f32 {pk(t+2*i)}, {pk(t+2*i)}, {pk(D)}")
        for s in range(2):
            o = PY + 8 * (db % 2) + 4 * s
            for i in range(4): e(f"v_cvt_pk_bf16_f32 v{o+i}, v{t+8*s+2*i}, v{t+8*s+2*i+1}")
            e(f"buffer_store_dwordx4 {vr(o,4)}, v{V_CTX}, {G}, s{S_CTXB} offen offset:{db*1024 + s*512}{NTC}")
    e(f"s_branch {L('hCa')}")
    k.label("hB")
    e(f"s_add_u32 s{S_T0}, s{S_J}, 1\ns_cmp_lg_u32 s{S_T0}, s{S_N1}\ns_cbranch_scc1 {L('hB1')}")
    e(f"s_xor_b32 s{S_T0}, s{S_W}, 1\ns_lshl_b32 s{S_T0}, s{S_T0}, 13\ns_add_u32 s{S_T0}, s{S_T0}, {QL}\nv_add_u32 v{V_T}, s{S_T0}, v{V_D0}")
    for i in range(8):
        e(f"ds_read_b128 {ar(QY+4*i,4)}, v{V_T} offset:{i*1024}")
    e(f"v_mov_b32 v{V_LB}, v{V_LY}\nv_mov_b32 v{V_LY}, 0\nv_mov_b32 v{NY}, v{V_NP}\nv_mov_b32 v{NY+1}, v{V_NP}")
    for r in range(1, 8): e(f"v_pk_mov_b32 {pk(NY+2*r)}, {pk(NY)}, {pk(NY)}")
    e(f"""s_lshl_b32 s{S_CTXB}, s{S_RY}, 18
s_xor_b32 s{S_RY}, s{S_RX}, 1
s_lshl_b32 s{S_T0}, s{S_WODD}, 14
v_add_u32 v{V_VA}, s{S_T0}, v{V_VA}
s_waitcnt lgkmcnt(0)""")
    k.label("hB1")
    e(f"s_cmp_lt_u32 s{S_J}, 14\ns_cbranch_scc1 {L('hBr')}")
    e(f"s_cmp_eq_u32 s{S_J}, 15\ns_cbranch_scc1 {L('hB2')}")
    e(f"""s_load_dwordx2 s[{SRD_K}:{SRD_K+1}], s[0:1], 40
s_load_dwordx2 s[{SRD_V}:{SRD_V+1}], s[0:1], 64
s_load_dwordx2 s[64:65], s[0:1], 56
s_and_b32 s{S_KA}, s2, 7
s_lshl_b32 s{S_KA}, s{S_KA}, 5
s_lshr_b32 s{S_T0}, s2, 3
s_add_u32 s{S_KA}, s{S_KA}, s{S_T0}
s_mov_b32 s{S_KOFF}, s{S_W4K}
s_mov_b32 s{S_KB}, s{S_W4K}
v_mov_b32 v{V_D0+1}, v{V_D0+2}
s_mov_b32 s{SRD_K+2}, 20480
s_mov_b32 s{SRD_V+2}, {16384+10240}""")
    if "x_nocpf" not in EXP:
        flat(LC["code_pf"](72, V_T, "v[32:35]", tracked=False))
    e(f"""s_mul_i32 s{S_T0}, s2, 20480
s_mul_i32 s{S_T1}, s{S_KA}, 10240
s_waitcnt lgkmcnt(0)
s_add_u32 s{SRD_K}, s{SRD_K}, s{S_T0}
s_addc_u32 s{SRD_K+1}, s{SRD_K+1}, 0
s_add_u32 s{SRD_V}, s{SRD_V}, s{S_T1}
s_addc_u32 s{SRD_V+1}, s{SRD_V+1}, 0
s_sub_u32 s{SRD_V}, s{SRD_V}, 16384
s_subb_u32 s{SRD_V+1}, s{SRD_V+1}, 0
s_branch {L('hBr')}""")
    k.label("hB2")
    e(f"""s_mul_i32 s{S_T1}, s{S_KA}, 10240
s_cmp_eq_u32 s{S_KA}, 0
s_cselect_b32 s{S_T0}, 0, 3840
s_sub_u32 s{S_T1}, s{S_T1}, s{S_T0}
s_add_u32 s{SRD_K+2}, s{S_T0}, 10240
s_add_u32 s{SRD_K}, s64, s{S_T1}
s_addc_u32 s{SRD_K+1}, s65, 0""")
    e(f"""s_sub_u32 s{S_T0}, 32, s{S_N1}
s_add_u32 s{S_T0}, s{S_T0}, s{S_WODD}
s_lshl_b32 s{S_T0}, s{S_T0}, 1
s_sub_u32 s{S_T0}, s{S_T0}, s{S_RX}""")
    mask_code(SX, "mX")
    e(f"s_branch {L('hBr')}")
    k.label("spin")
    e(f"s_mov_b32 s{S_T1}, 0x100000")
    k.label("spinl")
    e(f"""buffer_load_dword v{V_POLL}, v{V_DBG}, {G}, 0 offen sc1
s_waitcnt vmcnt(0)
v_cmp_ne_u32 vcc, 1, v{V_POLL}
s_sub_u32 s{S_T1}, s{S_T1}, 1
s_cmp_eq_u32 s{S_T1}, 0
s_cbranch_scc1 {L('spinx')}
s_cbranch_vccz {L('spinx')}
s_sleep 2
s_branch {L('spinl')}""")
    k.label("spinx")
    e(f"buffer_inv sc1\ns_waitcnt vmcnt(0)\ns_branch {L('spinr')}")
    k.label("slowpub")
    e(f"s_mov_b32 s{S_T2}, 0x100000")
    k.label("slowl")
    e(f"""global_load_dword v3, v7, s[{P_DBG}:{P_DBG+1}] sc1
s_waitcnt vmcnt(0)
v_readfirstlane_b32 s{S_T0}, v3
s_lshr_b32 s{S_T1}, s{S_T0}, 4
s_and_b32 s{S_T1}, s{S_T1}, 0x0f0f0f0f
s_and_b32 s{S_T0}, s{S_T0}, 0x0f0f0f0f
s_add_u32 s{S_T0}, s{S_T0}, s{S_T1}
s_mul_i32 s{S_T0}, s{S_T0}, 0x01010101
s_lshr_b32 s{S_T0}, s{S_T0}, 24
s_cmp_ge_u32 s{S_T0}, 8
s_cbranch_scc1 {L('slowx')}
s_sub_u32 s{S_T2}, s{S_T2}, 1
s_cmp_eq_u32 s{S_T2}, 0
s_cbranch_scc1 {L('slowx')}
s_sleep 8
s_branch {L('slowl')}""")
    k.label("slowx")
    e(f"buffer_wbl2 sc1\ns_waitcnt vmcnt(0)\nbuffer_store_dword v23, v31, {G}, 0 offen sc1\ns_branch {L('coloc')}")
    for Z, lab in redo_sites:
        r = regs(Z); S, N, O, Lr = r["S"], r["N"], r["O"], r["L"]
        k.label(lab)
        flat(tile_max_items(S))
        e(f"v_max_f32 v{V_M}, 0, v{V_M}\nv_sub_f32 v{N}, v{N}, v{V_M}\nv_sub_f32 v{V_M+1}, 0, v{V_M}\nv_exp_f32 v{V_M+1}, v{V_M+1}")
        for i in range(32): e(f"v_sub_f32 v{S+i}, v{S+i}, v{V_M}")
        for i in range(1, 16): e(f"v_mov_b32 v{N+i}, v{N}")
        e(f"v_mul_f32 v{Lr}, v{Lr}, v{V_M+1}")
        for r0 in range(0, 64, 8):
            for i in range(8): e(f"v_accvgpr_read_b32 v{V_X+i}, a{O+r0+i}")
            for i in range(8): e(f"v_mul_f32 v{V_X+i}, v{V_X+i}, v{V_M+1}")
            for i in range(8): e(f"v_accvgpr_write_b32 a{O+r0+i}, v{V_X+i}")
        for w, ins in sm_core(Z):
            for x in ins: e(x)
        e(f"s_nop 1\ns_branch {L(lab + 'r')}")
```

```python
from asmlib import *
import layout as LY
import struct, sys, os
EXP = [a for a in sys.argv if a.startswith('x_')]
CS = 4160; UB = 4 * CS; CH = 21504
WR0 = 3 * CH
STG = 20480; NSLOT = 4
YROW = 80
LDSZ = WR0 + NSLOT * STG
S_W, S_RB, S_CB, S_KQ, S_TILE, S_CH, S_CV, S_CL = 44, 45, 46, 47, 43, 42, 41, 40
XSZ = 10240

def gen_out():
    k = Kern("out_kernel", 512, 256, 102, 256, 256, LDSZ)
    e = k.e; L = k.L
    k.stamp_base = 70
    e(f"s_cmp_ge_u32 s2, 256\ns_cbranch_scc1 {L('end')}")
    k.stamp(0)
    e(f"""s_load_dwordx2 s[14:15], s[0:1], 120
s_load_dwordx2 s[4:5], s[0:1], 40
s_load_dwordx4 s[64:67], s[0:1], 80
s_load_dwordx2 s[6:7], s[0:1], 0
s_load_dwordx2 s[8:9], s[0:1], 104
v_lshrrev_b32 v2, 6, v0
v_and_b32 v1, 63, v0
v_lshlrev_b32 v4, 4, v1
v_readfirstlane_b32 s{S_W}, v2""")
    e(f"""s_and_b32 s3, s2, 7
s_lshr_b32 s{S_KQ}, s3, 1
s_lshr_b32 s48, s2, 3
s_and_b32 s{S_RB}, s3, 1
s_lshl_b32 s{S_RB}, s{S_RB}, 3
s_and_b32 s49, s48, 7
s_add_u32 s{S_RB}, s{S_RB}, s49
s_lshr_b32 s{S_CB}, s48, 3
s_lshl_b32 s{S_TILE}, s{S_RB}, 2
s_add_u32 s{S_TILE}, s{S_TILE}, s{S_CB}""")
    for i in range(5):
        e(f"""v_add_u32 v26, {64*i}, v1
v_mul_u32_u24 v27, 0xccd, v26
v_lshrrev_b32 v27, 16, v27
v_mul_u32_u24 v28, 20, v27
v_sub_u32 v28, v26, v28
v_bfe_u32 v29, v27, 2, 1
v_lshlrev_b32 v29, 1, v29
v_xor_b32 v28, v28, v29
v_mul_u32_u24 v27, 0x500, v27
v_lshl_add_u32 v{20+i}, v28, 4, v27""")
        if i & 3: e(f"v_subrev_u32 v{20+i}, {(i&3)*1024}, v{20+i}")
    def krow(s): return (((s >> 1) & 1) + 8 * (s >> 2)) * 128 + (s & 1) * 64
    e(f"""s_lshl_b32 s52, s{S_KQ}, 8
s_lshl_b32 s3, s{S_W}, 4
s_add_u32 s52, s52, s3
s_mul_i32 s52, s52, 1280
s_mul_i32 s3, s{S_CB}, 320
s_add_u32 s52, s52, s3
s_mul_i32 s53, s{S_W}, 5120
s_add_u32 s53, s53, {WR0}
s_lshl_b32 s3, s{S_RB}, 3
s_lshl_b32 s48, s{S_W}, 1
s_add_u32 s3, s3, s48
s_lshl_b32 s3, s3, 17
s_lshl_b32 s48, s{S_KQ}, 13
s_add_u32 s3, s3, s48
s_add_u32 s3, s3, {hex(LY.CTX_OFF)}
v_add_u32 v25, s3, v4
v_add_u32 v19, 0x20000, v25
s_waitcnt lgkmcnt(0)""")
    k.srd(16, 4, 4096 * 1280)
    k.srd(20, 14, 80 << 20)
    G = "s[20:23]"
    def dmaW(s):
        slot = s % NSLOT
        out = [[f"s_add_u32 m0, s53, {slot*STG}", f"s_add_u32 s55, s52, {krow(s)*1280}",
                ("vm", "buffer_load_dwordx4 v20, s[16:19], s55 offen lds", ("W", s))]]
        for i in range(1, 4):
            out.append([("vm", f"buffer_load_dwordx4 v{20+i}, s[16:19], s55 offen offset:{i*1024} lds", ("W", s))])
        out.append([f"s_add_u32 m0, s53, {slot*STG + 4096}", "s_nop 0", ("vm", "buffer_load_dwordx4 v24, s[16:19], s55 offen lds", ("W", s))])
        return out
    def cfr(s, ks, tb): return 16 * (s % 4) + 8 * ks + 4 * tb
    def ldC(s):
        out = []
        for ks in range(2):
            for tb in range(2):
                ld = ("vm", f"buffer_load_dwordx4 {ar(cfr(s,ks,tb),4)}, v{19 if tb else 25}, {G}, s54 offen offset:{((s&1)*2+ks)*1024}", ("C", s))
                out.append(([f"s_mov_b32 s54, {(krow(s) // 128) * 4096}"] if ks == 0 and tb == 0 else []) + [ld])
        return out
    XR, GR, YR = 232, 242, 244
    def emit_item(it):
        for x in it:
            if isinstance(x, tuple):
                if x[0] == "vm": k.vmem(x[1], x[2])
                elif x[0] == "wv": k.wait(vmtags=[x[1]])
                else: e(x[1])
            else: e(x)
    for s in range(2):
        for it in dmaW(s) + ldC(s): emit_item(it)
    e(f"""s_and_b32 s3, s2, 1
s_add_u32 s{S_CV}, s{S_W}, s3
s_lshr_b32 s{S_CH}, s2, 1
s_mul_i32 s{S_CH}, s{S_CH}, 5
s_mul_i32 s3, s3, 3
s_add_u32 s{S_CH}, s{S_CH}, s3
s_add_u32 s{S_CH}, s{S_CH}, s{S_W}
s_mul_i32 s{S_CL}, s{S_W}, {CH}
s_lshl_b32 s49, s{S_CH}, 12
s_mov_b32 s63, 0xffff0000""")
    k.srd(24, 64, 640 * 4096)
    e(f"s_cmp_ge_u32 s{S_CV}, 3\ns_cbranch_scc1 {L('nocld')}")
    e(f"s_lshr_b32 s3, s{S_CH}, 1\ns_lshl_b32 s3, s3, 2\ns_add_u32 s66, s66, s3\ns_addc_u32 s67, s67, 0\ns_load_dword s60, s[66:67], 0")
    for s in range(4):
        e(f"s_add_u32 m0, s{S_CL}, {s*CS + 32}\ns_add_u32 s50, s49, {2*s}")
        for i in range(4):
            e(f"buffer_load_dwordx4 v4, s[24:27], s50 offen offset:{i*1024} lds")
    e(f"s_add_u32 m0, s{S_CL}, {UB + 512}\ns_add_u32 s50, s49, {hex(LY.UT_OFF)}")
    for i in range(4):
        e(f"buffer_load_dwordx4 v4, {G}, s50 offen offset:{i*1024} lds")
    e(f"""v_lshrrev_b32 v8, 4, v1
v_and_b32 v9, 15, v1
v_add_u32 v10, v8, v9
v_subrev_u32 v10, 16, v10
v_cmp_gt_i32 vcc, 0, v10
v_lshlrev_b32 v10, 1, v10
v_add_u32 v10, s49, v10
v_mov_b32 v7, 0x7ffffff0
v_cndmask_b32 v10, v10, v7, vcc
buffer_load_ushort v16, v10, s[24:27], 0 offen
v_mul_u32_u24 v17, {CS}, v8
v_lshlrev_b32 v13, 1, v9
v_add_u32 v17, v17, v13
v_add_u32 v17, s{S_CL}, v17
v_mov_b32 v14, 0
v_mov_b32 v15, 0
v_lshlrev_b32 v13, 3, v1
v_add_u32 v13, s{S_CL}, v13
ds_write_b64 v13, v[14:15] offset:{UB}
v_lshrrev_b32 v10, 1, v8
v_sub_u32 v10, v9, v10
v_lshlrev_b32 v10, 5, v10
v_and_b32 v11, 1, v8
v_lshlrev_b32 v12, 4, v11
v_add_u32 v10, v10, v12
v_add_u32 v10, s{S_CL}, v10
v_add_u32 v10, {UB + 512 - 448}, v10
v_add_u32 v12, 1, v9
v_and_b32 v13, 3, v12
v_sub_u32 v12, v12, v13
v_lshrrev_b32 v14, 1, v8
v_lshlrev_b32 v14, 4, v14
v_add_u32 v12, v12, v14
v_lshlrev_b32 v14, 3, v11
v_sub_u32 v12, v12, v14
v_add_u32 v12, 8, v12
v_lshlrev_b32 v12, 1, v12
v_mul_u32_u24 v13, {CS}, v13
v_add_u32 v12, v12, v13
v_add_u32 v12, s{S_CL}, v12
v_lshlrev_b32 v13, 5, v9
v_lshrrev_b32 v14, 1, v8
v_lshlrev_b32 v14, 4, v14
v_add_u32 v13, v13, v14
v_xor_b32 v14, 1, v11
v_lshlrev_b32 v14, 3, v14
v_add_u32 v13, v13, v14
v_add_u32 v13, s{S_CL}, v13
v_lshlrev_b32 v14, 5, v9
v_lshlrev_b32 v15, 3, v8
v_add_u32 v14, v14, v15
v_add_u32 v14, s{S_CL}, v14
s_waitcnt lgkmcnt(0)
s_and_b32 s3, s{S_CH}, 1
s_cmp_eq_u32 s3, 0
s_cselect_b32 s3, 16, 0
s_lshl_b32 s62, s60, s3
s_and_b32 s62, s62, 0xffff0000
s_waitcnt vmcnt({9 + 4 + 21})
s_branch {L('cld')}""")
    k.label("nocld")
    e(f"s_waitcnt vmcnt({9 + 4})")
    k.label("cld")
    for it in dmaW(2) + ldC(2) + dmaW(3): emit_item(it)
    e(f"""v_lshrrev_b32 v26, 5, v1
v_lshlrev_b32 v26, 4, v26
v_bfe_u32 v28, v1, 4, 1
v_lshl_add_u32 v26, v28, 2, v26
v_bfe_u32 v29, v1, 2, 2
v_add_u32 v26, v26, v29
v_mul_u32_u24 v26, 320, v26
v_and_b32 v29, 3, v1
v_lshl_add_u32 v26, v29, 3, v26
v_add_u32 v26, {WR0}, v26
v_lshlrev_b32 v28, 5, v28
v_sub_u32 v27, v26, v28
v_add_u32 v27, 32, v27
v_add_u32 v26, v26, v28
v_add_u32 v28, {2*STG}, v26
v_add_u32 v29, {2*STG}, v27
s_barrier""")
    k.stamp(1)
    ACC = 32; WFR = 112; CACC = 192
    def reads(T):
        s, ks = T >> 1, T & 1
        slot = s % NSLOT
        out = []
        for nb in range(10):
            for h in range(2):
                off = (slot & 1) * STG + ks * 10240 + h * 2560 + (nb & ~1) * 32
                out.append([f"ds_read_b64_tr_b16 {vr(WFR+40*(T&1)+4*nb+2*h,2)}, v{26 + (nb & 1) + 2*(slot >> 1)} offset:{off}"])
        return out
    def rnd(a, b, pk):
        e(f"v_cvt_pk_bf16_f32 v{pk}, v{a}, v{b}\nv_lshlrev_b32 v{a}, 16, v{pk}\nv_and_b32 v{b}, s63, v{pk}")
    steps = [(mu, [n for n in range(4, 8) if 8*(n+1) > mu], 1) for mu in range(64)] + [(mu, [n for n in range(4) if 8*(n+1) > mu], 0) for mu in range(32)]
    chunks = [list(range(i, i + 4)) for i in range(0, 96, 4)]
    BF, AF = 64, 192
    lastuse = {}
    for si, (mu, ns, ps) in enumerate(steps):
        for n in ns: lastuse[(ps, 8*n - mu + 7)] = si
    slot_of = {}; free = list(range(32)); loaded = set()
    def fetch_items(si, now):
        mu, ns, ps = steps[si]
        r = AF + 4 * (si % 8)
        out = [f"ds_read_b64 {ar(r,2)}, v12 offset:{64*mu}", f"ds_read_b64 {ar(r+2,2)}, v12 offset:{64*mu + 8}"]
        for key in [kk for kk in slot_of if lastuse[kk] <= now]:
            free.append(slot_of.pop(key))
        for n in ns:
            key = (ps, 8*n - mu + 7)
            if key not in loaded:
                loaded.add(key); slot_of[key] = free.pop(0); bmap[key] = slot_of[key]
                out.append(f"ds_read_b128 {ar(BF+4*bmap[key],4)}, v10 offset:{64*key[1]}")
        return out
    bmap = {}
    def conv_chunk(c):
        lab = f"cc{c+1}"
        e(f"s_cmp_ge_u32 s{S_CV}, 3\ns_cbranch_scc1 {L(lab)}")
        if c == -1:
            e("ds_write_b16 v17, v16\ns_waitcnt lgkmcnt(0)")
            for si in chunks[0]:
                for x in fetch_items(si, -1): e(x)
        else:
            for q, si in enumerate(chunks[c]):
                mu, ns, ps = steps[si]
                nxt = fetch_items(chunks[c+1][q], si - 1) if c + 1 < len(chunks) else []
                for n in ns:
                    cc = "0" if mu == 0 else vr(CACC+4*n, 4)
                    e(f"v_mfma_f32_16x16x32_bf16 {vr(CACC+4*n,4)}, {ar(AF+4*(si%8),4)}, {ar(BF+4*bmap[(ps, 8*n-mu+7)],4)}, {cc}")
                    for x in nxt[:2]: e(x)
                    nxt = nxt[2:]
                for x in nxt: e(x)
            if c == len(chunks) - 1:
                for n in range(8):
                    e(f"ds_read_b64 {ar(BF+64+2*n,2)}, v13 offset:{UB + 512 + n*512}")
        k.label(lab)
    def conv_finish():
        e(f"s_cmp_ge_u32 s{S_CV}, 3\ns_cbranch_scc1 {L('ccf')}")
        for n in range(8):
            a = CACC + 4*n; t = 224
            e(f"v_accvgpr_read_b32 v{t+6}, a{BF+64+2*n}\nv_accvgpr_read_b32 v{t+7}, a{BF+64+2*n+1}")
            e(f"""v_and_b32 v{t}, s63, v{t+7}
v_lshlrev_b32 v{t+1}, 16, v{t+7}
v_and_b32 v{t+2}, s63, v{t+6}
v_lshlrev_b32 v{t+3}, 16, v{t+6}""")
            for i in range(4): e(f"v_mul_f32 v{t+i}, s62, v{t+i}")
            rnd(t, t+1, t+4); rnd(t+2, t+3, t+5)
            rnd(a, a+1, t+4); rnd(a+2, a+3, t+5)
            for i in range(4): e(f"v_add_f32 v{t+i}, v{t+i}, v{a+i}")
            e(f"v_cvt_pk_bf16_f32 v{a}, v{t}, v{t+1}\nv_cvt_pk_bf16_f32 v{a+1}, v{t+2}, v{t+3}")
            e(f"ds_write_b64 v14, {vr(a,2)} offset:{n*512}")
        e(f"v_add_u32 v15, s{S_CL}, v4\ns_add_u32 s50, s49, {hex(LY.YT_OFF)}\ns_waitcnt lgkmcnt(0)")
        for i in range(4):
            e(f"ds_read_b128 {vr(CACC+4*i,4)}, v15 offset:{i*1024}")
        for i in range(4):
            e(f"s_waitcnt lgkmcnt({3-i})\nbuffer_store_dwordx4 {vr(CACC+4*i,4)}, v4, {G}, s50 offen offset:{i*1024} sc1")
        k.label("ccf")
    TC0 = 3
    for it in reads(0): emit_item(it)
    for T in range(32):
        s, ks = T >> 1, T & 1
        ld = []
        if ks == 1 and s < 15:
            w = k.wait_str(vmtags=[("W", s+1)])
            e((w + " lgkmcnt(0)") if w else "s_waitcnt lgkmcnt(0)")
            e("s_barrier")
            if s + 4 < 16: ld += dmaW(s + 4)
        else:
            w = k.wait_str(vmtags=[("C", s)])
            e((w + " lgkmcnt(0)") if w else "s_waitcnt lgkmcnt(0)")
            if ks == 0 and s + 3 < 16: ld += ldC(s + 3)
        if T == 26:
            ld += [[x] for x in f"""s_lshl_b32 s48, s{S_RB}, 7
s_lshl_b32 s3, s{S_KQ}, 5
s_add_u32 s48, s48, s3
s_lshr_b32 s3, s{S_W}, 1
s_lshl_b32 s3, s3, 4
s_add_u32 s3, s3, s48
v_and_b32 v20, 15, v1
v_add_u32 v20, s3, v20
v_lshlrev_b32 v21, 2, v20
v_mul_u32_u24 v20, 0x500, v20
v_lshrrev_b32 v22, 4, v1
v_lshlrev_b32 v22, 3, v22
s_and_b32 s3, s{S_W}, 1
s_lshl_b32 s56, s{S_CB}, 1
s_add_u32 s3, s3, s56
s_mul_i32 s3, s3, 160
v_add3_u32 v20, v20, v22, s3
s_mov_b32 s57, {hex(LY.G_OFF)}""".split("\n")]
        if T == 27:
            ld += [["s_mov_b32 s24, s6", "s_mov_b32 s25, s7"], [f"s_mov_b32 s26, {2048*1280}", "s_mov_b32 s27, 0x00020000"],
                   ["s_mov_b32 s28, s8", "s_mov_b32 s29, s9"], [f"s_mov_b32 s30, {2048*1280}", "s_mov_b32 s31, 0x00020000"]]
            for i in range(5):
                ld.append([("vm", f"buffer_load_dwordx2 {vr(XR+2*i,2)}, v20, s[24:27], 0 offen offset:{i*32}", "x")])
            ld.append([("vm", f"buffer_load_dword v{GR}, v21, {G}, s57 offen", "x")])
        ms = []
        for tb in range(2):
            for nb in range(10):
                a = ACC + 4 * (tb*10 + nb)
                ms.append(f"v_mfma_f32_16x16x32_bf16 {vr(a,4)}, {vr(WFR+40*(T&1)+4*nb,4)}, {ar(cfr(s,ks,tb),4)}, {'0' if T == 0 else vr(a,4)}")
        g1 = spread(20, reads(T+1), 0, 16) if T + 1 < 32 else {}
        g2 = spread(20, ld, 2, 20) if ld else {}
        for i, m in enumerate(ms):
            e(m)
            for it in g1.get(i, []): emit_item(it)
            for it in g2.get(i, []): emit_item(it)
        c = T - TC0 - 1
        if -1 <= c < len(chunks): conv_chunk(c)
        if c == len(chunks): conv_finish()
        if T == 16: k.stamp(2)
    k.stamp(3)
    OWN = WR0
    YL = WR0 + STG
    XF = LY.FL_OFF + 4096
    e(f"""s_lshl_b32 s3, s{S_TILE}, 2
s_add_u32 s55, s3, s{S_W}
s_lshl_b32 s55, s55, 2
s_add_u32 s55, s55, s{S_KQ}
s_mul_i32 s55, s55, {XSZ}
s_add_u32 s55, s55, {hex(LY.XCH_OFF)}
v_add_u32 v15, {OWN}, v4
s_cmp_eq_u32 s{S_W}, s{S_KQ}
s_cbranch_scc1 {L('own')}""")
    for rw in range(4):
        t = WFR + 12 * rw
        for i in range(5):
            a = ACC + 4 * (5*rw + i)
            e(f"v_cvt_pk_bf16_f32 v{t+2*i}, v{a}, v{a+1}\nv_cvt_pk_bf16_f32 v{t+2*i+1}, v{a+2}, v{a+3}")
        e(f"buffer_store_dwordx4 {vr(t,4)}, v4, {G}, s55 offen sc1")
        e(f"buffer_store_dwordx4 {vr(t+4,4)}, v4, {G}, s55 offen offset:1024 sc1")
        if rw == 0: e("v_lshlrev_b32 v9, 3, v1")
        e(f"buffer_store_dwordx2 {vr(t+8,2)}, v9, {G}, s55 offen offset:2048 sc1")
        e("s_add_u32 s55, s55, 2560")
    e(f"s_branch {L('sent')}")
    k.label("own")
    for b in range(20):
        e(f"ds_write_b128 v15, {vr(ACC+4*b,4)} offset:{b*1024}")
    e("v_lshlrev_b32 v9, 3, v1")
    k.label("sent")
    e(f"""s_lshl_b32 s49, s{S_TILE}, 7
s_add_u32 s49, s49, {hex(XF)}
s_lshl_b32 s50, s{S_KQ}, 2
s_add_u32 s50, s50, s49
v_mov_b32 v2, s50
v_mov_b32 v3, 1
v_min_u32 v8, 3, v1
v_lshlrev_b32 v8, 2, v8
v_add_u32 v8, s49, v8
s_add_u32 s55, s3, s{S_KQ}
s_mul_i32 s55, s55, {4*XSZ}
s_mul_i32 s50, s{S_W}, 2560
s_add_u32 s55, s55, s50
s_add_u32 s55, s55, {hex(LY.XCH_OFF)}
s_mul_i32 s50, s{S_W}, 5120
v_add_u32 v15, s50, v15
v_lshrrev_b32 v5, 2, v1
v_mul_u32_u24 v5, {YROW}, v5
v_and_b32 v6, 3, v1
v_lshlrev_b32 v6, 3, v6
s_lshr_b32 s50, s{S_W}, 1
s_lshl_b32 s50, s50, 5
s_and_b32 s51, s{S_W}, 1
s_mul_i32 s51, s51, {80*YROW}
s_add_u32 s50, s50, s51
s_add_u32 s50, s50, {YL}
v_add3_u32 v5, v5, v6, s50
v_lshrrev_b32 v14, 2, v0
v_and_b32 v16, 3, v0
s_mul_i32 s3, s{S_CB}, 160
v_add_u32 v13, s3, v14
v_lshlrev_b32 v13, 12, v13
v_lshlrev_b32 v16, 4, v16
s_lshl_b32 s3, s48, 1
s_add_u32 s3, s3, {hex(LY.YT_OFF)}
v_add3_u32 v13, v13, v16, s3
v_mul_u32_u24 v14, {YROW}, v14
v_add_u32 v14, v14, v16
v_add_u32 v14, {YL}, v14
s_mov_b32 s60, 0x40000
s_mov_b32 s61, 0x80000
v_min_u32 v7, 39, v1
v_lshlrev_b32 v7, 4, v7
s_lshl_b32 s3, s{S_CB}, 10
s_add_u32 s3, s3, {hex(LY.FL_OFF)}
v_add_u32 v7, s3, v7
s_mul_i32 s3, s{S_CH}, 0x19a
s_lshr_b32 s3, s3, 16
s_mul_i32 s3, s3, 96
s_add_u32 s3, s3, s{S_CH}
s_lshl_b32 s3, s3, 2
s_add_u32 s3, s3, {hex(LY.FL_OFF)}
v_mov_b32 v17, s3""")
    for i in range(3):
        e(f"s_add_u32 s{56+i}, s{S_KQ}, {i+1}\ns_and_b32 s{56+i}, s{56+i}, 3\ns_mul_i32 s{56+i}, s{56+i}, {XSZ}\ns_add_u32 s{56+i}, s{56+i}, s55")
    e("s_waitcnt vmcnt(0) lgkmcnt(0)")
    e(f"s_cmp_ge_u32 s{S_CV}, 3\ns_cbranch_scc1 {L('nyf')}\ns_mov_b64 exec, 1\nbuffer_store_dword v3, v17, {G}, 0 offen sc1\ns_mov_b64 exec, -1")
    k.label("nyf")
    e("s_barrier")
    k.stamp(4)
    P = 112
    for i in range(5):
        e(f"ds_read_b128 {vr(P+4*i,4)}, v15 offset:{i*1024}")
    e(f"v_sub_f32 v{GR+1}, 1.0, v{GR}\nv_cvt_pk_bf16_f32 v{GR+1}, v{GR+1}, v{GR+1}\nv_lshlrev_b32 v{GR+1}, 16, v{GR+1}")
    e(f"s_cmp_lg_u32 s{S_W}, 0\ns_cbranch_scc1 {L('xok')}\ns_mov_b64 exec, 1\nbuffer_store_dword v3, v2, {G}, 0 offen sc1\ns_mov_b64 exec, -1\ns_mov_b32 s51, 0x100000")
    k.label("xsp")
    e(f"""buffer_load_dword v10, v8, {G}, 0 offen sc1
buffer_load_dwordx4 v[224:227], v7, {G}, 0 offen sc1
s_waitcnt vmcnt(0)
v_and_b32 v224, v224, v225
v_and_b32 v226, v226, v227
v_and_b32 v224, v224, v226
v_and_b32 v10, v10, v224
v_cmp_ne_u32 vcc, 1, v10
s_sub_u32 s51, s51, 1
s_cmp_eq_u32 s51, 0
s_cbranch_scc1 {L('xok')}
s_cbranch_vccnz {L('xsp')}""")
    k.label("xok")
    e("s_barrier")
    k.stamp(5)
    for i in range(3):
        e(f"buffer_load_dwordx4 {vr(YR+4*i,4)}, v13, {G}, {['0','s60','s61'][i]} offen sc1")
    R = 136
    for s in range(3):
        r = R + 12*s
        e(f"buffer_load_dwordx4 {vr(r,4)}, v4, {G}, s{56+s} offen sc1")
        e(f"buffer_load_dwordx4 {vr(r+4,4)}, v4, {G}, s{56+s} offen offset:1024 sc1")
        e(f"buffer_load_dwordx2 {vr(r+8,2)}, v9, {G}, s{56+s} offen offset:2048 sc1")
    e("s_waitcnt vmcnt(9)")
    for i in range(3):
        e(f"ds_write_b128 v14, {vr(YR+4*i,4)} offset:{i*64*YROW}")
    e("s_waitcnt lgkmcnt(0)\ns_barrier")
    YY = 176
    for i in range(5):
        e(f"ds_read_b64_tr_b16 {vr(YY+2*i,2)}, v5 offset:{i*16*YROW}")
    e("s_waitcnt vmcnt(0)")
    for i in range(5):
        p = P + 4*i; t = 32 + 12*i
        for s in range(3):
            r = R + 12*s + 2*i
            for d in range(2):
                e(f"v_lshlrev_b32 v{t+2*d}, 16, v{r+d}\nv_and_b32 v{t+2*d+1}, s63, v{r+d}")
            for j in range(4): e(f"v_add_f32 v{p+j}, v{p+j}, v{t+j}")
        rnd(p, p+1, t+8); rnd(p+2, p+3, t+9)
        for j in range(4): e(f"v_mul_f32 v{p+j}, v{GR}, v{p+j}")
        rnd(p, p+1, t+8); rnd(p+2, p+3, t+9)
    e("s_waitcnt lgkmcnt(0)")
    for i in range(5):
        p = P + 4*i; t = 32 + 12*i
        for d in range(2):
            e(f"v_lshlrev_b32 v{t+2*d}, 16, v{XR+2*i+d}\nv_and_b32 v{t+2*d+1}, s63, v{XR+2*i+d}")
            e(f"v_lshlrev_b32 v{t+4+2*d}, 16, v{YY+2*i+d}\nv_and_b32 v{t+4+2*d+1}, s63, v{YY+2*i+d}")
        for j in range(4): e(f"v_mul_f32 v{t+j}, v{t+j}, v{t+4+j}")
        rnd(t, t+1, t+8); rnd(t+2, t+3, t+9)
        for j in range(4): e(f"v_mul_f32 v{t+j}, v{GR+1}, v{t+j}")
        rnd(t, t+1, t+8); rnd(t+2, t+3, t+9)
        for j in range(4): e(f"v_add_f32 v{t+j}, v{t+j}, v{p+j}")
        e(f"v_cvt_pk_bf16_f32 v{t+10}, v{t}, v{t+1}\nv_cvt_pk_bf16_f32 v{t+11}, v{t+2}, v{t+3}")
        e(f"buffer_store_dwordx2 {vr(t+10,2)}, v20, s[28:31], 0 offen offset:{i*32}")
    if Kern.STAMP: e("s_waitcnt vmcnt(0)")
    k.stamp(6)
    k.stamp_flush(14, LY.STAMP_OFF + 65536 * getattr(gen_out, "idx", 0), 2)
    k.label("end")
    e("s_endpgm")
    return k
```

```python
QF_OFF = 0
KVF_OFF = 16 << 20
XCH_OFF = 0
CTX_OFF = 48 << 20
UT_OFF = 64 << 20
YT_OFF = 68 << 20
G_OFF = 72 << 20
CF_OFF = (72 << 20) + 196608
FL2_OFF = (72 << 20) + 131072
FL_OFF = (72 << 20) + 65536
WOF_OFF = 74 << 20
STAMP_OFF = 73 << 20
WS_USED = 80 << 20
QSCALE = 1.4426950408889634 / (128 ** 0.5)

def dslot_map():
    m = {}
    for ks in range(8):
        blk, s = ks >> 1, ks & 1
        for hi in range(2):
            g = 2 * s + hi
            for j in range(8):
                m[(ks, hi, j)] = 32 * blk + (4 * g + j if j < 4 else 16 + 4 * g + j - 4)
    return m

def row2key(r):
    return (r & 7) | ((r & 8) << 1) | ((r & 16) >> 1)

def check(I, ws, out, torch, np, opts):
    dev = "cuda"
    def tobf(a):
        return torch.from_numpy(a.view(np.int16).copy()).view(torch.bfloat16).float().to(dev)
    def rep(name, got, exp):
        d = (got - exp)
        bad = (~torch.isfinite(got)).sum().item()
        print(f"{name}: rel_l2 {(d.norm() / exp.norm()).item():.3e} maxabs {d.abs().max().item():.3e} max|exp| {exp.abs().max().item():.3e} nonfinite {bad}")
    x = I["A_x"][0].float(); c = I["A_c_kv"][0].float()
    q = torch.einsum("qm,mhd->hqd", x, I["A_w_q"].float())
    k = torch.einsum("qm,mhd->hqd", c, I["A_w_uk"].float())
    v = torch.einsum("qm,mhd->hqd", c, I["A_w_uv"].float())
    dm = dslot_map()
    didx = torch.tensor([[[dm[(ks, hi, j)] for j in range(8)] for hi in range(2)] for ks in range(8)], device=dev)
    qf = tobf(ws[QF_OFF:QF_OFF + (16 << 20)]).view(32, 64, 8, 2, 32, 8)
    qe = (q * QSCALE).view(32, 64, 32, 128)[:, :, :, didx]
    if "noq" not in opts:
        rep("Q", qf, qe.permute(0, 1, 3, 4, 2, 5))
    kv = tobf(ws[KVF_OFF:KVF_OFF + (32 << 20)]).view(32, 32, 2, 8192)
    kf = kv[:, :, 0].reshape(32, 32, 2, 8, 2, 32, 8)
    r2k = torch.tensor([row2key(r) for r in range(32)], device=dev)
    ke = k.view(32, 32, 2, 32, 128)[:, :, :, r2k][..., didx]
    if "nokv" not in opts: rep("K", kf, ke.permute(0, 1, 2, 4, 5, 3, 6))
    vf = kv[:, :, 1].reshape(32, 32, 2, 2, 4, 2, 32, 8)
    kidx = torch.tensor([[[(4 * (2 * s + hi) + j if j < 4 else 16 + 4 * (2 * s + hi) + j - 4) for j in range(8)] for hi in range(2)] for s in range(2)], device=dev)
    ve = v.view(32, 32, 2, 32, 4, 32)[:, :, :, kidx]
    if "nokv" not in opts: rep("V", vf, ve.permute(0, 1, 2, 3, 6, 4, 7, 5))
    qb = q.bfloat16().float(); kb = k.bfloat16().float(); vb = v.bfloat16().float()
    if "spike" in opts:
        sc = torch.einsum("hqd,hkd->hqk", (q * QSCALE).bfloat16().float(), kb) * 0.6931471805599453
    else:
        sc = torch.einsum("hqd,hkd->hqk", qb, kb) * (128 ** -0.5)
    mask = torch.tril(torch.ones(2048, 2048, dtype=torch.bool, device=dev))
    sc = torch.where(mask[None], sc, torch.tensor(-1e9, device=dev))
    p = torch.softmax(sc, dim=-1)
    ctx = torch.einsum("hqk,hkd->hqd", p, vb)
    del sc, p
    cf = tobf(ws[CTX_OFF:CTX_OFF + (16 << 20)]).view(128, 32, 4, 4, 16, 8)
    cidx = torch.tensor([[16 * (g >> 1) + 4 * (g & 1) + (j if j < 4 else 8 + j - 4) for j in range(8)] for g in range(4)], device=dev)
    ce = ctx.view(32, 128, 16, 4, 32)[..., cidx]
    rep("CTX", cf, ce.permute(1, 0, 3, 4, 2, 5))
    wf = tobf(ws[WOF_OFF:WOF_OFF + 4096 * 1280]).view(8, 128, 5, 4, 16, 8)
    we = I["A_w_o"].float().view(128, 32, 8, 5, 16)[:, cidx]
    rep("WOF", wf, we.permute(3, 0, 4, 1, 5, 2))
    a = torch.einsum("hqd,hdm->qm", ctx.bfloat16().float(), I["A_w_o"].float())
    kk = I["B_k"][0]; vv = I["B_v"][0]; sk = I["B_shift_k"]
    kp = torch.nn.functional.pad(kk, (0, 0, 3, 0))
    ksh = torch.zeros_like(kk)
    for t in range(4):
        ksh = ksh + kp[t:t + 2048] * sk[:, 3 - t][None, :]
    u = (ksh * vv)
    uf = torch.fft.rfft(torch.nn.functional.pad(u.float().T.double(), (0, 2048)))
    hf = torch.fft.rfft(torch.nn.functional.pad(I["B_ssm_k"].double(), (0, 2048)))
    y = torch.fft.irfft(uf * hf, n=4096)[:, :2048].float().bfloat16()
    y2 = y + u.T * I["B_ssm_D"][:, None]
    ut = tobf(ws[UT_OFF:UT_OFF + 640 * 2048 * 2]).view(640, 256, 8).flip(-1).reshape(640, 2048)
    rep("UT", ut, u.float().T)
    yt = tobf(ws[YT_OFF:YT_OFF + 640 * 2048 * 2]).view(640, 2048)
    rep("YT", yt, y2.float())
    g = torch.sigmoid((I["A_x"][0] * I["gate_w"]).float().sum(-1).bfloat16())
    gg = torch.from_numpy(ws[G_OFF:G_OFF + 8192].view(np.float32).copy()).to(dev)
    rep("G", gg, g.float())
    b = I["A_x"][0] * y2.T
    o = g[:, None] * a.bfloat16() + (1 - g[:, None]) * b
    rep("OUT", out.to(dev), o.float())
```

```python
from asmlib import *
import layout as LY
import struct
def f32bits(x):
    return "0x%08x" % struct.unpack("<I", struct.pack("<f", x))[0]

BIG = "0x7ffffff0"

def u_stream(RA, RL, W, KUL, U, S_WG, S_W, V_LANE, srd_k, srd_v, srd_sw, srd_ut, S_M, st0, st1, KR=None, VR=None, WR=None, AO=None):
    a_main, a_halo, a_w, a_out = RA, RA+1, RA+2, RA+3
    t0, t1, t2 = RA+4, RA+5, RA+6
    if KR is None: KR, VR, WR = RL, RL+22, RL+38
    a_out2 = a_halo
    if AO: a_out, a_out2 = AO
    L = []
    def i(s): L.append([s])
    i(f"s_and_b32 s{st0}, s{S_WG}, 7")
    i(f"s_lshl_b32 s{st0}, s{st0}, 5")
    i(f"s_lshr_b32 s{st1}, s{S_WG}, 3")
    i(f"s_add_u32 s{st0}, s{st0}, s{st1}")
    i(f"s_mul_i32 s{st1}, s{S_W}, 40")
    i(f"v_add_u32 v{t1}, s{st1}, v{V_LANE}")
    i(f"v_cmp_le_u32 vcc, 40, v{V_LANE}")
    i(f"s_mul_i32 s{st1}, s{st0}, 10240")
    i(f"v_lshlrev_b32 v{a_main}, 3, v{t1}")
    i(f"v_add_u32 v{a_main}, s{st1}, v{a_main}")
    i(f"v_subrev_u32 v{a_halo}, 0xf00, v{a_main}")
    i(f"v_mov_b32 v{t2}, {BIG}")
    i(f"v_lshlrev_b32 v{a_w}, 5, v{t1}")
    i(f"v_lshlrev_b32 v{a_out}, 14, v{t1}")
    i(f"s_lshl_b32 s{st1}, s{st0}, 4")
    i(f"v_add_u32 v{a_out}, s{st1}, v{a_out}")
    for a in (a_main, a_halo, a_w, a_out):
        i(f"v_cndmask_b32 v{a}, v{a}, v{t2}, vcc")
    L.append([f"s_cmp_eq_u32 s{st0}, 0", f"s_cselect_b32 s{st1}, {BIG}, 0"])
    i(f"v_max_u32 v{a_halo}, s{st1}, v{a_halo}")
    i(f"v_min_u32 v{a_halo}, v{t2}, v{a_halo}")
    i(f"s_mov_b32 s{st0}, 5120")
    i(f"s_mov_b32 s{st1}, 8192")
    def vm(s, tag): L.append([("vm", s, tag)])
    vm(f"buffer_load_dwordx4 {vr(WR,4)}, v{a_w}, s[{srd_sw}:{srd_sw+3}], 0 offen", "u")
    vm(f"buffer_load_dwordx4 {vr(WR+4,4)}, v{a_w}, s[{srd_sw}:{srd_sw+3}], 0 offen offset:16", "u")
    for r in range(3):
        vm(f"buffer_load_dwordx2 {vr(KR+2*r,2)}, v{a_halo}, s[{srd_k}:{srd_k+3}], 0 offen offset:{r*1280}", "u")
    for r in range(8):
        so = "0" if r < 4 else f"s{st0}"
        vm(f"buffer_load_dwordx2 {vr(KR+6+2*r,2)}, v{a_main}, s[{srd_k}:{srd_k+3}], {so} offen offset:{(r&3)*1280}", "u")
        vm(f"buffer_load_dwordx2 {vr(VR+2*r,2)}, v{a_main}, s[{srd_v}:{srd_v+3}], {so} offen offset:{(r&3)*1280}", "u")
    loads = L; L = []
    L.append([("wait", "u")])
    i(f"v_add_u32 v{a_out2}, 0x1000, v{a_out}")
    for d in range(2):
        for cc in range(2):
            c = 2*d + cc
            for j in range(4):
                src = WR + 2*c + (j >> 1)
                i(f"v_and_b32 v{W+4*cc+j}, s{S_M}, v{src}" if j & 1 else f"v_lshlrev_b32 v{W+4*cc+j}, 16, v{src}")
        for r in range(11):
            i(f"v_lshlrev_b32 v{KUL[r]}, 16, v{KR+2*r+d}")
            i(f"v_and_b32 v{KUL[11+r]}, s{S_M}, v{KR+2*r+d}")
        for cc in range(2):
            c = 2*d + cc
            for sp in range(4):
                for q, s in enumerate((7-2*sp, 6-2*sp)):
                    t = U + 4 + 2*q
                    i(f"v_mul_f32 v{t}, v{W+4*cc+3}, v{KUL[11*cc+s]}")
                    i(f"v_and_b32 v{t+1}, s{S_M}, v{VR+2*s+d}" if cc else f"v_lshlrev_b32 v{t+1}, 16, v{VR+2*s+d}")
                    for tt in range(1, 4):
                        i(f"v_fmac_f32 v{t}, v{W+4*cc+3-tt}, v{KUL[11*cc+s+tt]}")
                    i(f"v_mul_f32 v{t}, v{t}, v{t+1}")
                i(f"v_cvt_pk_bf16_f32 v{U+sp if cc == 0 else U+8+sp}, v{U+4}, v{U+6}")
            vm(f"buffer_store_dwordx4 {vr(U if cc == 0 else U+8,4)}, v{a_out if cc == 0 else a_out2}, s[{srd_ut}:{srd_ut+3}], {'0' if d == 0 else 's%d' % st1} offen sc1", "st")
    return loads, L

def gate_stream(R, S_WG, S_W, V_LANE, srd_x, srd_gw, srd_g, S_M, st0):
    L = []
    def i(s): L.append([s])
    def vm(s, tag): L.append([("vm", s, tag)])
    a, ao = R, R+1
    GW, X, GU, A, T = R+2, R+7, R+17, R+28, R+30
    i(f"s_lshl_b32 s{st0}, s{S_WG}, 2")
    i(f"s_add_u32 s{st0}, s{st0}, s{S_W}")
    i(f"v_lshlrev_b32 v{a}, 2, v{V_LANE}")
    i(f"v_mov_b32 v{ao}, s{st0}")
    i(f"v_cmp_eq_u32 vcc, 63, v{V_LANE}")
    i(f"s_mul_i32 s{st0}, s{st0}, 2560")
    i(f"v_lshlrev_b32 v{ao}, 3, v{ao}")
    i(f"v_mov_b32 v{T}, {BIG}")
    i(f"v_cndmask_b32 v{ao}, v{T}, v{ao}, vcc")
    for j in range(5):
        vm(f"buffer_load_dword v{GW+j}, v{a}, s[{srd_gw}:{srd_gw+3}], 0 offen offset:{256*j}", "g")
    for r in range(2):
        for j in range(5):
            vm(f"buffer_load_dword v{X+5*r+j}, v{a}, s[{srd_x}:{srd_x+3}], s{st0} offen offset:{r*1280 + 256*j}", "g")
    loads = L; L = []
    L.append([("wait", "g")])
    def rnd(x, y, pk):
        i(f"v_cvt_pk_bf16_f32 v{pk}, v{x}, v{y}")
        i(f"v_lshlrev_b32 v{x}, 16, v{pk}")
        i(f"v_and_b32 v{y}, s{S_M}, v{pk}")
    for j in range(5):
        i(f"v_lshlrev_b32 v{GU+2*j}, 16, v{GW+j}")
        i(f"v_and_b32 v{GU+2*j+1}, s{S_M}, v{GW+j}")
    for r in range(2):
        for j in range(5):
            x = X + 5*r + j
            i(f"v_lshlrev_b32 v{T}, 16, v{x}")
            i(f"v_and_b32 v{T+1}, s{S_M}, v{x}")
            i(f"v_mul_f32 v{T}, v{T}, v{GU+2*j}")
            i(f"v_mul_f32 v{T+1}, v{T+1}, v{GU+2*j+1}")
            rnd(T, T+1, T+2)
            if j == 0:
                i(f"v_add_f32 v{A+r}, v{T}, v{T+1}")
            else:
                i(f"v_add_f32 v{A+r}, v{A+r}, v{T}")
                i(f"v_add_f32 v{A+r}, v{A+r}, v{T+1}")
    for ctl in ("row_shr:1", "row_shr:2", "row_shr:4", "row_shr:8", "row_bcast:15 row_mask:0xa", "row_bcast:31 row_mask:0xc"):
        L.append(["s_nop 1"] + [f"v_add_f32_dpp v{A+r}, v{A+r}, v{A+r} {ctl}" + (" bound_ctrl:0" if "shr" in ctl else "") for r in range(2)])
    rnd(A, A+1, T)
    for r in range(2): i(f"v_mul_f32 v{A+r}, {f32bits(-1.4426950408889634)}, v{A+r}")
    for r in range(2): i(f"v_exp_f32 v{A+r}, v{A+r}")
    i("s_nop 0")
    for r in range(2): i(f"v_add_f32 v{A+r}, 1.0, v{A+r}")
    for r in range(2): i(f"v_rcp_f32 v{A+r}, v{A+r}")
    i("s_nop 0")
    rnd(A, A+1, T)
    vm(f"buffer_store_dwordx2 {vr(A,2)}, v{ao}, s[{srd_g}:{srd_g+3}], 0 offen sc1", "st")
    return loads, L


def u_compute(KRL, VRL, WR, W, KUL, U, a_out, a_out2, srd, S_M, st1):
    L = []
    i = L.append
    for d in range(2):
        for cc in range(2):
            c = 2*d + cc
            for j in range(4):
                src = WR + 2*c + (j >> 1)
                i(f"v_and_b32 v{W+4*cc+j}, s{S_M}, v{src}" if j & 1 else f"v_lshlrev_b32 v{W+4*cc+j}, 16, v{src}")
        for r in range(11):
            i(f"v_lshlrev_b32 v{KUL[r]}, 16, v{KRL[r]+d}")
            i(f"v_and_b32 v{KUL[11+r]}, s{S_M}, v{KRL[r]+d}")
        for cc in range(2):
            for sp in range(4):
                for q, s in enumerate((7-2*sp, 6-2*sp)):
                    t = U + 4 + 2*q
                    i(f"v_mul_f32 v{t}, v{W+4*cc+3}, v{KUL[11*cc+s]}")
                    i(f"v_and_b32 v{t+1}, s{S_M}, v{VRL[s]+d}" if cc else f"v_lshlrev_b32 v{t+1}, 16, v{VRL[s]+d}")
                    for tt in range(1, 4):
                        i(f"v_fmac_f32 v{t}, v{W+4*cc+3-tt}, v{KUL[11*cc+s+tt]}")
                    i(f"v_mul_f32 v{t}, v{t}, v{t+1}")
                i(f"v_cvt_pk_bf16_f32 v{U+sp if cc == 0 else U+8+sp}, v{U+4}, v{U+6}")
            i(f"buffer_store_dwordx4 {vr(U if cc == 0 else U+8,4)}, v{a_out if cc == 0 else a_out2}, {srd}, {'0' if d == 0 else 's%d' % st1} offen")
    return L
```

```python
from asmlib import *
import layout as LY
import prep_streams as PS

def gen(k, GL, LC):
    globals().update({n: v for n, v in GL.items() if n.isupper() or n[0] in "SVP" or n in ("f32bits", "gen_main", "EXP")})
    e = k.e; L = k.L
    OUT3 = "x_out3" in EXP or "x_out4" in EXP
    G, ST, dma4, emit_item = LC["G"], LC["ST"], LC["dma4"], LC["emit_item"]
    pk = lambda r: vr(r, 2)
    ST("q0")
    e(f"""s_lshl_b32 s{S_T0}, s{S_H}, 7
s_add_u32 s{S_T0}, s{S_T0}, {hex(LY.FL2_OFF)}
v_min_u32 v{V_DBG}, 7, v1
v_lshlrev_b32 v{V_DBG}, 2, v{V_DBG}
v_add_u32 v{V_DBG}, s{S_T0}, v{V_DBG}
v_mov_b32 v{V_D0}, v24
v_mov_b32 v{V_D0+1}, v25
v_mov_b32 v{V_D0+2}, v30
v_add_u32 v{V_D0+3}, 0xc000, v24""")
    e(f"v_mov_b32 v104, v18\nv_mov_b32 v{V_M}, s{S_SCALE}\nv_mov_b32 v{V_M+1}, s{S_SCALE}")
    n = 0
    for rb in range(8):
        for ee in range(2):
            a = 128 + (rb*4 + 2*ee)*4
            t = 64 + 4 * (n % 4); n += 1
            for i in range(4): e(f"v_pk_mul_f32 {pk(a+2*i)}, {pk(a+2*i)}, {pk(V_M)}")
            for i in range(4): e(f"v_cvt_pk_bf16_f32 v{t+i}, v{a+2*i}, v{a+2*i+1}")
            e(f"ds_write_b128 v104, {vr(t,4)} offset:{(rb >> 1)*8192 + ee*2048 + (rb & 1)*256}")
    e(f"""v_and_b32 v105, 31, v1
v_lshrrev_b32 v106, 5, v1
v_lshlrev_b32 v{V_LB}, 2, v106
v_sub_u32 v{V_LB}, v105, v{V_LB}
v_lshrrev_b32 v{V_T}, 4, v105
v_lshlrev_b32 v{V_T}, 17, v{V_T}
v_lshlrev_b32 v{V_T+1}, 8, v106
v_add_u32 v{V_T}, v{V_T}, v{V_T+1}
v_and_b32 v{V_T+1}, 15, v105
v_lshlrev_b32 v{V_T+1}, 4, v{V_T+1}
v_add_u32 v{V_T}, v{V_T}, v{V_T+1}
s_lshl_b32 s{S_T0}, s{S_H}, 12
s_add_u32 s{S_T0}, s{S_T0}, {hex(LY.CTX_OFF)}
v_add_u32 v{V_CTX}, s{S_T0}, v{V_T}
v_mov_b32 v{V_BIG}, {f32bits(-1e30)}
v_mov_b32 v{V_LX}, 0
v_mov_b32 v{V_LY}, 0
v_add_u32 v{V_KA}, 0x10000, v{V_D0}
v_add_u32 v{V_VA}, 0x10000, v{V_D0}
s_lshl_b32 s{S_T0}, s{S_W}, 13
s_add_u32 s{S_T0}, s{S_T0}, {QLB}
v_add_u32 v{V_T}, s{S_T0}, v{V_D0}""")
    ST("qe")
    k.wait(vmtags=("k0",))
    e("s_waitcnt lgkmcnt(0)\ns_barrier")
    ST("attn")
    for i in range(8):
        e(f"ds_read_b128 {ar(QX+4*i,4)}, v{V_T} offset:{32768 + i*1024}")
        e(f"ds_read_b128 {vr(KF+4*i,4)}, v{V_KA} offset:{i*1024}")
    for i in range(8, 16):
        e(f"ds_read_b128 {vr(KF+4*i,4)}, v{V_KA} offset:{i*1024}")
    for i in range(8):
        e(f"ds_read_b128 {ar(QY+4*i,4)}, v{V_T} offset:{i*1024}")

    def regs(Z):
        return dict(S=SX, Q=QX, N=NX, O=OX, P=PX, L=V_LX) if Z == "X" else dict(S=SY, Q=QY, N=NY, O=OY, P=PY, L=V_LY)
    def qk(Z, zero=False):
        r = regs(Z); out = []
        for kb in range(2):
            for ks in range(8):
                c = ("0" if zero else vr(r["N"], 16)) if ks == 0 else vr(r["S"] + 16*kb, 16)
                out.append(f"v_mfma_f32_32x32x16_bf16 {vr(r['S']+16*kb,16)}, {vr(KF+4*(8*kb+ks),4)}, {ar(r['Q']+4*ks,4)}, {c}")
        return out
    def pv(Z):
        r = regs(Z); out = []
        for db in range(4):
            for s in range(4):
                out.append(f"v_mfma_f32_32x32x16_bf16 {ar(r['O']+16*db,16)}, {ar(VF+4*(4*db+s),4)}, {vr(r['P']+4*s,4)}, {ar(r['O']+16*db,16)}")
        return out
    def sm_core(Z):
        r = regs(Z); S, P = r["S"], r["P"]
        t = lambda i: V_X + (i % 8)
        it = []
        for pi in range(17):
            post = []
            if pi >= 1:
                q = pi - 1
                post.append((1, [f"v_cvt_pk_bf16_f32 v{P+q}, v{t(2*q)}, v{t(2*q+1)}"]))
                if q == 1:
                    post.append((1, [f"v_add_f32 v{V_LT}, v{t(0)}, v{t(2)}"]))
                    post.append((1, [f"v_add_f32 v{V_LT+1}, v{t(1)}, v{t(3)}"]))
                elif q >= 2:
                    post.append((1, [f"v_add_f32 v{V_LT}, v{V_LT}, v{t(2*q)}"]))
                    post.append((1, [f"v_add_f32 v{V_LT+1}, v{V_LT+1}, v{t(2*q+1)}"]))
            if pi < 16:
                it.append((2, [f"v_exp_f32 v{t(2*pi)}, v{S+2*pi}"]))
                if post: it.append(post.pop())
                it.append((2, [f"v_exp_f32 v{t(2*pi+1)}, v{S+2*pi+1}"]))
            it += post
        it.append((1, [f"v_add_f32 v{V_LT}, v{V_LT}, v{V_LT+1}"]))
        return it
    redo_sites = []
    def sm(Z, tag):
        r = regs(Z)
        it = sm_core(Z)
        lab = f"rd{Z}{tag}"
        it.append((1, [f"v_cmp_nge_f32 vcc, {THR}, v{V_LT}"]))
        it.append((1, [f"s_cbranch_vccnz {L(lab)}", ("label", lab + "r")]))
        it.append((1, [f"v_add_f32 v{r['L']}, v{r['L']}, v{V_LT}"]))
        redo_sites.append((Z, lab))
        return it
    def emit(x):
        if isinstance(x, tuple): k.label(x[1])
        else: e(x)
    def weave(mf, fixed, stream, lo=0):
        n = len(mf)
        fw = [sum(w for w, _ in fixed.get(g, [])) for g in range(n)]
        tot = sum(w for w, _ in stream) + sum(fw)
        per = tot / n
        acc = 0.0; si = 0
        for g in range(n):
            if mf[g]: e(mf[g])
            gw = 0
            for w, ins in fixed.get(g, []):
                for x in ins: emit(x)
                acc += w; gw += w
            while g >= lo and si < len(stream) and (g == n - 1 or (acc + stream[si][0] * 0.5 <= per * (g + 1) + 0.01 and gw + stream[si][0] <= 6)):
                for x in stream[si][1]: emit(x)
                acc += stream[si][0]; gw += stream[si][0]; si += 1
    def add(fx, g, ins, w=None):
        fx.setdefault(g, []).append((len(ins) if w is None else w, ins))
    def vlds(i): return 32768 + ((i & 3) * 4 + (i >> 2)) * 1024
    NV1 = 6
    def unit(m0, voff, srd, soff):
        d = dma4(m0, voff, srd, soff)
        return [[d[0][0]], [d[0][2]]] + d[1:]
    def body(tag, n16):
        mf = qk("X") + pv("X") + qk("Y") + pv("Y")
        fx = {}
        e(f"s_waitcnt lgkmcnt({NV1})")
        for i in range(NV1, 16):
            add(fx, int((i - NV1) * 1.25), [f"ds_read_b128 {ar(VF+4*i,4)}, v{V_VA} offset:{vlds(i)}"])
        add(fx, 13, [f"s_mov_b32 s{S_VOFF}, s{S_KOFF}", f"s_mov_b32 s{S_KOFF}, s{S_KB}"])
        add(fx, 14, [f"s_add_u32 s{S_KB}, s{S_KB}, {0x10000 if n16 else 0x8000}", f"s_xor_b32 s{S_DB}, s{S_DB}, 0x10000"])
        add(fx, 15, ["s_waitcnt vmcnt(0) lgkmcnt(0)", "s_barrier"])
        dv = unit(f"s_add_u32 m0, s{S_DB}, 0x8000", V_D0+2, SRD_V, S_VOFF)
        dk = unit(f"s_mov_b32 m0, s{S_DB}", V_D0, SRD_K, S_KOFF)
        if n16:
            dv += unit(f"s_add_u32 m0, s{S_DB}, 0xc000", V_D0+3, SRD_V, S_VOFF)
            dk += unit(f"s_add_u32 m0, s{S_DB}, 0x4000", V_D0+1, SRD_K, S_KOFF)
            for i, it in enumerate(dv): add(fx, 16 + (i * 13) // len(dv), it)
            for i, it in enumerate(dk): add(fx, 32 + (i * (10 if "x_kearly" in EXP else 15)) // len(dk), it)
            add(fx, 29, [f"s_cmp_eq_u32 s{S_J}, s{S_N1M2}", f"s_cselect_b32 s{S_KX}, s{S_KX2}, 0x10000"])
            add(fx, 30, [f"v_xor_b32 v{V_KA}, s{S_KX}, v{V_KA}"])
        else:
            for i, it in enumerate(dv + dk): add(fx, 16 + (i * 14) // 10, it)
            add(fx, 30, [f"v_xor_b32 v{V_KA}, 0x10000, v{V_KA}"])
        add(fx, 31, [f"v_xor_b32 v{V_VA}, 0x10000, v{V_VA}"])
        for i in range(16):
            add(fx, 32 + 2 + int(i * 1.35), [f"ds_read_b128 {vr(KF+4*i,4)}, v{V_KA} offset:{i*1024}"])
        for i in range(NV1):
            add(fx, 32 + 24 + int(i * 1.3), [f"ds_read_b128 {ar(VF+4*i,4)}, v{V_VA} offset:{vlds(i)}"])
        weave(mf[:32], {g: v for g, v in fx.items() if g < 32}, sm("Y", tag))
        if n16:
            e(f"s_bitcmp1_b32 s{S_FB}, s{S_J}\ns_cbranch_scc1 {L('hB')}")
            k.label("hBr")
        weave(mf[32:], {g - 32: v for g, v in fx.items() if g >= 32}, sm("X", tag))
        e(f"s_add_u32 s{S_J}, s{S_J}, 1\ns_bitcmp1_b32 s{S_FC}, s{S_J}")
    def tile_max_items(S):
        it = [[f"v_max3_f32 v{V_M}, v{S}, v{S+1}, v{S+2}"], [f"v_max3_f32 v{V_M+1}, v{S+3}, v{S+4}, v{S+5}"]]
        i = 6; tog = 0
        while i < 32:
            d = V_M + tog
            it.append([f"v_max3_f32 v{d}, v{d}, v{S+i}, v{S+i+1}"]); i += 2; tog ^= 1
        it.append([f"v_max_f32 v{V_M}, v{V_M}, v{V_M+1}"])
        it.append([f"v_mov_b32 v{V_M+1}, v{V_M}", "s_nop 1", f"v_permlane32_swap_b32 v{V_M+1}, v{V_M}", "s_nop 1", f"v_max_f32 v{V_M}, v{V_M}, v{V_M+1}"])
        return it
    def first_items(Z, packed):
        r = regs(Z); S, N = r["S"], r["N"]
        it = tile_max_items(S)
        it.append([f"v_sub_f32 v{N}, 0, v{V_M}"])
        it.append([f"v_sub_f32 v{N+1}, 0, v{V_M}"])
        if packed:
            for i in range(16): it.append([f"v_pk_add_f32 {pk(S+2*i)}, {pk(S+2*i)}, {pk(N)}"])
            for i in range(1, 8): it.append([f"v_pk_mov_b32 {pk(N+2*i)}, {pk(N)}, {pk(N)}"])
        else:
            for i in range(32): it.append([f"v_add_f32 v{S+i}, v{S+i}, v{N}"])
            for i in range(2, 16): it.append([f"v_mov_b32 v{N+i}, v{N}"])
        return it
    def flat(items):
        for it in items:
            for x in it: emit(x)
    def mask_code(S, nm):
        e(f"s_cmp_lt_i32 s{S_T0}, -1\ns_cbranch_scc1 {L(nm + 'r')}")
        e(f"s_cmp_eq_i32 s{S_T0}, -1\ns_cbranch_scc1 {L(nm + 'a')}")
        e(f"v_mov_b32 v{S+16}, v{V_BIG}\nv_mov_b32 v{S+17}, v{V_BIG}")
        for r in range(1, 8): e(f"v_pk_mov_b32 {pk(S+16+2*r)}, {pk(S+16)}, {pk(S+16)}")
        e(f"s_cmp_eq_i32 s{S_T0}, 0\ns_cbranch_scc1 {L(nm + 'b')}")
        for r in range(8): e(f"v_pk_mov_b32 {pk(S+2*r)}, {pk(S+16)}, {pk(S+16)}")
        e(f"s_branch {L(nm + 'r')}")
        k.label(nm + "a")
        for r in range(16):
            e(f"v_cndmask_b32 v{S+16+r}, v{V_BIG}, v{S+16+r}, s[{MASKP[r]}:{MASKP[r]+1}]")
        e(f"s_branch {L(nm + 'r')}")
        k.label(nm + "b")
        for r in range(16):
            e(f"v_cndmask_b32 v{S+r}, v{V_BIG}, v{S+r}, s[{MASKP[r]}:{MASKP[r]+1}]")
        k.label(nm + "r")

    for r in range(16):
        f = LY.row2key(8 * (r >> 2) + (r & 3))
        e(f"v_cmp_le_i32 s[{MASKP[r]}:{MASKP[r]+1}], {f}, v{V_LB}")
    e("s_waitcnt lgkmcnt(8)")
    fx = {}
    add(fx, 15, ["s_waitcnt vmcnt(0) lgkmcnt(0)", "s_barrier"])
    weave(qk("X", True), fx, [])
    fx = {}
    for i, it in enumerate(dma4(f"s_add_u32 m0, s{S_DB}, 0x8000", V_D0+2, SRD_V, S_KOFF)): add(fx, i, it)
    add(fx, 4, [f"v_xor_b32 v{V_KA}, 0x10000, v{V_KA}", f"v_xor_b32 v{V_VA}, 0x10000, v{V_VA}"])
    add(fx, 4, [f"s_cmp_lg_u32 s{S_W}, 0", f"s_cbranch_scc1 {L('nopl')}", f"buffer_load_dword v{V_POLL}, v{V_DBG}, {G}, 0 offen sc1", ("label", "nopl")])
    for i in range(11):
        add(fx, 5 + i, [f"ds_read_b128 {vr(KF+4*i,4)}, v{V_KA} offset:{i*1024}"])
    weave(qk("Y", True), fx, [(len(it), it) for it in first_items("X", False)], lo=4)
    for i in range(11, 16):
        e(f"ds_read_b128 {vr(KF+4*i,4)}, v{V_KA} offset:{i*1024}")
    e(f"""s_lshl_b32 s{S_T0}, s{S_W}, 8
s_add_u32 s{S_T0}, s{S_T0}, {16384}
v_lshlrev_b32 v{V_T}, 2, v1
v_add_u32 v{V_T}, s{S_T0}, v{V_T}
ds_write_b32 v{V_T}, v{NX}
v_xor_b32 v{V_NP}, 0x100, v{V_T}""")
    ST("s1")
    e(f"s_mov_b32 s{S_T2}, 0\ns_cmp_lg_u32 s{S_W}, 0\ns_cbranch_scc1 {L('pollok')}")
    e(f"s_waitcnt vmcnt(0)\nv_cmp_ne_u32 vcc, 1, v{V_POLL}\ns_mov_b32 s{S_T2}, 1\ns_cbranch_vccnz {L('pollok')}")
    e(f"buffer_inv sc1\ns_mov_b32 s{S_T2}, 0")
    k.label("pollok")
    for i, (w, ins) in enumerate(sm("X", "p")):
        for x in ins: emit(x)
    ST("s2")
    e(f"s_cmp_eq_u32 s{S_T2}, 1\ns_cbranch_scc1 {L('spin')}")
    k.label("spinr")
    e(f"""s_mov_b32 s{S_KOFF}, s{S_KB}
s_cmp_eq_u32 s{S_N1}, 2
s_cselect_b32 s{S_T0}, 2, 1
s_lshl_b32 s{S_T0}, s{S_T0}, 15
s_add_u32 s{S_KB}, s{S_KB}, s{S_T0}
s_mov_b32 s{S_J}, 0
s_waitcnt vmcnt(0) lgkmcnt(0)
s_barrier""")
    ST("sync")
    flat(dma4(f"s_mov_b32 m0, s{S_DB}", V_D0, SRD_K, S_KOFF))
    e(f"s_cmp_lg_u32 s{S_N1}, 2\ns_cbranch_scc1 {L('nok2')}")
    flat(dma4(f"s_add_u32 m0, s{S_DB}, 0x4000", V_D0+1, SRD_K, S_KOFF))
    k.label("nok2")
    e(f"ds_read_b32 v{V_NP}, v{V_NP}")
    for i in range(NV1):
        e(f"ds_read_b128 {ar(VF+4*i,4)}, v{V_VA} offset:{vlds(i)}")
    e(f"s_lshl_b32 s{S_T0}, s{S_N1M2}, 1\ns_sub_u32 s{S_T0}, s{S_T0}, s{S_RY}")
    mask_code(SY, "m0")
    flat(first_items("Y", True))
    e(f"s_cmp_lt_i32 s{S_N1M3}, 1\ns_cbranch_scc1 {L('loop16')}")
    k.label("loop8")
    body("a", False)
    e(f"s_cbranch_scc0 {L('loop8')}\ns_branch {L('hC')}")
    k.label("loop16")
    body("b", True)
    e(f"s_cbranch_scc0 {L('loop16')}")
    k.label("hC")
    def STJ(name, cond):
        if name in SMAP and Kern.STAMP:
            lab = k.newlabel("sj")
            e(f"s_cmp_lg_u32 s{S_J}, {cond}\ns_cbranch_scc1 {L(lab)}")
            ST(name); k.label(lab)
    STJ("inn1", f"s{S_N1}"); STJ("in1", 1); STJ("inm3", f"s{S_N1M3}")
    e(f"s_cmp_eq_u32 s{S_J}, s{S_N1}\ns_cbranch_scc1 {L('sw2')}")
    k.label("hCa")
    e(f"s_and_b32 s{S_T0}, s{S_J}, 15\ns_cmp_le_u32 s{S_T0}, 1\ns_cbranch_scc1 {L('mY')}")
    k.label("hCb")
    STJ("outn1", f"s{S_N1}"); STJ("out1", 1)
    e(f"""s_cmp_lt_i32 s{S_J}, s{S_N1M3}
s_cbranch_scc1 {L('loop8')}
s_add_u32 s{S_T0}, s{S_KA}, 0x10000
s_cmp_eq_u32 s{S_J}, s{S_N1M3}
s_cselect_b32 s{S_KB}, s{S_T0}, s{S_KB}
s_branch {L('loop16')}""")
    k.label("mY")
    e(f"""s_sub_u32 s{S_T0}, 32, s{S_N1}
s_add_u32 s{S_T0}, s{S_T0}, s{S_WODD}
s_sub_u32 s{S_T1}, s{S_N1}, 1
s_cmp_eq_u32 s{S_J}, 1
s_cselect_b32 s{S_T0}, s{S_T1}, s{S_T0}
s_lshl_b32 s{S_T0}, s{S_T0}, 1
s_sub_u32 s{S_T0}, s{S_T0}, s{S_RY}""")
    mask_code(SY, "m1")
    e(f"s_cmp_eq_u32 s{S_J}, 1\ns_cbranch_scc1 {L('hCb')}")
    ST("tail")
    for i in range(NV1, 16):
        e(f"ds_read_b128 {ar(VF+4*i,4)}, v{V_VA} offset:{vlds(i)}")
    KRL = [32 + 2*r for r in range(11)]; VRL = [54, 56, 58, 60, 62, 66, 68, 70]; WR = 72
    e(f"""s_load_dwordx2 s[4:5], s[0:1], 72
v_min_u32 v{V_T}, 39, v1
s_mul_i32 s{S_T0}, s{S_W}, 40
v_add_u32 v{V_T}, s{S_T0}, v{V_T}
v_lshlrev_b32 v{V_T+1}, 3, v{V_T}
v_lshlrev_b32 v{V_T+2}, 5, v{V_T}
v_lshlrev_b32 v2, 14, v{V_T}
s_lshl_b32 s{S_T0}, s{S_KA}, 4
s_add_u32 s{S_T0}, s{S_T0}, {hex(LY.UT_OFF)}
v_add_u32 v2, s{S_T0}, v2
v_add_u32 v3, 0x1000, v2
s_cmp_eq_u32 s{S_KA}, 0
s_cselect_b32 s{S_T0}, 0, 3840
s_cselect_b32 s{S_T1}, 16384, 0
s_add_u32 s{S_T0}, s{S_T0}, 0x10000
s_add_u32 s{S_T1}, s{S_T1}, 0x10000
v_add_u32 v{V_KA}, s{S_T0}, v{V_T+1}
v_add_u32 v{V_NP}, s{S_T1}, v{V_T+1}
v_add_u32 v{V_T+1}, {98304}, v{V_T+1}
s_mov_b32 s6, 5120
s_mov_b32 s7, 0x00020000
s_mov_b32 s{S_DS}, 8192""")
    if not OUT3:
        e(f"""v_bfe_u32 v5, v1, 4, 1
v_lshlrev_b32 v5, 2, v5
v_bfe_u32 v6, v1, 2, 2
v_add_u32 v5, v5, v6
v_mul_u32_u24 v5, 0x500, v5
v_and_b32 v6, 3, v1
v_lshl_add_u32 v5, v6, 3, v5
v_lshrrev_b32 v6, 5, v1
v_lshl_add_u32 v5, v6, 5, v5
s_mul_i32 s{S_T0}, s{S_W}, 320
v_add_u32 v5, s{S_T0}, v5""")
        e(f"""s_lshr_b32 s{S_T0}, s2, 1
s_lshl_b32 s{S_T1}, s{S_W}, 8
s_add_u32 s{S_T0}, s{S_T0}, s{S_T1}
s_mul_i32 s{S_T0}, s{S_T0}, 5120
s_and_b32 s{S_T1}, s2, 1
s_lshl_b32 s{S_T1}, s{S_T1}, 9
s_add_u32 s{S_T0}, s{S_T0}, s{S_T1}
s_add_u32 s{S_T0}, s{S_T0}, {hex(LY.WOF_OFF)}
v_and_b32 v7, 31, v1
v_lshlrev_b32 v7, 4, v7
v_add_u32 v7, s{S_T0}, v7
v_mul_u32_u24 v{V_LB}, {128*5120 - 4096}, v6
v_add_u32 v{V_LB}, v{V_LB}, v7
v_lshl_add_u32 v7, v6, 10, v7
s_mov_b32 s8, 4096
s_mov_b32 s9, {128*5120}""")
    st = sm("Y", "e")
    e("s_waitcnt vmcnt(0) lgkmcnt(0)\ns_barrier")
    fx = {}
    rd = [f"buffer_load_dwordx4 {vr(WR,4)}, v{V_T+2}, s[4:7], 0 offen", f"buffer_load_dwordx4 {vr(WR+4,4)}, v{V_T+2}, s[4:7], 0 offen offset:16"]
    for r in range(3): rd.append(f"ds_read_b64 {pk(KRL[r])}, v{V_NP} offset:{r*1280}")
    for r in range(8):
        rd.append(f"ds_read_b64 {pk(KRL[3+r])}, v{V_KA} offset:{r*1280}")
        rd.append(f"ds_read_b64 {pk(VRL[r])}, v{V_T+1} offset:{r*1280}")
    WOR = QX
    for i in range(0 if OUT3 else 5):
        for h in range(2):
            rd.append(f"ds_read_b64_tr_b16 {ar(WOR+4*i+2*h,2)}, v5 offset:{h*8*1280 + i*64}")
    for i, x in enumerate(rd): add(fx, i // 2, [x])
    weave(pv("X"), fx, st)
    MB = lambda wreg: f"s_and_b32 s{S_T0}, {wreg}, 1\ns_mul_i32 s{S_T0}, s{S_T0}, {18*1024}\ns_lshr_b32 s{S_T1}, {wreg}, 1\ns_mul_i32 s{S_T1}, s{S_T1}, {88*1024}\ns_add_u32 s{S_T0}, s{S_T0}, s{S_T1}\ns_add_u32 s{S_T0}, s{S_T0}, {24*1024}"
    e(MB(f"s{S_W}") + f"\nv_add_u32 v{V_T}, s{S_T0}, v{V_D0}\nv_mov_b32 v{NY+1}, v{V_LY}")
    e(f"ds_write_b64 v{V_T}, {pk(NY)} offset:{16*1024}")
    fx = {}
    for r in range(64):
        add(fx, 1 + r // 5 if r < 48 else 11 + (r - 48) // 4, [f"v_accvgpr_read_b32 v{192+r}, a{OX+r}"])
    for db in range(3):
        for q in range(4):
            add(fx, min(15, 4*db + 7 + q), [f"ds_write_b128 v{V_T}, {ar(OY+16*db+4*q,4)} offset:{(4*db+q)*1024}"])
    weave(pv("Y"), fx, [])
    e(f"s_xor_b32 s{S_T2}, s{S_W}, 1\n" + MB(f"s{S_T2}") + f"\nv_add_u32 v{V_T+1}, s{S_T0}, v{V_D0}\ns_lshl_b32 s{S_CTXB}, s{S_RX}, 18\ns_nop 1")
    for q in range(4):
        e(f"ds_write_b128 v{V_T}, {ar(OY+48+4*q,4)} offset:{(12+q)*1024}")
    e("s_waitcnt vmcnt(0) lgkmcnt(15)")
    for i, (vo, so, imm) in enumerate([] if OUT3 else [(7, "0", 0), (7, "0", 2048), (V_LB, "s8", 0), (7, "s9", 1024), (7, "s9", 3072)]):
        e(f"buffer_store_dwordx4 {ar(WOR+4*i,4)}, v{vo}, {G}, {so} offen offset:{imm}")
    uc = PS.u_compute(KRL, VRL, WR, 96, list(range(104, 126)), 84, 2, 3, G, S_M, S_DS)
    for x in uc[:100]: e(x)
    e("s_waitcnt lgkmcnt(0)\ns_barrier")
    e(f"ds_read_b64 {pk(NY)}, v{V_T+1} offset:{16*1024}")
    for i in range(16):
        e(f"ds_read_b128 {vr(128+4*i,4)}, v{V_T+1} offset:{i*1024}")
    for x in uc[100:]: e(x)
    e("s_waitcnt lgkmcnt(0)")
    A, D, B, C = 24, 25, 26, 28
    e(f"""v_min_f32 v{A}, v{NX}, v{NY}
v_sub_f32 v{B}, v{A}, v{NX}
v_sub_f32 v{C}, v{A}, v{NY}
v_exp_f32 v{B}, v{B}
v_exp_f32 v{C}, v{C}
s_nop 0
v_mul_f32 v{V_LX}, v{V_LX}, v{B}
v_fma_f32 v{V_LX}, v{NY+1}, v{C}, v{V_LX}
v_mov_b32 v{D}, v{V_LX}
s_nop 1
v_permlane32_swap_b32 v{D}, v{V_LX}
s_nop 1
v_add_f32 v{D}, v{D}, v{V_LX}
v_rcp_f32 v{D}, v{D}
s_nop 0
v_mul_f32 v{B}, v{B}, v{D}
v_mul_f32 v{C}, v{C}, v{D}
v_mov_b32 v{B+1}, v{B}
v_mov_b32 v{C+1}, v{C}""")
    for i in range(32): e(f"v_pk_mul_f32 {pk(192+2*i)}, {pk(192+2*i)}, {pk(B)}")
    for db in range(4):
        for s in range(2):
            t = V_E + 4 * (2*db+s)
            b = 16*db + 8*s
            for i in range(4): e(f"v_pk_fma_f32 {pk(192+b+2*i)}, {pk(128+b+2*i)}, {pk(C)}, {pk(192+b+2*i)}")
            for i in range(4): e(f"v_cvt_pk_bf16_f32 v{t+i}, v{192+b+2*i}, v{192+b+2*i+1}")
            e(f"buffer_store_dwordx4 {vr(t,4)}, v{V_CTX}, {G}, s{S_CTXB} offen offset:{db*1024 + s*512}{NTC}")
    if Kern.STAMP: e("s_waitcnt vmcnt(0)")
    ST("end")
    k.stamp_flush(SRD_G, LY.STAMP_OFF + 65536 * getattr(gen_main, "idx", 0), 2)
    k.label("end")
    e("s_endpgm")

    k.label("sw2")
    D = V_M
    e(f"""v_mov_b32 v{D}, v{V_LB}
v_mov_b32 v{V_T}, 0
v_mov_b32 v{V_T+1}, 0
v_permlane32_swap_b32 v{D}, v{V_LB}
v_mov_b32 v{V_T+2}, 0
v_mov_b32 v{V_T+3}, 0
v_add_f32 v{D}, v{D}, v{V_LB}
v_rcp_f32 v{D}, v{D}
s_nop 1
v_mov_b32 v{D+1}, v{D}""")
    for db in range(4):
        t = V_E + 16 * (db % 2)
        for i in range(16): e(f"v_accvgpr_read_b32 v{t+i}, a{OY+16*db+i}")
        e(f"v_mfma_f32_32x32x16_bf16 {ar(OY+16*db,16)}, {vr(V_T,4)}, {vr(V_T,4)}, 0")
        for i in range(8): e(f"v_pk_mul_f32 {pk(t+2*i)}, {pk(t+2*i)}, {pk(D)}")
        for s in range(2):
            o = PY + 8 * (db % 2) + 4 * s
            for i in range(4): e(f"v_cvt_pk_bf16_f32 v{o+i}, v{t+8*s+2*i}, v{t+8*s+2*i+1}")
            e(f"buffer_store_dwordx4 {vr(o,4)}, v{V_CTX}, {G}, s{S_CTXB} offen offset:{db*1024 + s*512}{NTC}")
    e(f"s_branch {L('hCa')}")
    k.label("hB")
    e(f"s_add_u32 s{S_T0}, s{S_J}, 1\ns_cmp_lg_u32 s{S_T0}, s{S_N1}\ns_cbranch_scc1 {L('hB1')}")
    e(f"s_xor_b32 s{S_T0}, s{S_W}, 1\ns_lshl_b32 s{S_T0}, s{S_T0}, 13\ns_add_u32 s{S_T0}, s{S_T0}, {QL}\nv_add_u32 v{V_T}, s{S_T0}, v{V_D0}")
    for i in range(8):
        e(f"ds_read_b128 {ar(QY+4*i,4)}, v{V_T} offset:{i*1024}")
    e(f"v_mov_b32 v{V_LB}, v{V_LY}\nv_mov_b32 v{V_LY}, 0\nv_mov_b32 v{NY}, v{V_NP}\nv_mov_b32 v{NY+1}, v{V_NP}")
    for r in range(1, 8): e(f"v_pk_mov_b32 {pk(NY+2*r)}, {pk(NY)}, {pk(NY)}")
    e(f"""s_lshl_b32 s{S_CTXB}, s{S_RY}, 18
s_xor_b32 s{S_RY}, s{S_RX}, 1
s_lshl_b32 s{S_T0}, s{S_WODD}, 14
v_add_u32 v{V_VA}, s{S_T0}, v{V_VA}
s_waitcnt lgkmcnt(0)""")
    k.label("hB1")
    e(f"s_cmp_lt_u32 s{S_J}, 14\ns_cbranch_scc1 {L('hBr')}")
    e(f"s_cmp_eq_u32 s{S_J}, 15\ns_cbranch_scc1 {L('hB2')}")
    e(f"""s_load_dwordx2 s[{SRD_K}:{SRD_K+1}], s[0:1], 40
s_load_dwordx2 s[{SRD_V}:{SRD_V+1}], s[0:1], 64
s_load_dwordx2 s[64:65], s[0:1], 56
s_and_b32 s{S_KA}, s2, 7
s_lshl_b32 s{S_KA}, s{S_KA}, 5
s_lshr_b32 s{S_T0}, s2, 3
s_add_u32 s{S_KA}, s{S_KA}, s{S_T0}
s_mov_b32 s{S_KOFF}, s{S_W4K}
s_mov_b32 s{S_KB}, s{S_W4K}
v_mov_b32 v{V_D0+1}, v{V_D0+2}
s_mov_b32 s{SRD_K+2}, 20480
s_mov_b32 s{SRD_V+2}, {16384+10240}""")
    if "x_nocpf" not in EXP:
        flat(LC["code_pf"](72, V_T, "v[32:35]", tracked=False))
    e(f"""s_mul_i32 s{S_T0}, s2, 20480
s_mul_i32 s{S_T1}, s{S_KA}, 10240
s_waitcnt lgkmcnt(0)
s_add_u32 s{SRD_K}, s{SRD_K}, s{S_T0}
s_addc_u32 s{SRD_K+1}, s{SRD_K+1}, 0
s_add_u32 s{SRD_V}, s{SRD_V}, s{S_T1}
s_addc_u32 s{SRD_V+1}, s{SRD_V+1}, 0
s_sub_u32 s{SRD_V}, s{SRD_V}, 16384
s_subb_u32 s{SRD_V+1}, s{SRD_V+1}, 0
s_load_dwordx2 s[72:73], s[0:1], 80
s_mov_b32 s74, {640*4096}
s_mul_i32 s{S_T0}, s2, 12288
s_mul_i32 s{S_T1}, s{S_W}, 3072
s_add_u32 s{S_T0}, s{S_T0}, s{S_T1}
s_waitcnt lgkmcnt(0)
buffer_load_dwordx4 v[32:35], v{V_D0}, s[72:75], s{S_T0} offen
buffer_load_dwordx4 v[32:35], v{V_D0}, s[72:75], s{S_T0} offen offset:1024
buffer_load_dwordx4 v[32:35], v{V_D0}, s[72:75], s{S_T0} offen offset:2048
s_branch {L('hBr')}""")
    k.label("hB2")
    e(f"""s_mul_i32 s{S_T1}, s{S_KA}, 10240
s_cmp_eq_u32 s{S_KA}, 0
s_cselect_b32 s{S_T0}, 0, 3840
s_sub_u32 s{S_T1}, s{S_T1}, s{S_T0}
s_add_u32 s{SRD_K+2}, s{S_T0}, 10240
s_add_u32 s{SRD_K}, s64, s{S_T1}
s_addc_u32 s{SRD_K+1}, s65, 0""")
    e(f"""s_sub_u32 s{S_T0}, 32, s{S_N1}
s_add_u32 s{S_T0}, s{S_T0}, s{S_WODD}
s_lshl_b32 s{S_T0}, s{S_T0}, 1
s_sub_u32 s{S_T0}, s{S_T0}, s{S_RX}""")
    mask_code(SX, "mX")
    e(f"s_branch {L('hBr')}")
    k.label("spin")
    e(f"s_mov_b32 s{S_T1}, 0x100000")
    k.label("spinl")
    e(f"""buffer_load_dword v{V_POLL}, v{V_DBG}, {G}, 0 offen sc1
s_waitcnt vmcnt(0)
v_cmp_ne_u32 vcc, 1, v{V_POLL}
s_sub_u32 s{S_T1}, s{S_T1}, 1
s_cmp_eq_u32 s{S_T1}, 0
s_cbranch_scc1 {L('spinx')}
s_cbranch_vccz {L('spinx')}
s_sleep 2
s_branch {L('spinl')}""")
    k.label("spinx")
    e(f"buffer_inv sc1\ns_waitcnt vmcnt(0)\ns_branch {L('spinr')}")
    k.label("slowpub")
    e(f"s_mov_b32 s{S_T2}, 0x100000")
    k.label("slowl")
    e(f"""global_load_dword v3, v7, s[{P_DBG}:{P_DBG+1}] sc1
s_waitcnt vmcnt(0)
v_readfirstlane_b32 s{S_T0}, v3
s_lshr_b32 s{S_T1}, s{S_T0}, 4
s_and_b32 s{S_T1}, s{S_T1}, 0x0f0f0f0f
s_and_b32 s{S_T0}, s{S_T0}, 0x0f0f0f0f
s_add_u32 s{S_T0}, s{S_T0}, s{S_T1}
s_mul_i32 s{S_T0}, s{S_T0}, 0x01010101
s_lshr_b32 s{S_T0}, s{S_T0}, 24
s_cmp_ge_u32 s{S_T0}, 8
s_cbranch_scc1 {L('slowx')}
s_sub_u32 s{S_T2}, s{S_T2}, 1
s_cmp_eq_u32 s{S_T2}, 0
s_cbranch_scc1 {L('slowx')}
s_sleep 8
s_branch {L('slowl')}""")
    k.label("slowx")
    e(f"buffer_wbl2 sc1\ns_waitcnt vmcnt(0)\nbuffer_store_dword v23, v31, {G}, 0 offen sc1\ns_branch {L('coloc')}")
    for Z, lab in redo_sites:
        r = regs(Z); S, N, O, Lr = r["S"], r["N"], r["O"], r["L"]
        k.label(lab)
        flat(tile_max_items(S))
        e(f"v_max_f32 v{V_M}, 0, v{V_M}\nv_sub_f32 v{N}, v{N}, v{V_M}\nv_sub_f32 v{V_M+1}, 0, v{V_M}\nv_exp_f32 v{V_M+1}, v{V_M+1}")
        for i in range(32): e(f"v_sub_f32 v{S+i}, v{S+i}, v{V_M}")
        for i in range(1, 16): e(f"v_mov_b32 v{N+i}, v{N}")
        e(f"v_mul_f32 v{Lr}, v{Lr}, v{V_M+1}")
        for r0 in range(0, 64, 8):
            for i in range(8): e(f"v_accvgpr_read_b32 v{V_X+i}, a{O+r0+i}")
            for i in range(8): e(f"v_mul_f32 v{V_X+i}, v{V_X+i}, v{V_M+1}")
            for i in range(8): e(f"v_accvgpr_write_b32 a{O+r0+i}, v{V_X+i}")
        for w, ins in sm_core(Z):
            for x in ins: e(x)
        e(f"s_nop 1\ns_branch {L(lab + 'r')}")
```

```python
from asmlib import *
import layout as LY
import struct, sys, os
EXP = [a for a in sys.argv if a.startswith('x_')]
CS = 4160; UB = 4 * CS; CH = 21504
WR0 = 3 * CH
STG = 20480; NSLOT = 4
YROW = 80
LDSZ = WR0 + NSLOT * STG
S_W, S_RB, S_CB, S_KQ, S_TILE, S_CH, S_CV, S_CL = 44, 45, 46, 47, 43, 42, 41, 40
XSZ = 10240

def gen_out():
    k = Kern("out_kernel", 512, 256, 102, 256, 256, LDSZ)
    e = k.e; L = k.L
    k.stamp_base = 70
    e(f"s_cmp_ge_u32 s2, 256\ns_cbranch_scc1 {L('end')}")
    k.stamp(0)
    e(f"""s_load_dwordx2 s[14:15], s[0:1], 120
s_load_dwordx2 s[4:5], s[0:1], 40
s_load_dwordx4 s[64:67], s[0:1], 80
s_load_dwordx2 s[6:7], s[0:1], 0
s_load_dwordx2 s[8:9], s[0:1], 104
v_lshrrev_b32 v2, 6, v0
v_and_b32 v1, 63, v0
v_lshlrev_b32 v4, 4, v1
v_readfirstlane_b32 s{S_W}, v2""")
    e(f"""s_and_b32 s3, s2, 7
s_lshr_b32 s{S_KQ}, s3, 1
s_lshr_b32 s48, s2, 3
s_and_b32 s{S_RB}, s3, 1
s_lshl_b32 s{S_RB}, s{S_RB}, 3
s_and_b32 s49, s48, 7
s_add_u32 s{S_RB}, s{S_RB}, s49
s_lshr_b32 s{S_CB}, s48, 3
s_lshl_b32 s{S_TILE}, s{S_RB}, 2
s_add_u32 s{S_TILE}, s{S_TILE}, s{S_CB}""")
    for i in range(5):
        e(f"""v_add_u32 v26, {64*i}, v1
v_mul_u32_u24 v27, 0xccd, v26
v_lshrrev_b32 v27, 16, v27
v_mul_u32_u24 v28, 20, v27
v_sub_u32 v28, v26, v28
v_bfe_u32 v29, v27, 2, 1
v_lshlrev_b32 v29, 1, v29
v_xor_b32 v28, v28, v29
v_mul_u32_u24 v27, 0x500, v27
v_lshl_add_u32 v{20+i}, v28, 4, v27""")
        if i & 3: e(f"v_subrev_u32 v{20+i}, {(i&3)*1024}, v{20+i}")
    def krow(s): return (((s >> 1) & 1) + 8 * (s >> 2)) * 128 + (s & 1) * 64
    e(f"""s_lshl_b32 s52, s{S_KQ}, 8
s_lshl_b32 s3, s{S_W}, 4
s_add_u32 s52, s52, s3
s_mul_i32 s52, s52, 1280
s_mul_i32 s3, s{S_CB}, 320
s_add_u32 s52, s52, s3
s_mul_i32 s53, s{S_W}, 5120
s_add_u32 s53, s53, {WR0}
s_lshl_b32 s3, s{S_RB}, 3
s_lshl_b32 s48, s{S_W}, 1
s_add_u32 s3, s3, s48
s_lshl_b32 s3, s3, 17
s_lshl_b32 s48, s{S_KQ}, 13
s_add_u32 s3, s3, s48
s_add_u32 s3, s3, {hex(LY.CTX_OFF)}
v_add_u32 v25, s3, v4
v_add_u32 v19, 0x20000, v25
s_waitcnt lgkmcnt(0)""")
    k.srd(16, 4, 4096 * 1280)
    k.srd(20, 14, 80 << 20)
    G = "s[20:23]"
    def dmaW(s):
        slot = s % NSLOT
        out = [[f"s_add_u32 m0, s53, {slot*STG}", f"s_add_u32 s55, s52, {krow(s)*1280}",
                ("vm", "buffer_load_dwordx4 v20, s[16:19], s55 offen lds", ("W", s))]]
        for i in range(1, 4):
            out.append([("vm", f"buffer_load_dwordx4 v{20+i}, s[16:19], s55 offen offset:{i*1024} lds", ("W", s))])
        out.append([f"s_add_u32 m0, s53, {slot*STG + 4096}", "s_nop 0", ("vm", "buffer_load_dwordx4 v24, s[16:19], s55 offen lds", ("W", s))])
        return out
    def cfr(s, ks, tb): return 16 * (s % 4) + 8 * ks + 4 * tb
    def ldC(s):
        out = []
        for ks in range(2):
            for tb in range(2):
                ld = ("vm", f"buffer_load_dwordx4 {ar(cfr(s,ks,tb),4)}, v{19 if tb else 25}, {G}, s54 offen offset:{((s&1)*2+ks)*1024}", ("C", s))
                out.append(([f"s_mov_b32 s54, {(krow(s) // 128) * 4096}"] if ks == 0 and tb == 0 else []) + [ld])
        return out
    XR, GR, YR = 232, 242, 244
    nvm = [0]
    def emit_item(it):
        for x in it:
            if isinstance(x, tuple):
                if x[0] == "vm": k.vmem(x[1], x[2]); nvm[0] += 1
                elif x[0] == "wv": k.wait(vmtags=[x[1]])
                else: e(x[1])
            else: e(x)
    for s in range(2):
        for it in dmaW(s) + ldC(s): emit_item(it)
    cmark = [0]
    def conv_load():
        e(f"""s_and_b32 s3, s2, 1
s_add_u32 s{S_CV}, s{S_W}, s3
s_lshr_b32 s{S_CH}, s2, 1
s_mul_i32 s{S_CH}, s{S_CH}, 5
s_mul_i32 s3, s3, 3
s_add_u32 s{S_CH}, s{S_CH}, s3
s_add_u32 s{S_CH}, s{S_CH}, s{S_W}
s_mul_i32 s{S_CL}, s{S_W}, {CH}
s_lshl_b32 s49, s{S_CH}, 12
s_mov_b32 s63, 0xffff0000""")
        k.srd(24, 64, 640 * 4096)
        e(f"s_cmp_ge_u32 s{S_CV}, 3\ns_cbranch_scc1 {L('nocld')}")
        e(f"s_lshr_b32 s3, s{S_CH}, 1\ns_lshl_b32 s3, s3, 2\ns_add_u32 s66, s66, s3\ns_addc_u32 s67, s67, 0\ns_load_dword s60, s[66:67], 0")
        for s in range(4):
            e(f"s_add_u32 m0, s{S_CL}, {s*CS + 32}\ns_add_u32 s50, s49, {2*s}")
            for i in range(4):
                e(f"buffer_load_dwordx4 v4, s[24:27], s50 offen offset:{i*1024} lds")
        e(f"s_add_u32 m0, s{S_CL}, {UB + 512}\ns_add_u32 s50, s49, {hex(LY.UT_OFF)}")
        for i in range(4):
            e(f"buffer_load_dwordx4 v4, {G}, s50 offen offset:{i*1024} lds")
        e(f"""v_lshrrev_b32 v8, 4, v1
v_and_b32 v9, 15, v1
v_add_u32 v10, v8, v9
v_subrev_u32 v10, 16, v10
v_cmp_gt_i32 vcc, 0, v10
v_lshlrev_b32 v10, 1, v10
v_add_u32 v10, s49, v10
v_mov_b32 v7, 0x7ffffff0
v_cndmask_b32 v10, v10, v7, vcc
buffer_load_ushort v16, v10, s[24:27], 0 offen
v_mul_u32_u24 v17, {CS}, v8
v_lshlrev_b32 v13, 1, v9
v_add_u32 v17, v17, v13
v_add_u32 v17, s{S_CL}, v17
v_mov_b32 v14, 0
v_mov_b32 v15, 0
v_lshlrev_b32 v13, 3, v1
v_add_u32 v13, s{S_CL}, v13
ds_write_b64 v13, v[14:15] offset:{UB}
v_lshrrev_b32 v10, 1, v8
v_sub_u32 v10, v9, v10
v_lshlrev_b32 v10, 5, v10
v_and_b32 v11, 1, v8
v_lshlrev_b32 v12, 4, v11
v_add_u32 v10, v10, v12
v_add_u32 v10, s{S_CL}, v10
v_add_u32 v10, {UB + 512 - 448}, v10
v_add_u32 v12, 1, v9
v_and_b32 v13, 3, v12
v_sub_u32 v12, v12, v13
v_lshrrev_b32 v14, 1, v8
v_lshlrev_b32 v14, 4, v14
v_add_u32 v12, v12, v14
v_lshlrev_b32 v14, 3, v11
v_sub_u32 v12, v12, v14
v_add_u32 v12, 8, v12
v_lshlrev_b32 v12, 1, v12
v_mul_u32_u24 v13, {CS}, v13
v_add_u32 v12, v12, v13
v_add_u32 v12, s{S_CL}, v12
v_lshlrev_b32 v13, 5, v9
v_lshrrev_b32 v14, 1, v8
v_lshlrev_b32 v14, 4, v14
v_add_u32 v13, v13, v14
v_xor_b32 v14, 1, v11
v_lshlrev_b32 v14, 3, v14
v_add_u32 v13, v13, v14
v_add_u32 v13, s{S_CL}, v13
v_lshlrev_b32 v14, 5, v9
v_lshlrev_b32 v15, 3, v8
v_add_u32 v14, v14, v15
v_add_u32 v14, s{S_CL}, v14
s_nop 0""")
        k.label("nocld")
        cmark[0] = nvm[0]
    e(f"""v_lshrrev_b32 v26, 5, v1
v_lshlrev_b32 v26, 4, v26
v_bfe_u32 v28, v1, 4, 1
v_lshl_add_u32 v26, v28, 2, v26
v_bfe_u32 v29, v1, 2, 2
v_add_u32 v26, v26, v29
v_mul_u32_u24 v26, 320, v26
v_and_b32 v29, 3, v1
v_lshl_add_u32 v26, v29, 3, v26
v_add_u32 v26, {WR0}, v26
v_lshlrev_b32 v28, 5, v28
v_sub_u32 v27, v26, v28
v_add_u32 v27, 32, v27
v_add_u32 v26, v26, v28
v_add_u32 v28, {2*STG}, v26
v_add_u32 v29, {2*STG}, v27""")
    for it in dmaW(2) + ldC(2): emit_item(it)
    k.wait(vmtags=[("W", 0)])
    e("s_barrier")
    k.stamp(1)
    ACC = 32; WFR = 112; CACC = 192
    def reads(T):
        s, ks = T >> 1, T & 1
        slot = s % NSLOT
        out = []
        for nb in range(10):
            for h in range(2):
                off = (slot & 1) * STG + ks * 10240 + h * 2560 + (nb & ~1) * 32
                out.append([f"ds_read_b64_tr_b16 {vr(WFR+40*(T&1)+4*nb+2*h,2)}, v{26 + (nb & 1) + 2*(slot >> 1)} offset:{off}"])
        return out
    def rnd(a, b, pk):
        e(f"v_cvt_pk_bf16_f32 v{pk}, v{a}, v{b}\nv_lshlrev_b32 v{a}, 16, v{pk}\nv_and_b32 v{b}, s63, v{pk}")
    steps = [(mu, [n for n in range(4, 8) if 8*(n+1) > mu], 1) for mu in range(64)] + [(mu, [n for n in range(4) if 8*(n+1) > mu], 0) for mu in range(32)]
    chunks = []; cur = []; cnt = 0
    for si, (mu, ns, ps) in enumerate(steps):
        if cur and (cnt + len(ns) > 16 or len(cur) == 8):
            chunks.append(cur); cur = []; cnt = 0
        cur.append(si); cnt += len(ns)
    chunks.append(cur)
    aslot = {}
    for ci, ch in enumerate(chunks):
        for q, si in enumerate(ch): aslot[si] = 8 * (ci & 1) + q
    BF, AF = 64, 192
    lastuse = {}
    for si, (mu, ns, ps) in enumerate(steps):
        for n in ns: lastuse[(ps, 8*n - mu + 7)] = si
    slot_of = {}; free = list(range(32)); loaded = set()
    def fetch_items(si, now):
        mu, ns, ps = steps[si]
        r = AF + 4 * aslot[si]
        out = [f"ds_read_b64 {ar(r,2)}, v12 offset:{64*mu}", f"ds_read_b64 {ar(r+2,2)}, v12 offset:{64*mu + 8}"]
        for key in [kk for kk in slot_of if lastuse[kk] <= now]:
            free.append(slot_of.pop(key))
        for n in ns:
            key = (ps, 8*n - mu + 7)
            if key not in loaded:
                loaded.add(key); slot_of[key] = free.pop(0); bmap[key] = slot_of[key]
                out.append(f"ds_read_b128 {ar(BF+4*bmap[key],4)}, v10 offset:{64*key[1]}")
        return out
    bmap = {}
    def conv_chunk(c):
        lab = f"cc{c+1}"
        e(f"s_cmp_ge_u32 s{S_CV}, 3\ns_cbranch_scc1 {L(lab)}")
        if c == -1:
            e(f"""s_waitcnt vmcnt({nvm[0] - cmark[0]})
ds_write_b16 v17, v16
s_and_b32 s3, s{S_CH}, 1
s_cmp_eq_u32 s3, 0
s_cselect_b32 s3, 16, 0
s_lshl_b32 s62, s60, s3
s_and_b32 s62, s62, 0xffff0000
s_waitcnt lgkmcnt(0)""")
            for si in chunks[0]:
                for x in fetch_items(si, -1): e(x)
        else:
            nx = list(chunks[c+1]) if c + 1 < len(chunks) else []
            cur = chunks[c]
            for q, si in enumerate(cur):
                mu, ns, ps = steps[si]
                take = -(-len(nx) // (len(cur) - q))
                nxt = []
                for sj in nx[:take]: nxt += fetch_items(sj, si - 1)
                nx = nx[take:]
                for n in ns:
                    cc = "0" if mu == 0 else vr(CACC+4*n, 4)
                    e(f"v_mfma_f32_16x16x32_bf16 {vr(CACC+4*n,4)}, {ar(AF+4*aslot[si],4)}, {ar(BF+4*bmap[(ps, 8*n-mu+7)],4)}, {cc}")
                    for x in nxt[:2]: e(x)
                    nxt = nxt[2:]
                for x in nxt: e(x)
            if c == len(chunks) - 1:
                for n in range(8):
                    e(f"ds_read_b64 {ar(BF+64+2*n,2)}, v13 offset:{UB + 512 + n*512}")
        k.label(lab)
    def conv_finish():
        e(f"s_cmp_ge_u32 s{S_CV}, 3\ns_cbranch_scc1 {L('ccf')}")
        for n in range(8):
            a = CACC + 4*n; t = 224
            e(f"v_accvgpr_read_b32 v{t+6}, a{BF+64+2*n}\nv_accvgpr_read_b32 v{t+7}, a{BF+64+2*n+1}")
            e(f"""v_and_b32 v{t}, s63, v{t+7}
v_lshlrev_b32 v{t+1}, 16, v{t+7}
v_and_b32 v{t+2}, s63, v{t+6}
v_lshlrev_b32 v{t+3}, 16, v{t+6}""")
            for i in range(4): e(f"v_mul_f32 v{t+i}, s62, v{t+i}")
            rnd(t, t+1, t+4); rnd(t+2, t+3, t+5)
            rnd(a, a+1, t+4); rnd(a+2, a+3, t+5)
            for i in range(4): e(f"v_add_f32 v{t+i}, v{t+i}, v{a+i}")
            e(f"v_cvt_pk_bf16_f32 v{a}, v{t}, v{t+1}\nv_cvt_pk_bf16_f32 v{a+1}, v{t+2}, v{t+3}")
            e(f"ds_write_b64 v14, {vr(a,2)} offset:{n*512}")
        e(f"v_add_u32 v15, s{S_CL}, v4\ns_add_u32 s50, s49, {hex(LY.YT_OFF)}\ns_waitcnt lgkmcnt(0)")
        for i in range(4):
            e(f"ds_read_b128 {vr(CACC+4*i,4)}, v15 offset:{i*1024}")
        for i in range(4):
            e(f"s_waitcnt lgkmcnt({3-i})\nbuffer_store_dwordx4 {vr(CACC+4*i,4)}, v4, {G}, s50 offen offset:{i*1024} sc1")
        k.label("ccf")
    print('conv chunks', len(chunks))
    TC0 = 3
    for it in reads(0): emit_item(it)
    for T in range(32):
        s, ks = T >> 1, T & 1
        ld = []
        if ks == 1 and s < 15:
            w = k.wait_str(vmtags=[("W", s+1)])
            e((w + " lgkmcnt(0)") if w else "s_waitcnt lgkmcnt(0)")
            e("s_barrier")
            if s + 4 < 16: ld += dmaW(s + 4)
        else:
            w = k.wait_str(vmtags=[("C", s)])
            e((w + " lgkmcnt(0)") if w else "s_waitcnt lgkmcnt(0)")
            if ks == 0 and s + 3 < 16: ld += ldC(s + 3)
        if T == 26:
            ld += [[x] for x in f"""s_lshl_b32 s48, s{S_RB}, 7
s_lshl_b32 s3, s{S_KQ}, 5
s_add_u32 s48, s48, s3
s_lshr_b32 s3, s{S_W}, 1
s_lshl_b32 s3, s3, 4
s_add_u32 s3, s3, s48
v_and_b32 v20, 15, v1
v_add_u32 v20, s3, v20
v_lshlrev_b32 v21, 2, v20
v_mul_u32_u24 v20, 0x500, v20
v_lshrrev_b32 v22, 4, v1
v_lshlrev_b32 v22, 3, v22
s_and_b32 s3, s{S_W}, 1
s_lshl_b32 s56, s{S_CB}, 1
s_add_u32 s3, s3, s56
s_mul_i32 s3, s3, 160
v_add3_u32 v20, v20, v22, s3
s_mov_b32 s57, {hex(LY.G_OFF)}""".split("\n")]
        if T == 27:
            ld += [["s_mov_b32 s24, s6", "s_mov_b32 s25, s7"], [f"s_mov_b32 s26, {2048*1280}", "s_mov_b32 s27, 0x00020000"],
                   ["s_mov_b32 s28, s8", "s_mov_b32 s29, s9"], [f"s_mov_b32 s30, {2048*1280}", "s_mov_b32 s31, 0x00020000"]]
            for i in range(5):
                ld.append([("vm", f"buffer_load_dwordx2 {vr(XR+2*i,2)}, v20, s[24:27], 0 offen offset:{i*32}", "x")])
            ld.append([("vm", f"buffer_load_dword v{GR}, v21, {G}, s57 offen", "x")])
        if T == 28:
            YL = WR0 + STG
            ld += [[x] for x in f"""v_lshrrev_b32 v5, 2, v1
v_mul_u32_u24 v5, {YROW}, v5
v_and_b32 v6, 3, v1
v_lshlrev_b32 v6, 3, v6
s_lshr_b32 s50, s{S_W}, 1
s_lshl_b32 s50, s50, 5
s_and_b32 s51, s{S_W}, 1
s_mul_i32 s51, s51, {80*YROW}
s_add_u32 s50, s50, s51
s_add_u32 s50, s50, {YL}
v_add3_u32 v5, v5, v6, s50
v_lshrrev_b32 v14, 2, v0
v_and_b32 v16, 3, v0
s_mul_i32 s3, s{S_CB}, 160
v_add_u32 v13, s3, v14
v_lshlrev_b32 v13, 12, v13
v_lshlrev_b32 v16, 4, v16
s_lshl_b32 s3, s48, 1
s_add_u32 s3, s3, {hex(LY.YT_OFF)}
v_add3_u32 v13, v13, v16, s3
v_mul_u32_u24 v14, {YROW}, v14
v_add_u32 v14, v14, v16
v_add_u32 v14, {YL}, v14
s_mov_b32 s60, 0x40000
s_mov_b32 s61, 0x80000
v_min_u32 v7, 39, v1
v_lshlrev_b32 v7, 4, v7
s_lshl_b32 s3, s{S_CB}, 10
s_add_u32 s3, s3, {hex(LY.FL_OFF)}
v_add_u32 v7, s3, v7""".split("\n")]
        if T == 30:
            ld.append([f"s_cmp_lg_u32 s{S_W}, 0\ns_cbranch_scc1 {L('nop1')}\nbuffer_load_dwordx4 v[224:227], v7, {G}, 0 offen sc1\n{L('nop1')}:"])
        if T == 0: ld = dmaW(3) + ld
        c = T - TC0 - 1
        if -1 <= c < len(chunks): conv_chunk(c)
        if c == len(chunks): conv_finish(); ymark = nvm[0]
        if c == len(chunks) + 3:
            e(f"""s_cmp_ge_u32 s{S_CV}, 3
s_cbranch_scc1 {L('nyf')}
s_mul_i32 s3, s{S_CH}, 0x19a
s_lshr_b32 s3, s3, 16
s_mul_i32 s3, s3, 96
s_add_u32 s3, s3, s{S_CH}
s_lshl_b32 s3, s3, 2
s_add_u32 s3, s3, {hex(LY.FL_OFF)}
v_mov_b32 v17, s3
v_mov_b32 v3, 1
s_waitcnt vmcnt({nvm[0] - ymark})
s_mov_b64 exec, 1
buffer_store_dword v3, v17, {G}, 0 offen sc1
s_mov_b64 exec, -1""")
            k.label("nyf")
        ms = []
        for tb in range(2):
            for nb in range(10):
                a = ACC + 4 * (tb*10 + nb)
                ms.append(f"v_mfma_f32_16x16x32_bf16 {vr(a,4)}, {vr(WFR+40*(T&1)+4*nb,4)}, {ar(cfr(s,ks,tb),4)}, {'0' if T == 0 else vr(a,4)}")
        g1 = spread(20, reads(T+1), 0, 16) if T + 1 < 32 else {}
        g2 = spread(20, ld, 2, 20) if ld else {}
        for i, m in enumerate(ms):
            e(m)
            for it in g1.get(i, []): emit_item(it)
            for it in g2.get(i, []): emit_item(it)
        if T == 0: conv_load()
        if T == 16: k.stamp(2)
    k.stamp(3)
    OWN = WR0
    YL = WR0 + STG
    XF = LY.FL_OFF + 4096
    e(f"""s_lshl_b32 s3, s{S_TILE}, 2
s_add_u32 s55, s3, s{S_W}
s_lshl_b32 s55, s55, 2
s_add_u32 s55, s55, s{S_KQ}
s_mul_i32 s55, s55, {XSZ}
s_add_u32 s55, s55, {hex(LY.XCH_OFF)}
v_add_u32 v15, {OWN}, v4
s_cmp_eq_u32 s{S_W}, s{S_KQ}
s_cbranch_scc1 {L('own')}""")
    for rw in range(4):
        t = WFR + 12 * rw
        for i in range(5):
            a = ACC + 4 * (5*rw + i)
            e(f"v_cvt_pk_bf16_f32 v{t+2*i}, v{a}, v{a+1}\nv_cvt_pk_bf16_f32 v{t+2*i+1}, v{a+2}, v{a+3}")
        e(f"buffer_store_dwordx4 {vr(t,4)}, v4, {G}, s55 offen sc1")
        e(f"buffer_store_dwordx4 {vr(t+4,4)}, v4, {G}, s55 offen offset:1024 sc1")
        if rw == 0: e("v_lshlrev_b32 v9, 3, v1")
        e(f"buffer_store_dwordx2 {vr(t+8,2)}, v9, {G}, s55 offen offset:2048 sc1")
        e("s_add_u32 s55, s55, 2560")
    e(f"s_branch {L('sent')}")
    k.label("own")
    for b in range(20):
        e(f"ds_write_b128 v15, {vr(ACC+4*b,4)} offset:{b*1024}")
    e("v_lshlrev_b32 v9, 3, v1")
    k.label("sent")
    e(f"""s_lshl_b32 s49, s{S_TILE}, 7
s_add_u32 s49, s49, {hex(XF)}
s_lshl_b32 s50, s{S_KQ}, 2
s_add_u32 s50, s50, s49
v_mov_b32 v2, s50
v_mov_b32 v3, 1
v_min_u32 v8, 3, v1
v_lshlrev_b32 v8, 2, v8
v_add_u32 v8, s49, v8
s_add_u32 s55, s3, s{S_KQ}
s_mul_i32 s55, s55, {4*XSZ}
s_mul_i32 s50, s{S_W}, 2560
s_add_u32 s55, s55, s50
s_add_u32 s55, s55, {hex(LY.XCH_OFF)}
s_mul_i32 s50, s{S_W}, 5120
v_add_u32 v15, s50, v15""")
    for i in range(3):
        e(f"s_add_u32 s{56+i}, s{S_KQ}, {i+1}\ns_and_b32 s{56+i}, s{56+i}, 3\ns_mul_i32 s{56+i}, s{56+i}, {XSZ}\ns_add_u32 s{56+i}, s{56+i}, s55")
    e("s_waitcnt vmcnt(0) lgkmcnt(0)")
    ychk = f"""v_and_b32 v224, v224, v225
v_and_b32 v226, v226, v227
v_and_b32 v224, v224, v226
v_cmp_ne_u32 vcc, 1, v224"""
    e(f"s_cmp_lg_u32 s{S_W}, 0\ns_cbranch_scc1 {L('yok')}\n{ychk}\ns_cbranch_vccnz {L('yspin')}")
    k.label("yok")
    e("s_barrier")
    k.stamp(4)
    e(f"s_cmp_lg_u32 s{S_W}, 0\ns_cbranch_scc1 {L('nxf')}\ns_mov_b64 exec, 1\nbuffer_store_dword v3, v2, {G}, 0 offen sc1\ns_mov_b64 exec, -1")
    k.label("nxf")
    for i in range(3):
        e(f"buffer_load_dwordx4 {vr(YR+4*i,4)}, v13, {G}, {['0','s60','s61'][i]} offen sc1")
    P = 112
    for i in range(5):
        e(f"ds_read_b128 {vr(P+4*i,4)}, v15 offset:{i*1024}")
    e(f"v_sub_f32 v{GR+1}, 1.0, v{GR}\nv_cvt_pk_bf16_f32 v{GR+1}, v{GR+1}, v{GR+1}\nv_lshlrev_b32 v{GR+1}, 16, v{GR+1}")
    for i in range(5):
        t = 32 + 8*i
        for d in range(2):
            e(f"v_lshlrev_b32 v{t+2*d}, 16, v{XR+2*i+d}\nv_and_b32 v{t+2*d+1}, s63, v{XR+2*i+d}")
        for j in range(4): e(f"v_mul_f32 v{t+j}, v{GR+1}, v{t+j}")
    e("s_waitcnt vmcnt(0)")
    for i in range(3):
        e(f"ds_write_b128 v14, {vr(YR+4*i,4)} offset:{i*64*YROW}")
    e(f"s_cmp_lg_u32 s{S_W}, 0\ns_cbranch_scc1 {L('xok')}\ns_mov_b32 s51, 0x100000")
    k.label("xsp")
    e(f"""buffer_load_dword v10, v8, {G}, 0 offen sc1
s_waitcnt vmcnt(0)
v_cmp_ne_u32 vcc, 1, v10
s_sub_u32 s51, s51, 1
s_cmp_eq_u32 s51, 0
s_cbranch_scc1 {L('xok')}
s_cbranch_vccnz {L('xsp')}""")
    k.label("xok")
    e("s_waitcnt lgkmcnt(0)\ns_barrier")
    k.stamp(5)
    R = 136
    for s in range(3):
        r = R + 12*s
        e(f"buffer_load_dwordx4 {vr(r,4)}, v4, {G}, s{56+s} offen sc1")
        e(f"buffer_load_dwordx4 {vr(r+4,4)}, v4, {G}, s{56+s} offen offset:1024 sc1")
        e(f"buffer_load_dwordx2 {vr(r+8,2)}, v9, {G}, s{56+s} offen offset:2048 sc1")
    YY = 176
    for i in range(5):
        e(f"ds_read_b64_tr_b16 {vr(YY+2*i,2)}, v5 offset:{i*16*YROW}")
    e("s_waitcnt lgkmcnt(0)")
    for i in range(5):
        t = 32 + 8*i
        for d in range(2):
            e(f"v_lshlrev_b32 v{t+4+2*d}, 16, v{YY+2*i+d}\nv_and_b32 v{t+4+2*d+1}, s63, v{YY+2*i+d}")
        for j in range(4): e(f"v_mul_f32 v{t+j}, v{t+j}, v{t+4+j}")
    for s in range(3):
        e(f"s_waitcnt vmcnt({6 - 3*s})")
        for i in range(5):
            p = P + 4*i; t = 32 + 8*i; r = R + 12*s + 2*i
            for d in range(2):
                e(f"v_lshlrev_b32 v{t+4+2*d}, 16, v{r+d}\nv_and_b32 v{t+4+2*d+1}, s63, v{r+d}")
            for d in range(2): e(f"v_pk_add_f32 {vr(p+2*d,2)}, {vr(p+2*d,2)}, {vr(t+4+2*d,2)}")
            if s == 2:
                for j in range(4): e(f"v_fmac_f32 v{t+j}, v{GR}, v{p+j}")
                e(f"v_cvt_pk_bf16_f32 v{t+4}, v{t}, v{t+1}\nv_cvt_pk_bf16_f32 v{t+5}, v{t+2}, v{t+3}")
                e(f"buffer_store_dwordx2 {vr(t+4,2)}, v20, s[28:31], 0 offen offset:{i*32}")
    if Kern.STAMP: e("s_waitcnt vmcnt(0)")
    k.stamp(6)
    k.stamp_flush(14, LY.STAMP_OFF + 65536 * getattr(gen_out, "idx", 0), 2)
    k.label("end")
    e("s_endpgm")
    k.label("yspin")
    e("s_mov_b32 s51, 0x100000")
    k.label("yspl")
    e(f"""buffer_load_dwordx4 v[224:227], v7, {G}, 0 offen sc1
s_waitcnt vmcnt(0)
{ychk}
s_sub_u32 s51, s51, 1
s_cmp_eq_u32 s51, 0
s_cbranch_scc1 {L('yok')}
s_cbranch_vccz {L('yok')}
s_sleep 4
s_branch {L('yspl')}""")
    return k
```

```python
from asmlib import *
import layout as LY
import struct, sys, os
EXP = [a for a in sys.argv if a.startswith('x_')]
CS = 4160; UB = 4 * CS; CH = 21504
STG = 20480; NSLOT = 4
YROW = 80
LDSZ = NSLOT * STG
NCV = 214
S_W, S_RB, S_CB, S_KQ, S_TILE = 44, 45, 46, 47, 43
XSZ = 10240

def gen_out():
    k = Kern("out_kernel", 256, 192, 96, 256 + NCV, 256, LDSZ)
    e = k.e; L = k.L
    k.stamp_base = 64
    e(f"s_cmp_ge_u32 s2, 256\ns_cbranch_scc1 {L('conv')}")
    k.stamp(0)
    e(f"""s_load_dwordx2 s[14:15], s[0:1], 120
s_load_dwordx2 s[4:5], s[0:1], 40
s_load_dwordx2 s[6:7], s[0:1], 0
s_load_dwordx2 s[8:9], s[0:1], 104
v_lshrrev_b32 v2, 6, v0
v_and_b32 v1, 63, v0
v_lshlrev_b32 v4, 4, v1
v_readfirstlane_b32 s{S_W}, v2
s_and_b32 s3, s2, 7
s_lshr_b32 s{S_KQ}, s3, 1
s_lshr_b32 s48, s2, 3
s_and_b32 s{S_RB}, s3, 1
s_lshl_b32 s{S_RB}, s{S_RB}, 3
s_and_b32 s49, s48, 7
s_add_u32 s{S_RB}, s{S_RB}, s49
s_lshr_b32 s{S_CB}, s48, 3
s_lshl_b32 s{S_TILE}, s{S_RB}, 2
s_add_u32 s{S_TILE}, s{S_TILE}, s{S_CB}
s_lshl_b32 s3, s{S_RB}, 3
s_lshl_b32 s48, s{S_W}, 1
s_add_u32 s3, s3, s48
s_lshl_b32 s3, s3, 17
s_lshl_b32 s48, s{S_KQ}, 13
s_add_u32 s3, s3, s48
s_add_u32 s3, s3, {hex(LY.CTX_OFF)}
v_add_u32 v25, s3, v4
v_add_u32 v19, 0x20000, v25""")
    for i in range(5):
        e(f"""v_add_u32 v26, {64*i}, v1
v_mul_u32_u24 v27, 0xccd, v26
v_lshrrev_b32 v27, 16, v27
v_mul_u32_u24 v28, 20, v27
v_sub_u32 v28, v26, v28
v_bfe_u32 v29, v27, 2, 1
v_lshlrev_b32 v29, 1, v29
v_xor_b32 v28, v28, v29
v_mul_u32_u24 v27, 0x500, v27
v_lshl_add_u32 v{20+i}, v28, 4, v27""")
        if i & 3: e(f"v_subrev_u32 v{20+i}, {(i&3)*1024}, v{20+i}")
    def krow(s): return (((s >> 1) & 1) + 8 * (s >> 2)) * 128 + (s & 1) * 64
    e(f"""s_lshl_b32 s52, s{S_KQ}, 8
s_lshl_b32 s3, s{S_W}, 4
s_add_u32 s52, s52, s3
s_mul_i32 s52, s52, 1280
s_mul_i32 s3, s{S_CB}, 320
s_add_u32 s52, s52, s3
s_mul_i32 s53, s{S_W}, 5120
s_mov_b32 s63, 0xffff0000
s_waitcnt lgkmcnt(0)""")
    k.srd(16, 4, 4096 * 1280)
    k.srd(20, 14, 80 << 20)
    G = "s[20:23]"
    def dmaW(s):
        slot = s % NSLOT
        out = [[f"s_add_u32 m0, s53, {slot*STG}", f"s_add_u32 s55, s52, {krow(s)*1280}",
                ("vm", "buffer_load_dwordx4 v20, s[16:19], s55 offen lds", ("W", s))]]
        for i in range(1, 4):
            out.append([("vm", f"buffer_load_dwordx4 v{20+i}, s[16:19], s55 offen offset:{i*1024} lds", ("W", s))])
        out.append([f"s_add_u32 m0, s53, {slot*STG + 4096}", "s_nop 0", ("vm", "buffer_load_dwordx4 v24, s[16:19], s55 offen lds", ("W", s))])
        return out
    def cfr(s, ks, tb): return 16 * (s % 4) + 8 * ks + 4 * tb
    def ldC(s):
        out = []
        for ks in range(2):
            for tb in range(2):
                ld = ("vm", f"buffer_load_dwordx4 {ar(cfr(s,ks,tb),4)}, v{19 if tb else 25}, {G}, s54 offen offset:{((s&1)*2+ks)*1024}", ("C", s))
                out.append(([f"s_mov_b32 s54, {(krow(s) // 128) * 4096}"] if ks == 0 and tb == 0 else []) + [ld])
        return out
    def emit_item(it):
        for x in it:
            if isinstance(x, tuple): k.vmem(x[1], x[2])
            else: e(x)
    for s in range(2):
        for it in dmaW(s) + ldC(s): emit_item(it)
    e(f"""v_lshrrev_b32 v26, 5, v1
v_lshlrev_b32 v26, 4, v26
v_bfe_u32 v28, v1, 4, 1
v_lshl_add_u32 v26, v28, 2, v26
v_bfe_u32 v29, v1, 2, 2
v_add_u32 v26, v26, v29
v_mul_u32_u24 v26, 320, v26
v_and_b32 v29, 3, v1
v_lshl_add_u32 v26, v29, 3, v26
v_lshlrev_b32 v28, 5, v28
v_sub_u32 v27, v26, v28
v_add_u32 v27, 32, v27
v_add_u32 v26, v26, v28
v_add_u32 v28, {2*STG}, v26
v_add_u32 v29, {2*STG}, v27""")
    for it in dmaW(2) + ldC(2): emit_item(it)
    k.wait(vmtags=[("W", 0)])
    e("s_barrier")
    k.stamp(1)
    ACC = 32; WFR = 112
    XR, GR = 8, 2
    def reads(T):
        s, ks = T >> 1, T & 1
        slot = s % NSLOT
        out = []
        for nb in range(10):
            for h in range(2):
                off = (slot & 1) * STG + ks * 10240 + h * 2560 + (nb & ~1) * 32
                out.append([f"ds_read_b64_tr_b16 {vr(WFR+40*(T&1)+4*nb+2*h,2)}, v{26 + (nb & 1) + 2*(slot >> 1)} offset:{off}"])
        return out
    OWN = 0; YL = STG
    XF = LY.FL_OFF + 4096
    for it in reads(0): emit_item(it)
    for T in range(32):
        s, ks = T >> 1, T & 1
        ld = []
        if ks == 1 and s < 15:
            w = k.wait_str(vmtags=[("W", s+1)])
            e((w + " lgkmcnt(0)") if w else "s_waitcnt lgkmcnt(0)")
            e("s_barrier")
            if s + 4 < 16: ld += dmaW(s + 4)
        else:
            w = k.wait_str(vmtags=[("C", s)] + (["x"] if T == 30 else []))
            e((w + " lgkmcnt(0)") if w else "s_waitcnt lgkmcnt(0)")
            if ks == 0 and s + 3 < 16: ld += ldC(s + 3)
        if T == 0: ld = dmaW(3) + ld
        if T == 25:
            ld += [[x] for x in f"""s_lshl_b32 s48, s{S_RB}, 7
s_lshl_b32 s3, s{S_KQ}, 5
s_add_u32 s48, s48, s3
s_lshr_b32 s3, s{S_W}, 1
s_lshl_b32 s3, s3, 4
s_add_u32 s3, s3, s48
v_and_b32 v20, 15, v1
v_add_u32 v20, s3, v20
v_lshlrev_b32 v21, 2, v20
v_mul_u32_u24 v20, 0x500, v20
v_lshrrev_b32 v22, 4, v1
v_lshlrev_b32 v22, 3, v22
s_and_b32 s3, s{S_W}, 1
s_lshl_b32 s56, s{S_CB}, 1
s_add_u32 s3, s3, s56
s_mul_i32 s3, s3, 160
v_add3_u32 v20, v20, v22, s3
s_mov_b32 s57, {hex(LY.G_OFF)}""".split("\n")]
        if T == 26:
            ld += [["s_mov_b32 s24, s6", "s_mov_b32 s25, s7"], [f"s_mov_b32 s26, {2048*1280}", "s_mov_b32 s27, 0x00020000"],
                   ["s_mov_b32 s28, s8", "s_mov_b32 s29, s9"], [f"s_mov_b32 s30, {2048*1280}", "s_mov_b32 s31, 0x00020000"]]
            for i in range(5):
                ld.append([("vm", f"buffer_load_dwordx2 {vr(XR+2*i,2)}, v20, s[24:27], 0 offen offset:{i*32}", "x")])
            ld.append([("vm", f"buffer_load_dword v{GR}, v21, {G}, s57 offen", "x")])
        if T == 27:
            ld += [[x] for x in f"""v_lshrrev_b32 v5, 2, v1
v_mul_u32_u24 v5, {YROW}, v5
v_and_b32 v6, 3, v1
v_lshlrev_b32 v6, 3, v6
s_lshr_b32 s50, s{S_W}, 1
s_lshl_b32 s50, s50, 5
s_and_b32 s51, s{S_W}, 1
s_mul_i32 s51, s51, {80*YROW}
s_add_u32 s50, s50, s51
s_add_u32 s50, s50, {YL}
v_add3_u32 v5, v5, v6, s50
v_lshrrev_b32 v23, 2, v0
v_and_b32 v6, 3, v0
s_mul_i32 s3, s{S_CB}, 160
v_add_u32 v22, s3, v23
v_lshlrev_b32 v22, 12, v22
v_lshlrev_b32 v6, 4, v6
s_lshl_b32 s3, s48, 1
s_add_u32 s3, s3, {hex(LY.YT_OFF)}
v_add3_u32 v22, v22, v6, s3
v_mul_u32_u24 v23, {YROW}, v23
v_add_u32 v23, v23, v6
v_add_u32 v23, {YL}, v23""".split("\n")]
        if T == 28:
            ld += [[x] for x in f"""s_mov_b32 s60, 0x40000
s_mov_b32 s61, 0x80000
v_min_u32 v7, 39, v1
v_lshlrev_b32 v7, 4, v7
s_lshl_b32 s3, s{S_CB}, 10
s_add_u32 s3, s3, {hex(LY.FL_OFF)}
v_add_u32 v7, s3, v7
s_lshl_b32 s49, s{S_TILE}, 7
s_add_u32 s49, s49, {hex(XF)}
s_lshl_b32 s50, s{S_KQ}, 2
s_add_u32 s50, s50, s49
v_mov_b32 v24, s50
v_mov_b32 v25, 1
v_min_u32 v19, 3, v1
v_lshlrev_b32 v19, 2, v19
v_add_u32 v19, s49, v19
v_lshlrev_b32 v18, 3, v1
s_mul_i32 s50, s{S_W}, 5120
v_add_u32 v21, s50, v4""".split("\n")]
        if T == 29:
            ld += [[x] for x in f"""s_lshl_b32 s3, s{S_TILE}, 2
s_add_u32 s55, s3, s{S_W}
s_lshl_b32 s55, s55, 2
s_add_u32 s55, s55, s{S_KQ}
s_mul_i32 s55, s55, {XSZ}
s_add_u32 s55, s55, {hex(LY.XCH_OFF)}
s_add_u32 s54, s3, s{S_KQ}
s_mul_i32 s54, s54, {4*XSZ}
s_mul_i32 s50, s{S_W}, 2560
s_add_u32 s54, s54, s50
s_add_u32 s54, s54, {hex(LY.XCH_OFF)}""".split("\n")]
            for i in range(3):
                ld += [[f"s_add_u32 s{56+i}, s{S_KQ}, {i+1}", f"s_and_b32 s{56+i}, s{56+i}, 3"], [f"s_mul_i32 s{56+i}, s{56+i}, {XSZ}", f"s_add_u32 s{56+i}, s{56+i}, s54"]]
        if T == 30:
            ld.append([f"s_cmp_lg_u32 s{S_W}, 0\ns_cbranch_scc1 {L('nop1')}\nbuffer_load_dwordx4 a[0:3], v7, {G}, 0 offen sc1\n{L('nop1')}:"])
        ms = []
        for tb in range(2):
            for nb in range(10):
                a = ACC + 4 * (tb*10 + nb)
                ms.append(f"v_mfma_f32_16x16x32_bf16 {vr(a,4)}, {vr(WFR+40*(T&1)+4*nb,4)}, {ar(cfr(s,ks,tb),4)}, {'0' if T == 0 else vr(a,4)}")
        g1 = spread(20, reads(T+1), 0, 16) if T + 1 < 32 else {}
        g2 = spread(20, ld, 2, 20) if ld else {}
        for i, m in enumerate(ms):
            e(m)
            for it in g1.get(i, []): emit_item(it)
            for it in g2.get(i, []): emit_item(it)
        if T == 16: k.stamp(2)
    k.stamp(3)
    e(f"s_cmp_eq_u32 s{S_W}, s{S_KQ}\ns_cbranch_scc1 {L('own')}")
    for rw in range(4):
        t = WFR + 10 * rw
        for i in range(5):
            a = ACC + 4 * (5*rw + i)
            e(f"v_cvt_pk_bf16_f32 v{t+2*i}, v{a}, v{a+1}\nv_cvt_pk_bf16_f32 v{t+2*i+1}, v{a+2}, v{a+3}")
        e(f"buffer_store_dwordx4 {vr(t,4)}, v4, {G}, s55 offen sc1")
        e(f"buffer_store_dwordx4 {vr(t+4,4)}, v4, {G}, s55 offen offset:1024 sc1")
        e(f"buffer_store_dwordx2 {vr(t+8,2)}, v18, {G}, s55 offen offset:2048 sc1")
        e("s_add_u32 s55, s55, 2560")
    e(f"s_branch {L('sent')}")
    k.label("own")
    for b in range(20):
        e(f"ds_write_b128 v4, {vr(ACC+4*b,4)} offset:{OWN + b*1024}")
    k.label("sent")
    BX = 152
    e(f"v_sub_f32 v{GR+1}, 1.0, v{GR}\nv_cvt_pk_bf16_f32 v{GR+1}, v{GR+1}, v{GR+1}\nv_lshlrev_b32 v{GR+1}, 16, v{GR+1}")
    for i in range(5):
        t = BX + 4*i
        for d in range(2):
            e(f"v_lshlrev_b32 v{t+2*d}, 16, v{XR+2*i+d}\nv_and_b32 v{t+2*d+1}, s63, v{XR+2*i+d}")
        for j in range(4): e(f"v_mul_f32 v{t+j}, v{GR+1}, v{t+j}")
    e("s_waitcnt vmcnt(0) lgkmcnt(0)")
    ychk = """v_accvgpr_read_b32 v8, a0
v_accvgpr_read_b32 v9, a1
v_accvgpr_read_b32 v10, a2
v_accvgpr_read_b32 v11, a3
v_and_b32 v8, v8, v9
v_and_b32 v10, v10, v11
v_and_b32 v8, v8, v10
v_cmp_ne_u32 vcc, 1, v8"""
    e(f"s_barrier\ns_cmp_lg_u32 s{S_W}, 0\ns_cbranch_scc1 {L('nxf')}\ns_mov_b64 exec, 1\nbuffer_store_dword v25, v24, {G}, 0 offen sc1\ns_mov_b64 exec, -1")
    e(f"{ychk}\ns_cbranch_vccnz {L('yspin')}")
    k.label("nxf")
    e("s_barrier")
    k.stamp(4)
    YR = 32; P = 112
    for i in range(3):
        e(f"buffer_load_dwordx4 {vr(YR+4*i,4)}, v22, {G}, {['0','s60','s61'][i]} offen sc1")
    for i in range(5):
        e(f"ds_read_b128 {vr(P+4*i,4)}, v21 offset:{OWN + i*1024}")
    e(f"s_cmp_lg_u32 s{S_W}, 0\ns_cbranch_scc1 {L('xok')}\ns_mov_b32 s51, 0x100000")
    k.label("xsp")
    e(f"""buffer_load_dword v10, v19, {G}, 0 offen sc1
s_waitcnt vmcnt(0)
v_cmp_ne_u32 vcc, 1, v10
s_sub_u32 s51, s51, 1
s_cmp_eq_u32 s51, 0
s_cbranch_scc1 {L('xok')}
s_cbranch_vccnz {L('xsp')}""")
    k.label("xok")
    e("s_waitcnt vmcnt(0)")
    for i in range(3):
        e(f"ds_write_b128 v23, {vr(YR+4*i,4)} offset:{i*64*YROW}")
    e("s_waitcnt lgkmcnt(0)\ns_barrier")
    k.stamp(5)
    R = 48
    for s in range(3):
        r = R + 12*s
        e(f"buffer_load_dwordx4 {vr(r,4)}, v4, {G}, s{56+s} offen sc1")
        e(f"buffer_load_dwordx4 {vr(r+4,4)}, v4, {G}, s{56+s} offen offset:1024 sc1")
        e(f"buffer_load_dwordx2 {vr(r+8,2)}, v18, {G}, s{56+s} offen offset:2048 sc1")
    YY = 84; TT = 132
    for i in range(5):
        e(f"ds_read_b64_tr_b16 {vr(YY+2*i,2)}, v5 offset:{i*16*YROW}")
    e("s_waitcnt lgkmcnt(0)")
    for i in range(5):
        t = BX + 4*i; u = TT + 4*i
        for d in range(2):
            e(f"v_lshlrev_b32 v{u+2*d}, 16, v{YY+2*i+d}\nv_and_b32 v{u+2*d+1}, s63, v{YY+2*i+d}")
        for d in range(2): e(f"v_pk_mul_f32 {vr(t+2*d,2)}, {vr(t+2*d,2)}, {vr(u+2*d,2)}")
    for s in range(3):
        e(f"s_waitcnt vmcnt({6 - 3*s})")
        for i in range(5):
            p = P + 4*i; t = BX + 4*i; u = TT + 4*i; r = R + 12*s + 2*i
            for d in range(2):
                e(f"v_lshlrev_b32 v{u+2*d}, 16, v{r+d}\nv_and_b32 v{u+2*d+1}, s63, v{r+d}")
            for d in range(2): e(f"v_pk_add_f32 {vr(p+2*d,2)}, {vr(p+2*d,2)}, {vr(u+2*d,2)}")
            if s == 2:
                for j in range(4): e(f"v_fmac_f32 v{t+j}, v{GR}, v{p+j}")
                e(f"v_cvt_pk_bf16_f32 v{u}, v{t}, v{t+1}\nv_cvt_pk_bf16_f32 v{u+1}, v{t+2}, v{t+3}")
                e(f"buffer_store_dwordx2 {vr(u,2)}, v20, s[28:31], 0 offen offset:{i*32}")
    if Kern.STAMP: e("s_waitcnt vmcnt(0)")
    k.stamp(6)
    k.stamp_flush(14, LY.STAMP_OFF + 65536 * getattr(gen_out, "idx", 0), 2)
    k.label("end")
    e("s_endpgm")
    k.label("yspin")
    e("s_mov_b32 s51, 0x100000")
    k.label("yspl")
    e(f"""buffer_load_dwordx4 a[0:3], v7, {G}, 0 offen sc1
s_waitcnt vmcnt(0)
{ychk}
s_sub_u32 s51, s51, 1
s_cmp_eq_u32 s51, 0
s_cbranch_scc1 {L('nxf')}
s_cbranch_vccz {L('nxf')}
s_sleep 4
s_branch {L('yspl')}""")

    k.label("conv")
    k.vm = []; k.lg = []
    e(f"""s_cmp_ge_u32 s2, {256 + NCV}
s_cbranch_scc1 {L('end')}
s_setprio 3""")
    k.stamp(0)
    e(f"""s_load_dwordx2 s[14:15], s[0:1], 120
s_load_dwordx4 s[4:7], s[0:1], 80
v_lshrrev_b32 v2, 6, v0
v_and_b32 v1, 63, v0
v_lshlrev_b32 v4, 4, v1
v_readfirstlane_b32 s44, v2
s_sub_u32 s46, s2, 256
s_mul_i32 s46, s46, 3
s_add_u32 s46, s46, s44
s_cmp_ge_u32 s44, 3
s_cbranch_scc1 {L('end')}
s_cmp_ge_u32 s46, 640
s_cbranch_scc1 {L('end')}
s_mul_i32 s47, s44, {CH}
v_mov_b32 v7, 0x7ffffff0
s_lshl_b32 s49, s46, 12
s_mov_b32 s63, 0xffff0000
s_waitcnt lgkmcnt(0)""")
    k.srd(24, 4, 640 * 4096)
    k.srd(20, 14, 80 << 20)
    e("s_lshr_b32 s3, s46, 1\ns_lshl_b32 s3, s3, 2\ns_add_u32 s6, s6, s3\ns_addc_u32 s7, s7, 0\ns_load_dword s60, s[6:7], 0")
    for s in range(4):
        e(f"s_add_u32 m0, s47, {s*CS + 32}\ns_add_u32 s50, s49, {2*s}")
        for i in range(4):
            e(f"buffer_load_dwordx4 v4, s[24:27], s50 offen offset:{i*1024} lds")
    e(f"s_add_u32 m0, s47, {UB + 512}\ns_add_u32 s50, s49, {hex(LY.UT_OFF)}")
    for i in range(4):
        e(f"buffer_load_dwordx4 v4, {G}, s50 offen offset:{i*1024} lds")
    e(f"""v_lshrrev_b32 v8, 4, v1
v_and_b32 v9, 15, v1
v_add_u32 v10, v8, v9
v_subrev_u32 v10, 16, v10
v_cmp_gt_i32 vcc, 0, v10
v_lshlrev_b32 v10, 1, v10
v_add_u32 v10, s49, v10
v_cndmask_b32 v10, v10, v7, vcc
buffer_load_ushort v16, v10, s[24:27], 0 offen
v_mul_u32_u24 v17, {CS}, v8
v_lshlrev_b32 v13, 1, v9
v_add_u32 v17, v17, v13
v_add_u32 v17, s47, v17
v_mov_b32 v14, 0
v_mov_b32 v15, 0
v_lshlrev_b32 v13, 3, v1
v_add_u32 v13, s47, v13
ds_write_b64 v13, v[14:15] offset:{UB}
v_lshrrev_b32 v10, 1, v8
v_sub_u32 v10, v9, v10
v_lshlrev_b32 v10, 5, v10
v_and_b32 v11, 1, v8
v_lshlrev_b32 v12, 4, v11
v_add_u32 v10, v10, v12
v_add_u32 v10, s47, v10
v_add_u32 v10, {UB + 512 - 448}, v10
v_add_u32 v12, 1, v9
v_and_b32 v13, 3, v12
v_sub_u32 v12, v12, v13
v_lshrrev_b32 v14, 1, v8
v_lshlrev_b32 v14, 4, v14
v_add_u32 v12, v12, v14
v_lshlrev_b32 v14, 3, v11
v_sub_u32 v12, v12, v14
v_add_u32 v12, 8, v12
v_lshlrev_b32 v12, 1, v12
v_mul_u32_u24 v13, {CS}, v13
v_add_u32 v12, v12, v13
v_add_u32 v12, s47, v12
v_lshlrev_b32 v13, 5, v9
v_lshrrev_b32 v14, 1, v8
v_lshlrev_b32 v14, 4, v14
v_add_u32 v13, v13, v14
v_xor_b32 v14, 1, v11
v_lshlrev_b32 v14, 3, v14
v_add_u32 v13, v13, v14
v_add_u32 v13, s47, v13
v_lshlrev_b32 v14, 5, v9
v_lshlrev_b32 v15, 3, v8
v_add_u32 v14, v14, v15
v_add_u32 v14, s47, v14
s_waitcnt lgkmcnt(0)
s_and_b32 s3, s46, 1
s_cmp_eq_u32 s3, 0
s_cselect_b32 s3, 16, 0
s_lshl_b32 s62, s60, s3
s_and_b32 s62, s62, 0xffff0000
s_waitcnt vmcnt(0)
ds_write_b16 v17, v16
s_waitcnt lgkmcnt(0)""")
    k.stamp(1)
    def rnd(a, b, pk):
        e(f"v_cvt_pk_bf16_f32 v{pk}, v{a}, v{b}\nv_lshlrev_b32 v{a}, 16, v{pk}\nv_and_b32 v{b}, s63, v{pk}")
    CACC, BF = 32, 64
    NA = 8; PF = 3
    steps = [(mu, [n for n in range(4, 8) if 8*(n+1) > mu], 1) for mu in range(64)] + [(mu, [n for n in range(4) if 8*(n+1) > mu], 0) for mu in range(32)]
    loaded = set()
    def bslot(d): return BF + 4 * (d % 32)
    def fetch(si):
        if si >= len(steps): return
        mu, ns, ps = steps[si]
        r = 4 * (si % NA)
        k.lds_op(f"ds_read_b64 {ar(r,2)}, v12 offset:{64*mu}", ("A", si))
        k.lds_op(f"ds_read_b64 {ar(r+2,2)}, v12 offset:{64*mu + 8}", ("A", si))
        for n in ns:
            d = 8*n - mu + 7
            if (ps, d) not in loaded:
                loaded.add((ps, d))
                k.lds_op(f"ds_read_b128 {vr(bslot(d),4)}, v10 offset:{64*d}", ("B", ps, d))
    for si in range(PF): fetch(si)
    CP0, CP1 = [int(x) for x in os.environ.get("CP", "-1,-1").split(",")]
    for si, (mu, ns, ps) in enumerate(steps):
        if si == CP0: e("s_setprio 0")
        if si == CP1: e("s_setprio 3")
        k.wait(lgtags=[("A", si)] + [("B", ps, 8*n - mu + 7) for n in ns])
        first = True
        for n in ns:
            c = "0" if mu == 0 else vr(CACC+4*n, 4)
            e(f"v_mfma_f32_16x16x32_bf16 {vr(CACC+4*n,4)}, {ar(4*(si%NA),4)}, {vr(bslot(8*n-mu+7),4)}, {c}")
            if first:
                fetch(si + PF); first = False
    UE = 128
    for n in range(8):
        e(f"ds_read_b64 {vr(UE+2*n,2)}, v13 offset:{UB + 512 + n*512}")
    e("s_waitcnt lgkmcnt(0)")
    k.stamp(2)
    for n in list(range(4, 8)) + list(range(4)):
        a = CACC + 4*n; u = UE + 2*n; t = 160 + 8 * (n % 4)
        e(f"""v_and_b32 v{t}, s63, v{u+1}
v_lshlrev_b32 v{t+1}, 16, v{u+1}
v_and_b32 v{t+2}, s63, v{u}
v_lshlrev_b32 v{t+3}, 16, v{u}""")
        for i in range(4): e(f"v_fmac_f32 v{a+i}, s62, v{t+i}")
        e(f"v_cvt_pk_bf16_f32 v{t+6}, v{a}, v{a+1}\nv_cvt_pk_bf16_f32 v{t+7}, v{a+2}, v{a+3}")
        e(f"ds_write_b64 v14, {vr(t+6,2)} offset:{n*512}")
    e(f"v_add_u32 v15, s47, v4\ns_add_u32 s50, s49, {hex(LY.YT_OFF)}\ns_waitcnt lgkmcnt(0)")
    for i in range(4):
        e(f"ds_read_b128 {vr(64+4*i,4)}, v15 offset:{i*1024}")
    for i in range(4):
        e(f"s_waitcnt lgkmcnt({3-i})\nbuffer_store_dwordx4 {vr(64+4*i,4)}, v4, {G}, s50 offen offset:{i*1024} sc1")
    e(f"""s_mul_i32 s3, s46, 0x19a
s_lshr_b32 s3, s3, 16
s_mul_i32 s3, s3, 96
s_add_u32 s3, s3, s46
s_lshl_b32 s3, s3, 2
s_add_u32 s3, s3, {hex(LY.FL_OFF)}
v_mov_b32 v2, s3
v_mov_b32 v3, 1
s_waitcnt vmcnt(0)
s_mov_b64 exec, 1
buffer_store_dword v3, v2, {G}, 0 offen sc1""")
    if Kern.STAMP:
        k.stamp(3); e("s_waitcnt vmcnt(0)"); k.stamp(4); k.stamp(5); k.stamp(6)
        e("s_mov_b64 exec, -1\ns_sub_u32 s2, s2, 256")
        k.stamp_flush(14, LY.STAMP_OFF + 65536 * 2, 2)
    e("s_endpgm")
    return k
```

```python
import sys
if 'x_oldout' not in sys.argv and 'x_out3' not in sys.argv: sys.argv.append('x_out4')
from asmlib import *
import k_main, k_out, k_out3, k_out4, k_out5
HDR = open("gated_mix__compressed_kv_cla__ssm_conv_h3__prompt.s.ref").read().split("; Override launch")[0]
if 'stamp' in sys.argv: Kern.STAMP = True
gens = [k_main.gen_main]
for i, g in enumerate(gens): g.idx = i
kerns = [g() for g in gens]
out = sys.argv[1] if len(sys.argv) > 1 and sys.argv[1].endswith('.s') else "gated_mix__compressed_kv_cla__ssm_conv_h3__prompt.s"
write_file(out, HDR, kerns)
```

```python
from asmlib import *
import layout as LY
import prep_streams as PS
import struct, sys, os
EXP = [a for a in sys.argv if a.startswith('x_')]
SMAP = dict(x.split("=") for x in os.environ.get("SMAP", "start=0,first=1,T16=2,attn=3,tail=4,end=5").split(","))

def f32bits(x):
    return "0x%08x" % struct.unpack("<I", struct.pack("<f", x))[0]

P_X, P_C, P_WQ, P_WK, P_WV, P_WO = 4, 6, 8, 10, 12, 14
SRD_X, SRD_C, SRD_WQ, SRD_WKV, SRD_T, SRD_G = 16, 20, 24, 28, 36, 40
S_CA, S_CB, S_XA, S_XB = 32, 33, 34, 35
S_W, S_W4K, S_H, S_P = 44, 45, 46, 47
S_WBK, S_WBQ, S_M, S_G0 = 48, 49, 50, 51
P_K, P_V, P_SH = 52, 54, 56
S_T0, S_T1, S_T2 = 58, 59, 3
S_SO = 60
S_SCALE, S_DS = 64, 65
P_GW, P_DBG, P_WS = 68, 72, 74
S_PFI, S_XSH = 76, 77
STAMPB = 78
TK, TV, TW, TS = 4, 8, 12, 20
SRD_K, SRD_V = 28, 32
S_N1, S_J, S_KA, S_KB, S_KOFF, S_VOFF, S_DB = 48, 49, 51, 52, 53, 54, 55
S_RX, S_RY, S_KX, S_WODD, S_HB = 56, 57, 66, 67, 68
S_FC, S_FB, S_N1M3, S_CTXB = 69, 70, 71, 76
S_N1M2, S_KX2 = 74, 75
MASKP = [4, 6, 8, 10, 12, 14, 16, 18, 20, 22, 24, 26, 36, 38, 60, 62]
OX, OY, QX, QY, VF = 0, 64, 128, 160, 192
KF, SX, SY, PX, PY, NX, NY = 192, 128, 160, 96, 112, 64, 80
V_D0 = 4
V_KA, V_VA, V_CTX, V_NP = 8, 9, 10, 11
V_LX, V_LY, V_LB, V_BIG = 12, 13, 14, 15
V_LT, V_M, V_T, V_X, V_E = 16, 18, 20, 24, 32
V_DBG, V_POLL = 2, 3
QL, QLB = 131072, 98304
THR = f32bits(65536.0)
WSB = 80 << 20

NTQ = " nt" if "x_ntq" in EXP else ""
NTK = " nt" if "x_ntk" in EXP else ""
NTC = " sc1" if "x_ctxsc1" in EXP else ""
KVS = "" if "x_nosc1" in EXP else " sc1"
KVST = "" if "x_kvplain" in EXP else " sc1"
def gen_main():
    k = Kern("main_kernel", 512, 256, 102, 256, 256, 163840)
    e = k.e; L = k.L
    k.stamp_base = STAMPB
    G = f"s[{SRD_G}:{SRD_G+3}]"
    def ST(name):
        if name in SMAP: k.stamp(int(SMAP[name]))
    e(f"s_cmp_ge_u32 s2, 256\ns_cbranch_scc1 {L('end')}")
    ST("start")
    e(f"s_getpc_b64 s[{SRD_T}:{SRD_T+1}]")
    k.label("pc")
    e(f"""s_sub_u32 s{SRD_T}, s{SRD_T}, {L('pc')}-main_kernel
s_subb_u32 s{SRD_T+1}, s{SRD_T+1}, 0
s_mov_b32 s{SRD_T+2}, all_code_end-main_kernel
s_mov_b32 s{SRD_T+3}, 0x00020000
s_lshr_b32 s{S_T0}, s2, 3
s_lshl_b32 s{S_T0}, s{S_T0}, 12
v_lshlrev_b32 v16, 4, v0""")
    k.vmem(f"buffer_load_dwordx4 v[20:23], v16, s[{SRD_T}:{SRD_T+3}], s{S_T0} offen", "t")
    e(f"""s_load_dwordx8 s[4:11], s[0:1], 0
s_load_dwordx4 s[12:15], s[0:1], 32
s_load_dwordx4 s[52:55], s[0:1], 56
s_load_dwordx2 s[56:57], s[0:1], 72
s_load_dwordx8 s[68:75], s[0:1], 96
v_lshrrev_b32 v2, 6, v0
v_and_b32 v1, 63, v0
s_and_b32 s{S_H}, s2, 7
v_readfirstlane_b32 s{S_W}, v2
s_lshr_b32 s{S_T0}, s2, 6
s_lshl_b32 s{S_T0}, s{S_T0}, 3
s_add_u32 s{S_H}, s{S_H}, s{S_T0}
s_lshr_b32 s{S_P}, s2, 3
s_and_b32 s{S_P}, s{S_P}, 7
s_lshl_b32 s{S_W4K}, s{S_W}, 12
s_sub_u32 s{S_T0}, 15, s{S_P}
s_lshl_b32 s{S_CA}, s{S_T0}, 17
s_lshl_b32 s{S_CB}, s{S_P}, 17
s_mul_i32 s{S_XA}, s{S_T0}, {128*1280}
s_mul_i32 s{S_XB}, s{S_P}, {128*1280}
s_and_b32 s{S_WBK}, s{S_W}, 1
s_lshl_b32 s{S_WBK}, s{S_WBK}, 17
s_lshl_b32 s{S_WBQ}, s{S_W}, 17""")
    VC = [80, 81, 82, 83] if "k" in os.environ.get("SEQ", "") else [24, 25, 30, 31]; VX = [4, 5, 19, 26]; VW = [6, 27, 28, 29]
    e(f"""s_lshl_b32 s{S_T1}, s{S_W}, 5
v_lshrrev_b32 v2, 3, v1
v_and_b32 v3, 7, v1
v_xor_b32 v3, v3, v2
v_lshlrev_b32 v11, 4, v3
v_add_u32 v7, s{S_T1}, v2
v_lshl_add_u32 v{VC[0]}, v7, 10, v11
v_mul_u32_u24 v{VX[0]}, 0x500, v7
v_add_u32 v{VX[0]}, v{VX[0]}, v11""")
    for i in range(1, 4):
        e(f"v_add_u32 v{VC[i]}, {i*(8192-1024)}, v{VC[0]}")
    e(f"""v_and_b32 v2, 15, v1
v_lshrrev_b32 v3, 4, v1
v_lshrrev_b32 v7, 1, v2
v_xor_b32 v7, v7, v3
v_lshlrev_b32 v7, 1, v7
v_and_b32 v8, 1, v2
v_or_b32 v7, v7, v8
v_lshlrev_b32 v7, 4, v7
v_lshl_add_u32 v7, v3, 13, v7
s_lshl_b32 s{S_T1}, s{S_H}, 8
v_add_u32 v{VW[0]}, s{S_T1}, v7
v_add_u32 v{VW[1]}, {32768-1024}, v{VW[0]}
v_xor_b32 v{VW[2]}, 0x80, v{VW[0]}
v_add_u32 v{VW[2]}, {2*(32768-1024)}, v{VW[2]}
v_add_u32 v{VW[3]}, {32768-1024}, v{VW[2]}
s_cmp_lt_u32 s{S_W}, 2
s_waitcnt lgkmcnt(0)
s_cselect_b32 s{SRD_WKV}, s{P_WK}, s{P_WV}
s_cselect_b32 s{SRD_WKV+1}, s{P_WK+1}, s{P_WV+1}
s_mov_b32 s{SRD_WKV+2}, {hex(512*8192)}
s_mov_b32 s{SRD_WKV+3}, 0x00020000""")
    k.srd(SRD_C, P_C, 2048*1024)
    SRD_WV2 = 52
    if "k" in os.environ.get("SEQ", ""):
        k.srd(SRD_WKV, P_WK, 512*8192); k.srd(SRD_WV2, P_WV, 512*8192)

    SEQ = os.environ.get("SEQ", "KKKKKKKKQQQQQQQQQQ")
    NT = 2 * len(SEQ)
    SPLIT = "k" in SEQ
    xb, wb = [], []
    kind = []; cnt = {}
    for i, ch in enumerate(SEQ):
        n = cnt.get(ch, 0); cnt[ch] = n + 1
        if ch == "K":
            xb.append(dict(kind="xc", k0=64*n, first=2*i, last=2*i+1))
            wb.append(dict(kind="wkv", k0=64*n, first=2*i, last=2*i))
            wb.append(dict(kind="wkv", k0=64*n+32, first=2*i+1, last=2*i+1))
        elif ch == "Q":
            xb.append(dict(kind="xx", k0=64*n, first=2*i, last=2*i+1))
            wb.append(dict(kind="wq", k0=64*n, first=2*i, last=2*i+1))
        else:
            xb.append(dict(kind="xc", k0=64*n, first=2*i, last=2*i+1))
            wb.append(dict(kind="w" + ch, k0=64*n, first=2*i, last=2*i+1))
        kind += [ch, ch]
    TQ0 = kind.index("Q")
    after = lambda ch: NT - kind[::-1].index(ch)
    TE0 = after("k") if SPLIT else after("K")
    TP = NT - 3
    xs_ = [131072, 98304, 65536]; ws_ = [16384, 49152, 0, 32768]
    for i, b in enumerate(xb):
        b["R"] = xs_[(len(xb) - 1 - i) % 3]; b["prev"] = xb[i-3] if i >= 3 else None; b["id"] = ("x", i)
    for i, b in enumerate(wb):
        b["R"] = ws_[(len(wb) - 1 - i) % 4]; b["prev"] = wb[i-4] if i >= 4 else None; b["id"] = ("w", i)
    order = sorted(xb + wb, key=lambda b: (b["first"], b["kind"][0] != "x"))
    def find(T, lst):
        for b in lst:
            if b["first"] <= T <= b["last"]: return b
    def dma_list(b):
        R = b["R"]; out = []
        def grp(ldsoff, sbase, sadd, vos, srd):
            for i in range(4):
                ld = ("vm", f"buffer_load_dwordx4 v{vos[i]}, s[{srd}:{srd+3}], s{S_DS} offen offset:{i*1024}{NTQ if srd in (SRD_X, SRD_WQ) else NTK} lds", b["id"])
                if i == 0: out.append([f"s_add_u32 m0, s{S_W4K}, {ldsoff}", f"s_add_u32 s{S_DS}, s{sbase}, {sadd}", ld])
                else: out.append([ld])
        kd = b["kind"]
        if kd == "xc":
            grp(R, S_CA, b["k0"]*2, VC, SRD_C); grp(R + 16384, S_CB, b["k0"]*2, VC, SRD_C)
        elif kd == "xx":
            grp(R, S_XA, b["k0"]*2, VX, SRD_X); grp(R + 16384, S_XB, b["k0"]*2, VX, SRD_X)
        elif kd == "wkv":
            grp(R, S_WBK, b["k0"]*8192, VW, SRD_WKV)
        elif kd == "wk":
            grp(R, S_WBQ, b["k0"]*8192, VW, SRD_WKV)
        elif kd == "wv":
            grp(R, S_WBQ, b["k0"]*8192, VW, SRD_WV2)
        else:
            grp(R, S_WBQ, b["k0"]*8192, VW, SRD_WQ)
        return out
    def emit_item(it):
        for x in it:
            if isinstance(x, tuple):
                if x[0] == "vm": k.vmem(x[1], x[2])
                elif x[0] == "lg": k.lds_op(x[1], x[2])
                elif x[0] == "wait": k.wait(vmtags=(x[1],))
                elif x[0] == "label": k.label(x[1])
            else:
                e(x)
    pend = list(order)
    def issue_ready(T):
        out = []
        for b in list(pend):
            if b["prev"] is None or b["prev"]["last"] <= T:
                out += dma_list(b); pend.remove(b)
        return out
    pro = issue_ready(-1)
    N0, N1 = 16, 32
    for it in pro[:N0]: emit_item(it)
    pro_b = pro[N0:N1]; pro_c = pro[N1:]
    k.srd(SRD_X, P_X, 2048*1280)
    k.srd(SRD_WQ, P_WQ, 640*8192)
    k.srd(SRD_T, P_GW, 1280)
    k.srd(SRD_G, P_WS, WSB)
    for i in range(1, 4):
        e(f"v_add_u32 v{VX[i]}, {i*(10240-1024)}, v{VX[0]}")
    e(f"""s_lshl_b32 s{S_PFI}, s2, 2
s_add_u32 s{S_PFI}, s{S_PFI}, s{S_W}
s_mov_b32 s{S_M}, 0xffff0000""")
    S_PF = S_XSH
    def pf(srd, pre, offs):
        out = [[x.replace(f"s{S_G0},", f"s{S_PF},") for x in pre]]
        for o in offs:
            it = [f"s_add_u32 s{S_PF}, s{S_PF}, 4096"] if o == 4096 else []
            out.append(it + [("vm", f"buffer_load_dwordx4 v[20:23], v2, s[{srd}:{srd+3}], s{S_PF} offen offset:{o & 4095}", "t")])
        return out
    pf1 = pf(SRD_C, [f"s_mul_i32 s{S_G0}, s{S_PFI}, 2048"], [0, 1024])
    pf1 += pf(SRD_WKV, [f"s_lshl_b32 s{S_G0}, s2, 14", f"s_lshr_b32 s{S_T0}, s{S_WBK}, 4", f"s_add_u32 s{S_G0}, s{S_G0}, s{S_T0}"], [i*1024 for i in range(8)])
    pf2 = pf(SRD_X, [f"s_mul_i32 s{S_G0}, s{S_PFI}, 2560"], [0, 1024, 1536]) + pf(SRD_WQ, [f"s_mul_i32 s{S_G0}, s{S_PFI}, 5120"], [0, 1024, 2048, 3072, 4096])
    zeroflag = [[f"""s_lshl_b32 s{S_T0}, s{S_H}, 7
s_lshl_b32 s{S_T1}, s{S_P}, 2
s_add_u32 s{S_T0}, s{S_T0}, s{S_T1}
s_add_u32 s{S_T0}, s{S_T0}, {hex(LY.FL2_OFF)}
v_mov_b32 v239, s{S_T0}
v_mov_b32 v238, 0
s_cmp_lg_u32 s{S_W}, 0
s_cbranch_scc1 {L('nozf')}
s_mov_b64 exec, 1
buffer_store_dword v238, v239, {G}, 0 offen sc1
s_mov_b64 exec, -1""", ("label", "nozf")]]
    announce = [[f"""v_mov_b32 v238, 1
s_cmp_lg_u32 s{S_W}, 0
s_cbranch_scc1 {L('noan')}
s_mov_b64 exec, 1
global_atomic_add v7, v238, s[{P_DBG}:{P_DBG+1}] sc1
s_mov_b64 exec, -1""", ("label", "noan")]]
    coload = [[f"""s_cmp_lg_u32 s{S_W}, 0
s_cbranch_scc1 {L('noco')}
global_load_dword v3, v7, s[{P_DBG}:{P_DBG+1}] sc1""", ("label", "noco")]]

    e(f"""s_lshr_b32 s{S_T0}, s{S_W}, 1
s_lshl_b32 s{S_T0}, s{S_T0}, 14
s_add_u32 s{S_T0}, s{S_T0}, 0x10000
v_and_b32 v7, 7, v2
v_xor_b32 v7, v7, v3
v_lshlrev_b32 v7, 4, v7
v_lshlrev_b32 v8, 7, v2
v_add_u32 v8, v8, v7
v_add_u32 v8, s{S_T0}, v8
v_xor_b32 v9, 64, v8
v_add_u32 v10, 0x10000, v8
v_add_u32 v11, 0x10000, v9
v_lshrrev_b32 v7, 2, v2
v_and_b32 v16, 1, v3
v_lshlrev_b32 v16, 2, v16
v_or_b32 v16, v16, v7
v_lshlrev_b32 v240, 3, v3
v_add_u32 v240, v240, v7
v_lshlrev_b32 v240, 8, v240
v_and_b32 v241, 3, v1
v_lshlrev_b32 v241, 3, v241
v_add_u32 v240, v240, v241
s_and_b32 s{S_T1}, s{S_W}, 1
s_lshl_b32 s{S_T1}, s{S_T1}, 2""")
    for i in range(4):
        e(f"s_add_u32 s{S_T0}, s{S_T1}, {i}\nv_xor_b32 v242, s{S_T0}, v16\nv_lshlrev_b32 v242, 5, v242\nv_add_u32 v{12+i}, v240, v242")
    e(f"s_lshl_b32 s{S_T0}, s{S_H}, 2\nv_mov_b32 v7, s{S_T0}")
    setup2 = [[x] for x in f"""v_and_b32 v240, 7, v1
v_and_b32 v241, 8, v1
v_lshlrev_b32 v241, 1, v241
v_or_b32 v240, v240, v241
v_and_b32 v241, 1, v3
v_lshlrev_b32 v242, 5, v241
v_add_u32 v240, v240, v242
v_lshlrev_b32 v240, 4, v240
v_lshrrev_b32 v243, 1, v3
v_lshlrev_b32 v244, 10, v243
v_add_u32 v16, v240, v244
s_lshl_b32 s{S_T0}, s{S_H}, 5
s_sub_u32 s{S_T1}, 15, s{S_P}
s_cmp_lt_u32 s{S_W}, 2|s_cselect_b32 s{S_T1}, s{S_T1}, s{S_P}
s_lshl_b32 s{S_T1}, s{S_T1}, 1
s_add_u32 s{S_T0}, s{S_T0}, s{S_T1}
s_lshl_b32 s{S_T0}, s{S_T0}, 15
s_add_u32 s{S_T0}, s{S_T0}, {hex(LY.KVF_OFF)}
s_and_b32 s{S_T2}, s{S_W}, 1
s_lshl_b32 s{S_T1}, s{S_T2}, 12
s_add_u32 s{S_T1}, s{S_T1}, s{S_T0}
v_add_u32 v16, s{S_T1}, v16
v_add_u32 v240, v2, v242
v_lshlrev_b32 v240, 4, v240
v_lshlrev_b32 v245, 12, v243
v_add_u32 v17, v240, v245
s_lshl_b32 s{S_T1}, s{S_T2}, 11
s_add_u32 s{S_T1}, s{S_T1}, s{S_T0}
s_add_u32 s{S_T1}, s{S_T1}, 16384
v_add_u32 v17, s{S_T1}, v17
v_add_u32 v18, v240, v244
s_lshr_b32 s{S_T0}, s{S_W}, 1
s_mul_i32 s{S_T0}, s{S_T0}, {QL - 16384}
s_sub_u32 s{S_T0}, {QL}, s{S_T0}
s_lshl_b32 s{S_T1}, s{S_T2}, 12
s_add_u32 s{S_T0}, s{S_T0}, s{S_T1}
v_add_u32 v18, s{S_T0}, v18
s_mov_b32 s{S_SO}, 0
s_mov_b32 s{S_SO+1}, 8192
s_mov_b32 s{S_SO+2}, 32768
s_mov_b32 s{S_SO+3}, 40960
s_mov_b32 s{S_SCALE}, {f32bits(LY.QSCALE)}""".split("\n")]
    setup2 = [it[0].split("|") for it in setup2]

    def XF(T, j): return 32 + 4 * j
    def WF(T, j): return 64 + 32 * (T & 1) + 4 * j
    def read_lists(T):
        xbuf = find(T, xb); wbuf = find(T, wb)
        ks = T - xbuf["first"]
        xs = []; wl = []
        for j in range(8):
            addr = xbuf["R"] - 65536 + j * 2048
            xs.append([("lg", f"ds_read_b128 {vr(XF(T,j),4)}, v{8 + ks + 2*(addr >> 16)} offset:{addr & 0xffff}", ("x", T, j))])
        wbs = [wbuf["R"], wbuf["R"] + 8192] if wbuf["kind"] == "wkv" else [wbuf["R"] + (T - wbuf["first"]) * 8192]
        for mt, b in enumerate(wbs):
            for i in range(4):
                for half in range(2):
                    wl.append([("lg", f"ds_read_b64_tr_b16 {vr(WF(T, mt*4+i) + 2*half, 2)}, v{12+i} offset:{b + half*1024}", ("w", T))])
        return xs, wl
    def mfma_list(T):
        out = []
        for rb in range(8):
            for db in range(4):
                a = (rb * 4 + db) * 4
                if kind[T] == "K":
                    out.append(f"v_mfma_f32_16x16x32_bf16 {ar(a,4)}, {vr(WF(T,db),4)}, {vr(XF(T,rb),4)}, {'0' if T == 0 else ar(a,4)}")
                    out.append(f"v_mfma_f32_16x16x32_bf16 {ar(a+128,4)}, {vr(XF(T,rb),4)}, {vr(WF(T,4+db),4)}, {'0' if T == 0 else ar(a+128,4)}")
                elif kind[T] == "k":
                    out.append(f"v_mfma_f32_16x16x32_bf16 {ar(a,4)}, {vr(WF(T,db),4)}, {vr(XF(T,rb),4)}, {'0' if T == kind.index('k') else ar(a,4)}")
                elif kind[T] == "v":
                    out.append(f"v_mfma_f32_16x16x32_bf16 {ar(a+128,4)}, {vr(XF(T,rb),4)}, {vr(WF(T,db),4)}, {'0' if T == kind.index('v') else ar(a+128,4)}")
                else:
                    out.append(f"v_mfma_f32_16x16x32_bf16 {vr(128+a,4)}, {vr(WF(T,db),4)}, {vr(XF(T,rb),4)}, {'0' if T == TQ0 else vr(128+a,4)}")
        return out
    ET = [20, 21, 22, 23, 24, 25, 30, 31]
    def kv_epi_items():
        items = []
        def ps(blkA, blkB, voff, soff, imm):
            for i in range(4): items.append([f"v_accvgpr_read_b32 v{ET[4+i]}, a{blkB+i}"])
            for i in range(4): items.append([f"v_accvgpr_read_b32 v{ET[i]}, a{blkA+i}"])
            for i in range(4): items.append([f"v_cvt_pk_bf16_f32 v{ET[i]}, v{ET[2*i]}, v{ET[2*i+1]}"])
            items.append([("vm", f"buffer_store_dwordx4 v[20:23], v{voff}, {G}, s{soff} offen offset:{imm}{KVST}", "kv")])
        for rb in range(8):
            for ee in range(2):
                ps((rb*4 + 2*ee)*4, (rb*4 + 2*ee + 1)*4, 16, S_SO + (rb >> 1), ee*2048 + (rb & 1)*128)
        for f in range(4):
            for db in range(4):
                ps(128 + ((2*f)*4 + db)*4, 128 + ((2*f+1)*4 + db)*4, 17, S_SO + f, (db >> 1)*1024 + (db & 1)*256)
        return items

    fill = {T: [] for T in range(NT)}
    def plan(items, Ts):
        if not items: return
        per = -(-len(items) // len(Ts))
        for T in Ts:
            fill[T] += items[:per]; items = items[per:]
        assert not items
    def srd_items(d, p, n):
        return [[f"s_mov_b32 s{d}, s{p}", f"s_mov_b32 s{d+1}, s{p+1}"], [f"s_mov_b32 s{d+2}, {hex(n)}", f"s_mov_b32 s{d+3}, 0x00020000"]]
    fill[0] += zeroflag
    fill[5] += announce
    fill[13] += coload
    assert TQ0 >= 8
    plan(setup2 + [["v_lshlrev_b32 v2, 4, v1"]], [0])
    PFP = os.environ.get("PFP", "b")
    if PFP == "a": plan(pf2, [1, 2, 3, 4]); plan(pf1, [5, 6, 7, 10])
    if PFP == "b": plan(pf1, [1, 2, 3]); plan(pf2, [4, 5, 6, 7])
    if PFP == "c": plan(pf2, [2, 3, 4, 5, 6, 7])
    if PFP == "s":
        pfv = pf(SRD_WV2, [f"s_mul_i32 s{S_G0}, s{S_PFI}, 4096"], [0, 1024, 2048, 3072])
        plan(pfv, [2, 3, 4, 5]); plan(pf2, [6, 7, 8, 9, 10])
    fill[6] += [[f"""s_cmp_gt_u32 s2, 2
s_cbranch_scc1 {L('nofl')}
v_mov_b32 v248, 0
v_mov_b32 v249, 0
v_mov_b32 v250, 0
v_mov_b32 v251, 0
v_lshlrev_b32 v252, 4, v0
s_lshl_b32 s{S_T0}, s2, 12
s_add_u32 s{S_T0}, s{S_T0}, {hex(LY.FL_OFF)}
buffer_store_dwordx4 v[248:251], v252, {G}, s{S_T0} offen""", ("label", "nofl")]]
    GR_BASE = 128
    g_ld, g_cp = PS.gate_stream(GR_BASE, 2, S_W, 1, SRD_X, SRD_T, SRD_G, S_M, S_G0)
    g_ld.append([f"v_add_u32 v{GR_BASE+1}, {hex(LY.G_OFF)}, v{GR_BASE+1}"])
    plan(g_ld, [1])
    plan(g_cp, [6, 7] if not SPLIT else [8, 9, 10, 12, 13, 14])
    def code_pf(srd, vtmp, dst, tracked=True):
        lab = k.newlabel("pc")
        ld = f"buffer_load_dwordx4 {dst}, v{vtmp}, s[{srd}:{srd+3}], s{S_T0} offen"
        return [[f"s_getpc_b64 s[{srd}:{srd+1}]", ("label", lab), f"s_sub_u32 s{srd}, s{srd}, {L(lab)}-main_kernel", f"s_subb_u32 s{srd+1}, s{srd+1}, 0"],
                [f"s_mov_b32 s{srd+2}, all_code_end-main_kernel", f"s_mov_b32 s{srd+3}, 0x00020000"],
                [f"s_lshr_b32 s{S_T0}, s2, 3", f"s_lshl_b32 s{S_T0}, s{S_T0}, 12"],
                [f"v_lshlrev_b32 v{vtmp}, 4, v0"],
                [("vm", ld, "t") if tracked else ld]]
    if "x_nocpf" not in EXP:
        fill[11] += code_pf(SRD_T, 2, "v[20:23]")
        fill[TP - 4] += code_pf(SRD_T, 2, "a[0:3]")
    if SPLIT:
        it_ = kv_epi_items()
        plan(it_[:208], list(range(TE0, after("v")))); plan(it_[208:], list(range(after("v"), TP - 1)))
    else:
        plan(kv_epi_items(), list(range(TE0, TP - 1)))
    ai = [x.split("|") for x in f"""s_lshl_b32 s{S_N1}, s{S_P}, 1
s_add_u32 s{S_N1}, s{S_N1}, 2
s_and_b32 s{S_WODD}, s{S_W}, 1
s_lshl_b32 s{S_HB}, s{S_H}, 20
s_add_u32 s{S_HB}, s{S_HB}, {hex(LY.KVF_OFF)}
s_add_u32 s{S_HB}, s{S_HB}, s{S_W4K}
s_sub_u32 s{S_RX}, 15, s{S_P}
s_lshl_b32 s{S_RX}, s{S_RX}, 2
s_add_u32 s{S_RX}, s{S_RX}, s{S_W}
s_lshl_b32 s{S_RY}, s{S_P}, 2
s_add_u32 s{S_RY}, s{S_RY}, s{S_W}
s_mov_b32 s{SRD_K}, s{SRD_G}
s_mov_b32 s{SRD_K+1}, s{SRD_G+1}
s_mov_b32 s{SRD_K+2}, {hex(WSB)}
s_mov_b32 s{SRD_K+3}, 0x00020000
s_mov_b32 s{SRD_V}, s{SRD_G}
s_mov_b32 s{SRD_V+1}, s{SRD_G+1}
s_mov_b32 s{SRD_V+2}, {hex(WSB)}
s_mov_b32 s{SRD_V+3}, 0x00020000
s_sub_u32 s{S_N1M2}, s{S_N1}, 2
s_lshl_b32 s{S_T0}, s{S_N1M2}, 15
s_add_u32 s{S_KA}, s{S_HB}, s{S_T0}
s_add_u32 s{S_KOFF}, s{S_KA}, 0x8000
s_add_u32 s{S_KB}, s{S_KA}, 0x10000
s_cmp_eq_u32 s{S_N1}, 2|s_cselect_b32 s{S_KB}, s{S_KB}, s{S_HB}
s_add_u32 s{S_DB}, s{S_W4K}, 0x10000
s_sub_i32 s{S_N1M3}, s{S_N1}, 3
s_lshl_b32 s{S_FC}, 9, s{S_N1}
s_lshr_b32 s{S_FC}, s{S_FC}, 3
s_or_b32 s{S_FC}, s{S_FC}, 0x10002
s_sub_u32 s{S_T0}, s{S_N1}, 1
s_lshl_b32 s{S_FB}, 1, s{S_T0}
s_or_b32 s{S_FB}, s{S_FB}, 0xc000
s_lshl_b32 s{S_KX2}, s{S_WODD}, 14
s_or_b32 s{S_KX2}, s{S_KX2}, 0x10000
s_lshl_b32 s{S_T0}, s{S_H}, 7
s_lshl_b32 s{S_T1}, s{S_P}, 2
s_add_u32 s{S_T0}, s{S_T0}, s{S_T1}
s_add_u32 s{S_T0}, s{S_T0}, {hex(LY.FL2_OFF)}
v_mov_b32 v31, s{S_T0}
v_mov_b32 v23, 1
v_lshlrev_b32 v24, 4, v1
v_add_u32 v25, 0x8000, v24
v_add_u32 v30, 0x4000, v24""".split("\n")]
    plan(ai, [TP - 1])
    plan([[f"v_accvgpr_write_b32 a{r}, 0"] for r in range(128)], [TP, TP + 1, TP + 2])

    for it in pro_b: emit_item(it)
    k.wait(vmtags=(find(0, xb)["id"], find(0, wb)["id"]))
    e("s_barrier")
    ST("first")
    xs0, wl0 = read_lists(0)
    for it in wl0 + xs0: emit_item(it)
    dm_carry = pro_c
    def dma4(m0expr, voff, srd, soff, tag=None):
        mk = (lambda s: ("vm", s, tag)) if tag else (lambda s: s)
        out = [[m0expr, "s_nop 0", mk(f"buffer_load_dwordx4 v{voff}, s[{srd}:{srd+3}], s{soff} offen{KVS} lds")]]
        for i in range(1, 4):
            out.append([mk(f"buffer_load_dwordx4 v{voff}, s[{srd}:{srd+3}], s{soff} offen offset:{i*1024}{KVS} lds")])
        return out
    BG = 3
    for T in range(NT):
        need = [b["id"] for b in xb + wb if b["first"] == T + 1]
        dm = dm_carry; dm_carry = []
        ST(f"T{T}")
        ms = mfma_list(T); nm = len(ms); per = nm // 8
        bar = bool(need) or T == NT - 1
        if bar:
            dm = dm + issue_ready(T)
            if kind[T] != "K" and len(dm) > 8 and T + 1 < NT and not [b for b in xb + wb if b["first"] == T + 2]:
                dm_carry = dm[8:]; dm = dm[:8]
        if T == TP:
            dm = dm + dma4(f"s_add_u32 m0, s{S_W4K}, 0x10000", 24, SRD_G, S_KA, "k0")
            dm = dm + dma4(f"s_mov_b32 m0, s{S_W4K}", 25, SRD_G, S_KA, "k1")
            dm_carry = dma4(f"s_add_u32 m0, s{S_W4K}, 0x8000", 30, SRD_G, S_KA, "v0") + dma4(f"s_add_u32 m0, s{S_W4K}, 0x18000", 30, SRD_G, S_KOFF, "v1")
        xs, wl = read_lists(T + 1) if T + 1 < NT else ([], [])
        lo_r = BG + 1 if bar else 0
        pre = [[] for _ in range(nm)]
        for j, it in enumerate(xs):
            pre[max(lo_r, per * (j + 1) - 1)].append(it)
        cand = [g for g in range(lo_r, (nm * 13) // 16) if not pre[g]]
        for j, it in enumerate(wl):
            pre[cand[(j * len(cand)) // len(wl)]].append(it)
        g2 = spread(nm, dm, lo_r + 1, nm) if dm else {}
        for g, its in g2.items(): pre[g] += its
        load = [sum(len(it) for it in pre[i]) for i in range(nm)]
        if bar: load[BG] += 2
        fl = fill[T]; lo = 4 if T == TE0 or (SPLIT and T == after("v")) else 0
        tot = sum(load[lo:]) + sum(min(len(it), 4) for it in fl)
        fi = 0; acc = 0.0
        for i in range(nm):
            if i % per == 0:
                k.wait(lgtags=[("x", T, i // per)] + ([("w", T)] if i == 0 else []))
            e(ms[i])
            if bar and i == BG:
                if T == TP:
                    e("s_waitcnt vmcnt(0)"); k.vm = []
                k.wait(vmtags=tuple(need), lgtags=[("x", T, 7)])
                e("s_barrier")
                if T == TP:
                    e(f"s_cmp_lg_u32 s{S_W}, 0\ns_cbranch_scc1 {L('noat')}")
                    e(f"""v_readfirstlane_b32 s{S_T0}, v3
s_mov_b64 exec, 1
buffer_store_dword v23, v31, {G}, 0 offen sc1
s_mov_b64 exec, -1
s_cmp_lt_u32 s{S_T0}, {99 if "x_slow" in EXP else 8}
s_cbranch_scc1 {L('slowpub')}""")
                    k.label("noat")
            for it in pre[i]: emit_item(it)
            if i < lo: continue
            acc += load[i]
            tgt = tot * (i - lo + 1) / (nm - lo)
            while fi < len(fl) and (i == nm - 1 or acc + 0.5 * min(len(fl[fi]), 4) <= tgt + 0.01):
                emit_item(fl[fi]); acc += min(len(fl[fi]), 4); fi += 1
    assert not pend and not dm_carry
    import k_main_attn
    k_main_attn.gen(k, globals(), locals())
    return k
```

```python
from asmlib import *
import layout as LY
import prep_streams as PS

def gen(k, GL, LC):
    globals().update({n: v for n, v in GL.items() if n.isupper() or n[0] in "SVP" or n in ("f32bits", "gen_main", "EXP")})
    e = k.e; L = k.L
    OUT3 = "x_out3" in EXP or "x_out4" in EXP
    G, ST, dma4, emit_item = LC["G"], LC["ST"], LC["dma4"], LC["emit_item"]
    pk = lambda r: vr(r, 2)
    ST("q0")
    e(f"""s_lshl_b32 s{S_T0}, s{S_H}, 7
s_add_u32 s{S_T0}, s{S_T0}, {hex(LY.FL2_OFF)}
v_min_u32 v{V_DBG}, 7, v1
v_lshlrev_b32 v{V_DBG}, 2, v{V_DBG}
v_add_u32 v{V_DBG}, s{S_T0}, v{V_DBG}
v_mov_b32 v{V_D0}, v24
v_mov_b32 v{V_D0+1}, v25
v_mov_b32 v{V_D0+2}, v30
v_add_u32 v{V_D0+3}, 0xc000, v24""")
    k.vmem(f"buffer_load_dword v{V_POLL}, v{V_DBG}, {G}, 0 offen sc1", "poll")
    e(f"s_lshr_b32 s{S_T0}, s{S_W}, 1\ns_lshl_b32 s{S_T0}, s{S_T0}, 14\nv_add_u32 v103, s{S_T0}, v18")
    e(f"v_mov_b32 v104, v18\nv_mov_b32 v{V_M}, s{S_SCALE}\nv_mov_b32 v{V_M+1}, s{S_SCALE}")
    n = 0
    for rb in range(8):
        for ee in range(2):
            a = 128 + (rb*4 + 2*ee)*4
            t = 64 + 4 * (n % 4); n += 1
            for i in range(4): e(f"v_pk_mul_f32 {pk(a+2*i)}, {pk(a+2*i)}, {pk(V_M)}")
            for i in range(4): e(f"v_cvt_pk_bf16_f32 v{t+i}, v{a+2*i}, v{a+2*i+1}")
            e(f"ds_write_b128 v{104 if rb < 4 else 103}, {vr(t,4)} offset:{(rb >> 1)*8192 + ee*2048 + (rb & 1)*256}")
    e(f"""v_and_b32 v105, 31, v1
v_lshrrev_b32 v106, 5, v1
v_lshlrev_b32 v{V_LB}, 2, v106
v_sub_u32 v{V_LB}, v105, v{V_LB}
v_lshrrev_b32 v{V_T}, 4, v105
v_lshlrev_b32 v{V_T}, 17, v{V_T}
v_lshlrev_b32 v{V_T+1}, 8, v106
v_add_u32 v{V_T}, v{V_T}, v{V_T+1}
v_and_b32 v{V_T+1}, 15, v105
v_lshlrev_b32 v{V_T+1}, 4, v{V_T+1}
v_add_u32 v{V_T}, v{V_T}, v{V_T+1}
s_lshl_b32 s{S_T0}, s{S_H}, 12
s_add_u32 s{S_T0}, s{S_T0}, {hex(LY.CTX_OFF)}
v_add_u32 v{V_CTX}, s{S_T0}, v{V_T}
v_mov_b32 v{V_BIG}, {f32bits(-1e30)}
v_mov_b32 v{V_LX}, 0
v_mov_b32 v{V_LY}, 0
v_add_u32 v{V_KA}, 0x10000, v{V_D0}
v_add_u32 v{V_VA}, 0x10000, v{V_D0}
s_lshl_b32 s{S_T0}, s{S_W}, 13
s_add_u32 s{S_T1}, s{S_T0}, {QL}
v_add_u32 v{V_T}, s{S_T1}, v{V_D0}
s_lshr_b32 s{S_T1}, s{S_W}, 1
s_lshl_b32 s{S_T1}, s{S_T1}, 14
s_add_u32 s{S_T0}, s{S_T0}, s{S_T1}
v_add_u32 v{V_T+1}, s{S_T0}, v{V_D0}""")
    ST("qe")
    k.wait(vmtags=("k0",))
    e("s_waitcnt lgkmcnt(0)\ns_barrier")
    ST("attn")
    for i in range(8):
        e(f"ds_read_b128 {ar(QX+4*i,4)}, v{V_T} offset:{i*1024}")
        e(f"ds_read_b128 {vr(KF+4*i,4)}, v{V_KA} offset:{i*1024}")
    for i in range(8, 16):
        e(f"ds_read_b128 {vr(KF+4*i,4)}, v{V_KA} offset:{i*1024}")
    for i in range(8):
        e(f"ds_read_b128 {ar(QY+4*i,4)}, v{V_T+1} offset:{16384 + i*1024}")

    def regs(Z):
        return dict(S=SX, Q=QX, N=NX, O=OX, P=PX, L=V_LX) if Z == "X" else dict(S=SY, Q=QY, N=NY, O=OY, P=PY, L=V_LY)
    def qk(Z, zero=False):
        r = regs(Z); out = []
        for kb in range(2):
            for ks in range(8):
                c = ("0" if zero else vr(r["N"], 16)) if ks == 0 else vr(r["S"] + 16*kb, 16)
                out.append(f"v_mfma_f32_32x32x16_bf16 {vr(r['S']+16*kb,16)}, {vr(KF+4*(8*kb+ks),4)}, {ar(r['Q']+4*ks,4)}, {c}")
        return out
    def pv(Z):
        r = regs(Z); out = []
        for db in range(4):
            for s in range(4):
                out.append(f"v_mfma_f32_32x32x16_bf16 {ar(r['O']+16*db,16)}, {ar(VF+4*(4*db+s),4)}, {vr(r['P']+4*s,4)}, {ar(r['O']+16*db,16)}")
        return out
    def sm_core(Z):
        r = regs(Z); S, P = r["S"], r["P"]
        t = lambda i: V_X + (i % 8)
        it = []
        for pi in range(17):
            post = []
            if pi >= 1:
                q = pi - 1
                post.append((1, [f"v_cvt_pk_bf16_f32 v{P+q}, v{t(2*q)}, v{t(2*q+1)}"]))
                if q == 1:
                    post.append((1, [f"v_add_f32 v{V_LT}, v{t(0)}, v{t(2)}"]))
                    post.append((1, [f"v_add_f32 v{V_LT+1}, v{t(1)}, v{t(3)}"]))
                elif q >= 2:
                    post.append((1, [f"v_add_f32 v{V_LT}, v{V_LT}, v{t(2*q)}"]))
                    post.append((1, [f"v_add_f32 v{V_LT+1}, v{V_LT+1}, v{t(2*q+1)}"]))
            if pi < 16:
                it.append((2, [f"v_exp_f32 v{t(2*pi)}, v{S+2*pi}"]))
                if post: it.append(post.pop())
                it.append((2, [f"v_exp_f32 v{t(2*pi+1)}, v{S+2*pi+1}"]))
            it += post
        it.append((1, [f"v_add_f32 v{V_LT}, v{V_LT}, v{V_LT+1}"]))
        return it
    redo_sites = []
    def sm(Z, tag):
        r = regs(Z)
        it = sm_core(Z)
        lab = f"rd{Z}{tag}"
        it.append((1, [f"v_cmp_nge_f32 vcc, {THR}, v{V_LT}"]))
        it.append((1, [f"s_cbranch_vccnz {L(lab)}", ("label", lab + "r")]))
        it.append((1, [f"v_add_f32 v{r['L']}, v{r['L']}, v{V_LT}"]))
        redo_sites.append((Z, lab))
        return it
    def emit(x):
        if isinstance(x, tuple): k.label(x[1])
        else: e(x)
    def weave(mf, fixed, stream, lo=0):
        n = len(mf)
        fw = [sum(w for w, _ in fixed.get(g, [])) for g in range(n)]
        tot = sum(w for w, _ in stream) + sum(fw)
        per = tot / n
        acc = 0.0; si = 0
        for g in range(n):
            if mf[g]: e(mf[g])
            gw = 0
            for w, ins in fixed.get(g, []):
                for x in ins: emit(x)
                acc += w; gw += w
            while g >= lo and si < len(stream) and (g == n - 1 or (acc + stream[si][0] * 0.5 <= per * (g + 1) + 0.01 and gw + stream[si][0] <= 6)):
                for x in stream[si][1]: emit(x)
                acc += stream[si][0]; gw += stream[si][0]; si += 1
    def add(fx, g, ins, w=None):
        fx.setdefault(g, []).append((len(ins) if w is None else w, ins))
    def vlds(i): return 32768 + ((i & 3) * 4 + (i >> 2)) * 1024
    NV1 = 6
    def unit(m0, voff, srd, soff):
        d = dma4(m0, voff, srd, soff)
        return [[d[0][0]], [d[0][2]]] + d[1:]
    def body(tag, n16):
        mf = qk("X") + pv("X") + qk("Y") + pv("Y")
        fx = {}
        e(f"s_waitcnt lgkmcnt({NV1})")
        for i in range(NV1, 16):
            add(fx, int((i - NV1) * 1.25), [f"ds_read_b128 {ar(VF+4*i,4)}, v{V_VA} offset:{vlds(i)}"])
        add(fx, 13, [f"s_mov_b32 s{S_VOFF}, s{S_KOFF}", f"s_mov_b32 s{S_KOFF}, s{S_KB}"])
        add(fx, 14, [f"s_add_u32 s{S_KB}, s{S_KB}, {0x10000 if n16 else 0x8000}", f"s_xor_b32 s{S_DB}, s{S_DB}, 0x10000"])
        add(fx, 15, ["s_waitcnt vmcnt(0) lgkmcnt(0)", "s_barrier"])
        dv = unit(f"s_add_u32 m0, s{S_DB}, 0x8000", V_D0+2, SRD_V, S_VOFF)
        dk = unit(f"s_mov_b32 m0, s{S_DB}", V_D0, SRD_K, S_KOFF)
        if n16:
            dv += unit(f"s_add_u32 m0, s{S_DB}, 0xc000", V_D0+3, SRD_V, S_VOFF)
            dk += unit(f"s_add_u32 m0, s{S_DB}, 0x4000", V_D0+1, SRD_K, S_KOFF)
            for i, it in enumerate(dv): add(fx, 16 + (i * 13) // len(dv), it)
            for i, it in enumerate(dk): add(fx, 32 + (i * (10 if "x_kearly" in EXP else 15)) // len(dk), it)
            add(fx, 29, [f"s_cmp_eq_u32 s{S_J}, s{S_N1M2}", f"s_cselect_b32 s{S_KX}, s{S_KX2}, 0x10000"])
            add(fx, 30, [f"v_xor_b32 v{V_KA}, s{S_KX}, v{V_KA}"])
        else:
            for i, it in enumerate(dv + dk): add(fx, 16 + (i * 14) // 10, it)
            add(fx, 30, [f"v_xor_b32 v{V_KA}, 0x10000, v{V_KA}"])
        add(fx, 31, [f"v_xor_b32 v{V_VA}, 0x10000, v{V_VA}"])
        for i in range(16):
            add(fx, 32 + 2 + int(i * 1.35), [f"ds_read_b128 {vr(KF+4*i,4)}, v{V_KA} offset:{i*1024}"])
        for i in range(NV1):
            add(fx, 32 + 24 + int(i * 1.3), [f"ds_read_b128 {ar(VF+4*i,4)}, v{V_VA} offset:{vlds(i)}"])
        weave(mf[:32], {g: v for g, v in fx.items() if g < 32}, sm("Y", tag))
        if n16:
            e(f"s_bitcmp1_b32 s{S_FB}, s{S_J}\ns_cbranch_scc1 {L('hB')}")
            k.label("hBr")
        weave(mf[32:], {g - 32: v for g, v in fx.items() if g >= 32}, sm("X", tag))
        e(f"s_add_u32 s{S_J}, s{S_J}, 1\ns_bitcmp1_b32 s{S_FC}, s{S_J}")
    def tile_max_items(S):
        it = [[f"v_max3_f32 v{V_M}, v{S}, v{S+1}, v{S+2}"], [f"v_max3_f32 v{V_M+1}, v{S+3}, v{S+4}, v{S+5}"]]
        i = 6; tog = 0
        while i < 32:
            d = V_M + tog
            it.append([f"v_max3_f32 v{d}, v{d}, v{S+i}, v{S+i+1}"]); i += 2; tog ^= 1
        it.append([f"v_max_f32 v{V_M}, v{V_M}, v{V_M+1}"])
        it.append([f"v_mov_b32 v{V_M+1}, v{V_M}", "s_nop 1", f"v_permlane32_swap_b32 v{V_M+1}, v{V_M}", "s_nop 1", f"v_max_f32 v{V_M}, v{V_M}, v{V_M+1}"])
        return it
    def first_items(Z, packed):
        r = regs(Z); S, N = r["S"], r["N"]
        it = tile_max_items(S)
        it.append([f"v_sub_f32 v{N}, 0, v{V_M}"])
        it.append([f"v_sub_f32 v{N+1}, 0, v{V_M}"])
        if packed:
            for i in range(16): it.append([f"v_pk_add_f32 {pk(S+2*i)}, {pk(S+2*i)}, {pk(N)}"])
            for i in range(1, 8): it.append([f"v_pk_mov_b32 {pk(N+2*i)}, {pk(N)}, {pk(N)}"])
        else:
            for i in range(32): it.append([f"v_add_f32 v{S+i}, v{S+i}, v{N}"])
            for i in range(2, 16): it.append([f"v_mov_b32 v{N+i}, v{N}"])
        return it
    def flat(items):
        for it in items:
            for x in it: emit(x)
    def mask_code(S, nm):
        e(f"s_cmp_lt_i32 s{S_T0}, -1\ns_cbranch_scc1 {L(nm + 'r')}")
        e(f"s_cmp_eq_i32 s{S_T0}, -1\ns_cbranch_scc1 {L(nm + 'a')}")
        e(f"v_mov_b32 v{S+16}, v{V_BIG}\nv_mov_b32 v{S+17}, v{V_BIG}")
        for r in range(1, 8): e(f"v_pk_mov_b32 {pk(S+16+2*r)}, {pk(S+16)}, {pk(S+16)}")
        e(f"s_cmp_eq_i32 s{S_T0}, 0\ns_cbranch_scc1 {L(nm + 'b')}")
        for r in range(8): e(f"v_pk_mov_b32 {pk(S+2*r)}, {pk(S+16)}, {pk(S+16)}")
        e(f"s_branch {L(nm + 'r')}")
        k.label(nm + "a")
        for r in range(16):
            e(f"v_cndmask_b32 v{S+16+r}, v{V_BIG}, v{S+16+r}, s[{MASKP[r]}:{MASKP[r]+1}]")
        e(f"s_branch {L(nm + 'r')}")
        k.label(nm + "b")
        for r in range(16):
            e(f"v_cndmask_b32 v{S+r}, v{V_BIG}, v{S+r}, s[{MASKP[r]}:{MASKP[r]+1}]")
        k.label(nm + "r")

    for r in range(16):
        f = LY.row2key(8 * (r >> 2) + (r & 3))
        e(f"v_cmp_le_i32 s[{MASKP[r]}:{MASKP[r]+1}], {f}, v{V_LB}")
    e("s_waitcnt lgkmcnt(8)")
    fx = {}
    add(fx, 15, ["s_waitcnt vmcnt(0) lgkmcnt(0)", "s_barrier"])
    weave(qk("X", True), fx, [])
    def k2load(tag):
        flat(dma4(f"s_mov_b32 m0, s{S_DB}", V_D0, SRD_K, S_KOFF))
        e(f"s_cmp_lg_u32 s{S_N1}, 2\ns_cbranch_scc1 {L('nok2' + tag)}")
        flat(dma4(f"s_add_u32 m0, s{S_DB}, 0x4000", V_D0+1, SRD_K, S_KOFF))
        k.label("nok2" + tag)
    e(f"""v_cmp_ne_u32 vcc, 1, v{V_POLL}
s_mov_b32 s{S_KOFF}, s{S_KB}
s_cmp_eq_u32 s{S_N1}, 2
s_cselect_b32 s{S_T0}, 2, 1
s_lshl_b32 s{S_T0}, s{S_T0}, 15
s_add_u32 s{S_KB}, s{S_KB}, s{S_T0}
s_mov_b32 s{S_J}, 0
s_mov_b32 s{S_T2}, 1
s_cbranch_vccnz {L('late')}
s_mov_b32 s{S_T2}, 0""")
    k2load("a")
    k.label("late")
    ST("s1")
    fx = {}
    add(fx, 0, [f"v_xor_b32 v{V_KA}, 0x10000, v{V_KA}", f"v_xor_b32 v{V_VA}, 0x10000, v{V_VA}"])
    for i in range(14):
        add(fx, 2 + i, [f"ds_read_b128 {vr(KF+4*i,4)}, v{V_KA} offset:{i*1024}"])
    weave(qk("Y", True), fx, [(len(it), it) for it in first_items("X", False)], lo=2)
    for i in range(14, 16):
        e(f"ds_read_b128 {vr(KF+4*i,4)}, v{V_KA} offset:{i*1024}")
    e(f"""s_lshl_b32 s{S_T0}, s{S_W}, 8
s_add_u32 s{S_T0}, s{S_T0}, {16384}
v_lshlrev_b32 v{V_T}, 2, v1
v_add_u32 v{V_T}, s{S_T0}, v{V_T}
ds_write_b32 v{V_T}, v{NX}
v_xor_b32 v{V_NP}, 0x100, v{V_T}""")
    for i, (w, ins) in enumerate(sm("X", "p")):
        for x in ins: emit(x)
    ST("s2")
    e(f"s_cmp_eq_u32 s{S_T2}, 1\ns_cbranch_scc1 {L('spin')}")
    k.label("spinr")
    e("s_waitcnt lgkmcnt(0)\ns_barrier")
    ST("sync")
    e(f"ds_read_b32 v{V_NP}, v{V_NP}")
    for i in range(NV1):
        e(f"ds_read_b128 {ar(VF+4*i,4)}, v{V_VA} offset:{vlds(i)}")
    e(f"s_lshl_b32 s{S_T0}, s{S_N1M2}, 1\ns_sub_u32 s{S_T0}, s{S_T0}, s{S_RY}")
    mask_code(SY, "m0")
    flat(first_items("Y", True))
    e(f"s_cmp_lt_i32 s{S_N1M3}, 1\ns_cbranch_scc1 {L('loop16')}")
    k.label("loop8")
    body("a", False)
    e(f"s_cbranch_scc0 {L('loop8')}\ns_branch {L('hC')}")
    k.label("loop16")
    body("b", True)
    e(f"s_cbranch_scc0 {L('loop16')}")
    k.label("hC")
    def STJ(name, cond):
        if name in SMAP and Kern.STAMP:
            lab = k.newlabel("sj")
            e(f"s_cmp_lg_u32 s{S_J}, {cond}\ns_cbranch_scc1 {L(lab)}")
            ST(name); k.label(lab)
    STJ("inn1", f"s{S_N1}"); STJ("in1", 1); STJ("inm3", f"s{S_N1M3}")
    e(f"s_cmp_eq_u32 s{S_J}, s{S_N1}\ns_cbranch_scc1 {L('sw2')}")
    k.label("hCa")
    e(f"s_and_b32 s{S_T0}, s{S_J}, 15\ns_cmp_le_u32 s{S_T0}, 1\ns_cbranch_scc1 {L('mY')}")
    k.label("hCb")
    STJ("outn1", f"s{S_N1}"); STJ("out1", 1)
    e(f"""s_cmp_lt_i32 s{S_J}, s{S_N1M3}
s_cbranch_scc1 {L('loop8')}
s_add_u32 s{S_T0}, s{S_KA}, 0x10000
s_cmp_eq_u32 s{S_J}, s{S_N1M3}
s_cselect_b32 s{S_KB}, s{S_T0}, s{S_KB}
s_branch {L('loop16')}""")
    k.label("mY")
    e(f"""s_sub_u32 s{S_T0}, 32, s{S_N1}
s_add_u32 s{S_T0}, s{S_T0}, s{S_WODD}
s_sub_u32 s{S_T1}, s{S_N1}, 1
s_cmp_eq_u32 s{S_J}, 1
s_cselect_b32 s{S_T0}, s{S_T1}, s{S_T0}
s_lshl_b32 s{S_T0}, s{S_T0}, 1
s_sub_u32 s{S_T0}, s{S_T0}, s{S_RY}""")
    mask_code(SY, "m1")
    e(f"s_cmp_eq_u32 s{S_J}, 1\ns_cbranch_scc1 {L('hCb')}")
    ST("tail")
    for i in range(NV1, 16):
        e(f"ds_read_b128 {ar(VF+4*i,4)}, v{V_VA} offset:{vlds(i)}")
    KRL = [32 + 2*r for r in range(11)]; VRL = [54, 56, 58, 60, 62, 66, 68, 70]; WR = 72
    e(f"""s_load_dwordx2 s[4:5], s[0:1], 72
v_min_u32 v{V_T}, 39, v1
s_mul_i32 s{S_T0}, s{S_W}, 40
v_add_u32 v{V_T}, s{S_T0}, v{V_T}
v_lshlrev_b32 v{V_T+1}, 3, v{V_T}
v_lshlrev_b32 v{V_T+2}, 5, v{V_T}
v_lshlrev_b32 v2, 14, v{V_T}
s_lshl_b32 s{S_T0}, s{S_KA}, 4
s_add_u32 s{S_T0}, s{S_T0}, {hex(LY.UT_OFF)}
v_add_u32 v2, s{S_T0}, v2
v_add_u32 v3, 0x1000, v2
s_cmp_eq_u32 s{S_KA}, 0
s_cselect_b32 s{S_T0}, 0, 3840
s_cselect_b32 s{S_T1}, 16384, 0
s_add_u32 s{S_T0}, s{S_T0}, 0x10000
s_add_u32 s{S_T1}, s{S_T1}, 0x10000
v_add_u32 v{V_KA}, s{S_T0}, v{V_T+1}
v_add_u32 v{V_NP}, s{S_T1}, v{V_T+1}
v_add_u32 v{V_T+1}, {98304}, v{V_T+1}
s_mov_b32 s6, 5120
s_mov_b32 s7, 0x00020000
s_mov_b32 s{S_DS}, 8192""")
    if not OUT3:
        e(f"""v_bfe_u32 v5, v1, 4, 1
v_lshlrev_b32 v5, 2, v5
v_bfe_u32 v6, v1, 2, 2
v_add_u32 v5, v5, v6
v_mul_u32_u24 v5, 0x500, v5
v_and_b32 v6, 3, v1
v_lshl_add_u32 v5, v6, 3, v5
v_lshrrev_b32 v6, 5, v1
v_lshl_add_u32 v5, v6, 5, v5
s_mul_i32 s{S_T0}, s{S_W}, 320
v_add_u32 v5, s{S_T0}, v5""")
        e(f"""s_lshr_b32 s{S_T0}, s2, 1
s_lshl_b32 s{S_T1}, s{S_W}, 8
s_add_u32 s{S_T0}, s{S_T0}, s{S_T1}
s_mul_i32 s{S_T0}, s{S_T0}, 5120
s_and_b32 s{S_T1}, s2, 1
s_lshl_b32 s{S_T1}, s{S_T1}, 9
s_add_u32 s{S_T0}, s{S_T0}, s{S_T1}
s_add_u32 s{S_T0}, s{S_T0}, {hex(LY.WOF_OFF)}
v_and_b32 v7, 31, v1
v_lshlrev_b32 v7, 4, v7
v_add_u32 v7, s{S_T0}, v7
v_mul_u32_u24 v{V_LB}, {128*5120 - 4096}, v6
v_add_u32 v{V_LB}, v{V_LB}, v7
v_lshl_add_u32 v7, v6, 10, v7
s_mov_b32 s8, 4096
s_mov_b32 s9, {128*5120}""")
    st = sm("Y", "e")
    e("s_waitcnt vmcnt(0) lgkmcnt(0)\ns_barrier")
    fx = {}
    rd = [f"buffer_load_dwordx4 {vr(WR,4)}, v{V_T+2}, s[4:7], 0 offen", f"buffer_load_dwordx4 {vr(WR+4,4)}, v{V_T+2}, s[4:7], 0 offen offset:16"]
    for r in range(3): rd.append(f"ds_read_b64 {pk(KRL[r])}, v{V_NP} offset:{r*1280}")
    for r in range(8):
        rd.append(f"ds_read_b64 {pk(KRL[3+r])}, v{V_KA} offset:{r*1280}")
        rd.append(f"ds_read_b64 {pk(VRL[r])}, v{V_T+1} offset:{r*1280}")
    WOR = QX
    for i in range(0 if OUT3 else 5):
        for h in range(2):
            rd.append(f"ds_read_b64_tr_b16 {ar(WOR+4*i+2*h,2)}, v5 offset:{h*8*1280 + i*64}")
    for i, x in enumerate(rd): add(fx, i // 2, [x])
    weave(pv("X"), fx, st)
    MB = lambda wreg: f"s_and_b32 s{S_T0}, {wreg}, 1\ns_mul_i32 s{S_T0}, s{S_T0}, {18*1024}\ns_lshr_b32 s{S_T1}, {wreg}, 1\ns_mul_i32 s{S_T1}, s{S_T1}, {88*1024}\ns_add_u32 s{S_T0}, s{S_T0}, s{S_T1}\ns_add_u32 s{S_T0}, s{S_T0}, {24*1024}"
    e(MB(f"s{S_W}") + f"\nv_add_u32 v{V_T}, s{S_T0}, v{V_D0}\nv_mov_b32 v{NY+1}, v{V_LY}")
    e(f"ds_write_b64 v{V_T}, {pk(NY)} offset:{16*1024}")
    fx = {}
    for r in range(64):
        add(fx, 1 + r // 5 if r < 48 else 11 + (r - 48) // 4, [f"v_accvgpr_read_b32 v{192+r}, a{OX+r}"])
    for db in range(3):
        for q in range(4):
            add(fx, min(15, 4*db + 7 + q), [f"ds_write_b128 v{V_T}, {ar(OY+16*db+4*q,4)} offset:{(4*db+q)*1024}"])
    weave(pv("Y"), fx, [])
    e(f"s_xor_b32 s{S_T2}, s{S_W}, 1\n" + MB(f"s{S_T2}") + f"\nv_add_u32 v{V_T+1}, s{S_T0}, v{V_D0}\ns_lshl_b32 s{S_CTXB}, s{S_RX}, 18\ns_nop 1")
    for q in range(4):
        e(f"ds_write_b128 v{V_T}, {ar(OY+48+4*q,4)} offset:{(12+q)*1024}")
    e("s_waitcnt vmcnt(0) lgkmcnt(15)")
    for i, (vo, so, imm) in enumerate([] if OUT3 else [(7, "0", 0), (7, "0", 2048), (V_LB, "s8", 0), (7, "s9", 1024), (7, "s9", 3072)]):
        e(f"buffer_store_dwordx4 {ar(WOR+4*i,4)}, v{vo}, {G}, {so} offen offset:{imm}")
    uc = PS.u_compute(KRL, VRL, WR, 96, list(range(104, 126)), 84, 2, 3, G, S_M, S_DS)
    for x in uc[:100]: e(x)
    e("s_waitcnt lgkmcnt(0)\ns_barrier")
    e(f"ds_read_b64 {pk(NY)}, v{V_T+1} offset:{16*1024}")
    for i in range(16):
        e(f"ds_read_b128 {vr(128+4*i,4)}, v{V_T+1} offset:{i*1024}")
    for x in uc[100:]: e(x)
    e("s_waitcnt lgkmcnt(0)")
    A, D, B, C = 24, 25, 26, 28
    e(f"""v_min_f32 v{A}, v{NX}, v{NY}
v_sub_f32 v{B}, v{A}, v{NX}
v_sub_f32 v{C}, v{A}, v{NY}
v_exp_f32 v{B}, v{B}
v_exp_f32 v{C}, v{C}
s_nop 0
v_mul_f32 v{V_LX}, v{V_LX}, v{B}
v_fma_f32 v{V_LX}, v{NY+1}, v{C}, v{V_LX}
v_mov_b32 v{D}, v{V_LX}
s_nop 1
v_permlane32_swap_b32 v{D}, v{V_LX}
s_nop 1
v_add_f32 v{D}, v{D}, v{V_LX}
v_rcp_f32 v{D}, v{D}
s_nop 0
v_mul_f32 v{B}, v{B}, v{D}
v_mul_f32 v{C}, v{C}, v{D}
v_mov_b32 v{B+1}, v{B}
v_mov_b32 v{C+1}, v{C}""")
    for i in range(32): e(f"v_pk_mul_f32 {pk(192+2*i)}, {pk(192+2*i)}, {pk(B)}")
    for db in range(4):
        for s in range(2):
            t = V_E + 4 * (2*db+s)
            b = 16*db + 8*s
            for i in range(4): e(f"v_pk_fma_f32 {pk(192+b+2*i)}, {pk(128+b+2*i)}, {pk(C)}, {pk(192+b+2*i)}")
            for i in range(4): e(f"v_cvt_pk_bf16_f32 v{t+i}, v{192+b+2*i}, v{192+b+2*i+1}")
            e(f"buffer_store_dwordx4 {vr(t,4)}, v{V_CTX}, {G}, s{S_CTXB} offen offset:{db*1024 + s*512}{NTC}")
    if Kern.STAMP: e("s_waitcnt vmcnt(0)")
    ST("end")
    k.stamp_flush(SRD_G, LY.STAMP_OFF + 65536 * getattr(gen_main, "idx", 0), 2)
    k.label("end")
    e("s_endpgm")

    k.label("sw2")
    D = V_M
    e(f"""v_mov_b32 v{D}, v{V_LB}
v_mov_b32 v{V_T}, 0
v_mov_b32 v{V_T+1}, 0
v_permlane32_swap_b32 v{D}, v{V_LB}
v_mov_b32 v{V_T+2}, 0
v_mov_b32 v{V_T+3}, 0
v_add_f32 v{D}, v{D}, v{V_LB}
v_rcp_f32 v{D}, v{D}
s_nop 1
v_mov_b32 v{D+1}, v{D}""")
    for db in range(4):
        t = V_E + 16 * (db % 2)
        for i in range(16): e(f"v_accvgpr_read_b32 v{t+i}, a{OY+16*db+i}")
        e(f"v_mfma_f32_32x32x16_bf16 {ar(OY+16*db,16)}, {vr(V_T,4)}, {vr(V_T,4)}, 0")
        for i in range(8): e(f"v_pk_mul_f32 {pk(t+2*i)}, {pk(t+2*i)}, {pk(D)}")
        for s in range(2):
            o = PY + 8 * (db % 2) + 4 * s
            for i in range(4): e(f"v_cvt_pk_bf16_f32 v{o+i}, v{t+8*s+2*i}, v{t+8*s+2*i+1}")
            e(f"buffer_store_dwordx4 {vr(o,4)}, v{V_CTX}, {G}, s{S_CTXB} offen offset:{db*1024 + s*512}{NTC}")
    e(f"s_branch {L('hCa')}")
    k.label("hB")
    e(f"s_add_u32 s{S_T0}, s{S_J}, 1\ns_cmp_lg_u32 s{S_T0}, s{S_N1}\ns_cbranch_scc1 {L('hB1')}")
    e(f"s_xor_b32 s{S_T0}, s{S_W}, 1\ns_lshl_b32 s{S_T0}, s{S_T0}, 13\ns_add_u32 s{S_T0}, s{S_T0}, {QL}\nv_add_u32 v{V_T}, s{S_T0}, v{V_D0}")
    for i in range(8):
        e(f"ds_read_b128 {ar(QY+4*i,4)}, v{V_T} offset:{i*1024}")
    e(f"v_mov_b32 v{V_LB}, v{V_LY}\nv_mov_b32 v{V_LY}, 0\nv_mov_b32 v{NY}, v{V_NP}\nv_mov_b32 v{NY+1}, v{V_NP}")
    for r in range(1, 8): e(f"v_pk_mov_b32 {pk(NY+2*r)}, {pk(NY)}, {pk(NY)}")
    e(f"""s_lshl_b32 s{S_CTXB}, s{S_RY}, 18
s_xor_b32 s{S_RY}, s{S_RX}, 1
s_lshl_b32 s{S_T0}, s{S_WODD}, 14
v_add_u32 v{V_VA}, s{S_T0}, v{V_VA}
s_waitcnt lgkmcnt(0)""")
    k.label("hB1")
    e(f"s_cmp_lt_u32 s{S_J}, 14\ns_cbranch_scc1 {L('hBr')}")
    e(f"s_cmp_eq_u32 s{S_J}, 15\ns_cbranch_scc1 {L('hB2')}")
    e(f"""s_load_dwordx2 s[{SRD_K}:{SRD_K+1}], s[0:1], 40
s_load_dwordx2 s[{SRD_V}:{SRD_V+1}], s[0:1], 64
s_load_dwordx2 s[64:65], s[0:1], 56
s_and_b32 s{S_KA}, s2, 7
s_lshl_b32 s{S_KA}, s{S_KA}, 5
s_lshr_b32 s{S_T0}, s2, 3
s_add_u32 s{S_KA}, s{S_KA}, s{S_T0}
s_mov_b32 s{S_KOFF}, s{S_W4K}
s_mov_b32 s{S_KB}, s{S_W4K}
v_mov_b32 v{V_D0+1}, v{V_D0+2}
s_mov_b32 s{SRD_K+2}, 20480
s_mov_b32 s{SRD_V+2}, {16384+10240}""")
    if "x_nocpf" not in EXP:
        flat(LC["code_pf"](72, V_T, "v[32:35]", tracked=False))
    e(f"""s_mul_i32 s{S_T0}, s2, 20480
s_mul_i32 s{S_T1}, s{S_KA}, 10240
s_waitcnt lgkmcnt(0)
s_add_u32 s{SRD_K}, s{SRD_K}, s{S_T0}
s_addc_u32 s{SRD_K+1}, s{SRD_K+1}, 0
s_add_u32 s{SRD_V}, s{SRD_V}, s{S_T1}
s_addc_u32 s{SRD_V+1}, s{SRD_V+1}, 0
s_sub_u32 s{SRD_V}, s{SRD_V}, 16384
s_subb_u32 s{SRD_V+1}, s{SRD_V+1}, 0
s_load_dwordx2 s[72:73], s[0:1], 80
s_mov_b32 s74, {640*4096}
s_mov_b32 s75, 0x00020000
s_mul_i32 s{S_T0}, s2, 12288
s_mul_i32 s{S_T1}, s{S_W}, 3072
s_add_u32 s{S_T0}, s{S_T0}, s{S_T1}
s_waitcnt lgkmcnt(0)
buffer_load_dwordx4 v[32:35], v{V_D0}, s[72:75], s{S_T0} offen
buffer_load_dwordx4 v[32:35], v{V_D0}, s[72:75], s{S_T0} offen offset:1024
buffer_load_dwordx4 v[32:35], v{V_D0}, s[72:75], s{S_T0} offen offset:2048
s_branch {L('hBr')}""")
    k.label("hB2")
    e(f"""s_mul_i32 s{S_T1}, s{S_KA}, 10240
s_cmp_eq_u32 s{S_KA}, 0
s_cselect_b32 s{S_T0}, 0, 3840
s_sub_u32 s{S_T1}, s{S_T1}, s{S_T0}
s_add_u32 s{SRD_K+2}, s{S_T0}, 10240
s_add_u32 s{SRD_K}, s64, s{S_T1}
s_addc_u32 s{SRD_K+1}, s65, 0""")
    e(f"""s_sub_u32 s{S_T0}, 32, s{S_N1}
s_add_u32 s{S_T0}, s{S_T0}, s{S_WODD}
s_lshl_b32 s{S_T0}, s{S_T0}, 1
s_sub_u32 s{S_T0}, s{S_T0}, s{S_RX}""")
    mask_code(SX, "mX")
    e(f"s_branch {L('hBr')}")
    k.label("spin")
    e(f"s_mov_b32 s{S_T1}, 0x100000")
    k.label("spinl")
    e(f"""buffer_load_dword v{V_POLL}, v{V_DBG}, {G}, 0 offen sc1
s_waitcnt vmcnt(0)
v_cmp_ne_u32 vcc, 1, v{V_POLL}
s_sub_u32 s{S_T1}, s{S_T1}, 1
s_cmp_eq_u32 s{S_T1}, 0
s_cbranch_scc1 {L('spinx')}
s_cbranch_vccz {L('spinx')}
s_sleep 2
s_branch {L('spinl')}""")
    k.label("spinx")
    k2load("b")
    e(f"s_branch {L('spinr')}")
    k.label("slowpub")
    e(f"s_mov_b32 s{S_T2}, 0x100000")
    k.label("slowl")
    e(f"""global_load_dword v3, v7, s[{P_DBG}:{P_DBG+1}] sc1
s_waitcnt vmcnt(0)
v_readfirstlane_b32 s{S_T0}, v3
s_cmp_ge_u32 s{S_T0}, 8
s_cbranch_scc1 {L('slowx')}
s_sub_u32 s{S_T2}, s{S_T2}, 1
s_cmp_eq_u32 s{S_T2}, 0
s_cbranch_scc1 {L('slowx')}
s_sleep 8
s_branch {L('slowl')}""")
    k.label("slowx")
    e(f"s_branch {L('noat')}")
    for Z, lab in redo_sites:
        r = regs(Z); S, N, O, Lr = r["S"], r["N"], r["O"], r["L"]
        k.label(lab)
        flat(tile_max_items(S))
        e(f"v_max_f32 v{V_M}, 0, v{V_M}\nv_sub_f32 v{N}, v{N}, v{V_M}\nv_sub_f32 v{V_M+1}, 0, v{V_M}\nv_exp_f32 v{V_M+1}, v{V_M+1}")
        for i in range(32): e(f"v_sub_f32 v{S+i}, v{S+i}, v{V_M}")
        for i in range(1, 16): e(f"v_mov_b32 v{N+i}, v{N}")
        e(f"v_mul_f32 v{Lr}, v{Lr}, v{V_M+1}")
        for r0 in range(0, 64, 8):
            for i in range(8): e(f"v_accvgpr_read_b32 v{V_X+i}, a{O+r0+i}")
            for i in range(8): e(f"v_mul_f32 v{V_X+i}, v{V_X+i}, v{V_M+1}")
            for i in range(8): e(f"v_accvgpr_write_b32 a{O+r0+i}, v{V_X+i}")
        for w, ins in sm_core(Z):
            for x in ins: e(x)
        e(f"s_nop 1\ns_branch {L(lab + 'r')}")
```

```python
from asmlib import *
import layout as LY
import prep_streams as PS
import struct, sys, os
EXP = [a for a in sys.argv if a.startswith('x_')]
SMAP = dict(x.split("=") for x in os.environ.get("SMAP", "start=0,first=1,T16=2,attn=3,tail=4,end=5").split(","))

def f32bits(x):
    return "0x%08x" % struct.unpack("<I", struct.pack("<f", x))[0]

P_X, P_C, P_WQ, P_WK, P_WV, P_WO = 4, 6, 8, 10, 12, 14
SRD_X, SRD_C, SRD_WQ, SRD_WKV, SRD_T, SRD_G = 16, 20, 24, 28, 36, 40
S_CA, S_CB, S_XA, S_XB = 32, 33, 34, 35
S_W, S_W4K, S_H, S_P = 44, 45, 46, 47
S_WBK, S_WBQ, S_M, S_G0 = 48, 49, 50, 51
P_K, P_V, P_SH = 52, 54, 56
S_T0, S_T1, S_T2 = 58, 59, 3
S_SO = 60
S_SCALE, S_DS = 64, 65
P_GW, P_DBG, P_WS = 68, 72, 74
S_PFI, S_XSH = 76, 77
STAMPB = 78
TK, TV, TW, TS = 4, 8, 12, 20
SRD_K, SRD_V = 28, 32
S_N1, S_J, S_KA, S_KB, S_KOFF, S_VOFF, S_DB = 48, 49, 51, 52, 53, 54, 55
S_RX, S_RY, S_KX, S_WODD, S_HB = 56, 57, 66, 67, 68
S_FC, S_FB, S_N1M3, S_CTXB = 69, 70, 71, 76
S_N1M2, S_KX2 = 64, 77
MASKP = [4, 6, 8, 10, 12, 14, 16, 18, 20, 22, 24, 26, 36, 38, 60, 62]
OX, OY, QX, QY, VF = 0, 64, 128, 160, 192
KF, SX, SY, PX, PY, NX, NY = 192, 128, 160, 96, 112, 64, 80
V_D0 = 4
V_KA, V_VA, V_CTX, V_NP = 8, 9, 10, 11
V_LX, V_LY, V_LB, V_BIG = 12, 13, 14, 15
V_LT, V_M, V_T, V_X, V_E = 16, 18, 20, 24, 32
V_DBG, V_POLL = 2, 3
QL, QLB = 131072, 98304
THR = f32bits(65536.0)
WSB = 80 << 20

NTQ = " nt" if "x_ntq" in EXP else ""
NTK = " nt" if "x_ntk" in EXP else ""
NTC = " sc1"
KVS = "" if "x_nosc1" in EXP else " sc1"
KVST = "" if "x_kvplain" in EXP else " sc1"
def gen_main():
    k = Kern("main_kernel", 512, 256, 102, 256, 256, 163840)
    e = k.e; L = k.L
    k.stamp_base = STAMPB
    G = f"s[{SRD_G}:{SRD_G+3}]"
    def ST(name):
        if name in SMAP: k.stamp(int(SMAP[name]))
    e(f"s_cmp_ge_u32 s2, 256\ns_cbranch_scc1 {L('end')}")
    ST("start")
    e(f"s_getpc_b64 s[{SRD_T}:{SRD_T+1}]")
    k.label("pc")
    e(f"""s_sub_u32 s{SRD_T}, s{SRD_T}, {L('pc')}-main_kernel
s_subb_u32 s{SRD_T+1}, s{SRD_T+1}, 0
s_mov_b32 s{SRD_T+2}, all_code_end-main_kernel
s_mov_b32 s{SRD_T+3}, 0x00020000
s_lshr_b32 s{S_T0}, s2, 3
s_lshl_b32 s{S_T0}, s{S_T0}, 12
v_lshlrev_b32 v16, 4, v0""")
    k.vmem(f"buffer_load_dwordx4 v[20:23], v16, s[{SRD_T}:{SRD_T+3}], s{S_T0} offen", "t")
    e(f"""s_load_dwordx8 s[4:11], s[0:1], 0
s_load_dwordx4 s[12:15], s[0:1], 32
s_load_dwordx4 s[52:55], s[0:1], 56
s_load_dwordx2 s[56:57], s[0:1], 72
s_load_dwordx8 s[68:75], s[0:1], 96
v_lshrrev_b32 v2, 6, v0
v_and_b32 v1, 63, v0
s_and_b32 s{S_H}, s2, 7
v_readfirstlane_b32 s{S_W}, v2
s_lshr_b32 s{S_T0}, s2, 6
s_lshl_b32 s{S_T0}, s{S_T0}, 3
s_add_u32 s{S_H}, s{S_H}, s{S_T0}
s_lshr_b32 s{S_P}, s2, 3
s_and_b32 s{S_P}, s{S_P}, 7
s_lshl_b32 s{S_W4K}, s{S_W}, 12
s_sub_u32 s{S_T0}, 15, s{S_P}
s_lshl_b32 s{S_CA}, s{S_T0}, 17
s_lshl_b32 s{S_CB}, s{S_P}, 17
s_mul_i32 s{S_XA}, s{S_T0}, {128*1280}
s_mul_i32 s{S_XB}, s{S_P}, {128*1280}
s_and_b32 s{S_WBK}, s{S_W}, 1
s_lshl_b32 s{S_WBK}, s{S_WBK}, 17
s_lshl_b32 s{S_WBQ}, s{S_W}, 17""")
    VC = [80, 81, 82, 83] if "k" in os.environ.get("SEQ", "") else [24, 25, 30, 31]; VX = [4, 5, 19, 26]; VW = [6, 27, 28, 29]
    e(f"""s_lshl_b32 s{S_T1}, s{S_W}, 5
v_lshrrev_b32 v2, 3, v1
v_and_b32 v3, 7, v1
v_xor_b32 v3, v3, v2
v_lshlrev_b32 v11, 4, v3
v_add_u32 v7, s{S_T1}, v2
v_lshl_add_u32 v{VC[0]}, v7, 10, v11
v_mul_u32_u24 v{VX[0]}, 0x500, v7
v_add_u32 v{VX[0]}, v{VX[0]}, v11""")
    for i in range(1, 4):
        e(f"v_add_u32 v{VC[i]}, {i*(8192-1024)}, v{VC[0]}")
    e(f"""v_and_b32 v2, 15, v1
v_lshrrev_b32 v3, 4, v1
v_lshrrev_b32 v7, 1, v2
v_xor_b32 v7, v7, v3
v_lshlrev_b32 v7, 1, v7
v_and_b32 v8, 1, v2
v_or_b32 v7, v7, v8
v_lshlrev_b32 v7, 4, v7
v_lshl_add_u32 v7, v3, 13, v7
s_lshl_b32 s{S_T1}, s{S_H}, 8
v_add_u32 v{VW[0]}, s{S_T1}, v7
v_add_u32 v{VW[1]}, {32768-1024}, v{VW[0]}
v_xor_b32 v{VW[2]}, 0x80, v{VW[0]}
v_add_u32 v{VW[2]}, {2*(32768-1024)}, v{VW[2]}
v_add_u32 v{VW[3]}, {32768-1024}, v{VW[2]}
s_cmp_lt_u32 s{S_W}, 2
s_waitcnt lgkmcnt(0)
s_cselect_b32 s{SRD_WKV}, s{P_WK}, s{P_WV}
s_cselect_b32 s{SRD_WKV+1}, s{P_WK+1}, s{P_WV+1}
s_mov_b32 s{SRD_WKV+2}, {hex(512*8192)}
s_mov_b32 s{SRD_WKV+3}, 0x00020000""")
    k.srd(SRD_C, P_C, 2048*1024)
    SRD_WV2 = 52
    if "k" in os.environ.get("SEQ", ""):
        k.srd(SRD_WKV, P_WK, 512*8192); k.srd(SRD_WV2, P_WV, 512*8192)

    SEQ = os.environ.get("SEQ", "KKKKKKKKQQQQQQQQQQ")
    NT = 2 * len(SEQ)
    SPLIT = "k" in SEQ
    xb, wb = [], []
    kind = []; cnt = {}
    for i, ch in enumerate(SEQ):
        n = cnt.get(ch, 0); cnt[ch] = n + 1
        if ch == "K":
            xb.append(dict(kind="xc", k0=64*n, first=2*i, last=2*i+1))
            wb.append(dict(kind="wkv", k0=64*n, first=2*i, last=2*i))
            wb.append(dict(kind="wkv", k0=64*n+32, first=2*i+1, last=2*i+1))
        elif ch == "Q":
            xb.append(dict(kind="xx", k0=64*n, first=2*i, last=2*i+1))
            wb.append(dict(kind="wq", k0=64*n, first=2*i, last=2*i+1))
        else:
            xb.append(dict(kind="xc", k0=64*n, first=2*i, last=2*i+1))
            wb.append(dict(kind="w" + ch, k0=64*n, first=2*i, last=2*i+1))
        kind += [ch, ch]
    TQ0 = kind.index("Q")
    after = lambda ch: NT - kind[::-1].index(ch)
    TE0 = after("k") if SPLIT else after("K")
    TP = NT - 3
    xs_ = [131072, 98304, 65536]; ws_ = [16384, 49152, 0, 32768]
    for i, b in enumerate(xb):
        b["R"] = xs_[(len(xb) - 1 - i) % 3]; b["prev"] = xb[i-3] if i >= 3 else None; b["id"] = ("x", i)
    for i, b in enumerate(wb):
        b["R"] = ws_[(len(wb) - 1 - i) % 4]; b["prev"] = wb[i-4] if i >= 4 else None; b["id"] = ("w", i)
    order = sorted(xb + wb, key=lambda b: (b["first"], b["kind"][0] != "x"))
    def find(T, lst):
        for b in lst:
            if b["first"] <= T <= b["last"]: return b
    def dma_list(b):
        R = b["R"]; out = []
        def grp(ldsoff, sbase, sadd, vos, srd):
            for i in range(4):
                ld = ("vm", f"buffer_load_dwordx4 v{vos[i]}, s[{srd}:{srd+3}], s{S_DS} offen offset:{i*1024}{NTQ if srd in (SRD_X, SRD_WQ) else NTK} lds", b["id"])
                if i == 0: out.append([f"s_add_u32 m0, s{S_W4K}, {ldsoff}", f"s_add_u32 s{S_DS}, s{sbase}, {sadd}", ld])
                else: out.append([ld])
        kd = b["kind"]
        if kd == "xc":
            grp(R, S_CA, b["k0"]*2, VC, SRD_C); grp(R + 16384, S_CB, b["k0"]*2, VC, SRD_C)
        elif kd == "xx":
            grp(R, S_XA, b["k0"]*2, VX, SRD_X); grp(R + 16384, S_XB, b["k0"]*2, VX, SRD_X)
        elif kd == "wkv":
            grp(R, S_WBK, b["k0"]*8192, VW, SRD_WKV)
        elif kd == "wk":
            grp(R, S_WBQ, b["k0"]*8192, VW, SRD_WKV)
        elif kd == "wv":
            grp(R, S_WBQ, b["k0"]*8192, VW, SRD_WV2)
        else:
            grp(R, S_WBQ, b["k0"]*8192, VW, SRD_WQ)
        return out
    def emit_item(it):
        for x in it:
            if isinstance(x, tuple):
                if x[0] == "vm": k.vmem(x[1], x[2])
                elif x[0] == "lg": k.lds_op(x[1], x[2])
                elif x[0] == "wait": k.wait(vmtags=(x[1],))
                elif x[0] == "label": k.label(x[1])
            else:
                e(x)
    pend = list(order)
    def issue_ready(T):
        out = []
        for b in list(pend):
            if b["prev"] is None or b["prev"]["last"] <= T:
                out += dma_list(b); pend.remove(b)
        return out
    pro = issue_ready(-1)
    N0, N1 = 16, 32
    for it in pro[:N0]: emit_item(it)
    pro_b = pro[N0:N1]; pro_c = pro[N1:]
    k.srd(SRD_X, P_X, 2048*1280)
    k.srd(SRD_WQ, P_WQ, 640*8192)
    k.srd(SRD_T, P_GW, 1280)
    k.srd(SRD_G, P_WS, WSB)
    for i in range(1, 4):
        e(f"v_add_u32 v{VX[i]}, {i*(10240-1024)}, v{VX[0]}")
    e(f"""s_lshl_b32 s{S_PFI}, s2, 2
s_add_u32 s{S_PFI}, s{S_PFI}, s{S_W}
s_mov_b32 s{S_M}, 0xffff0000""")
    S_PF = S_XSH
    def pf(srd, pre, offs):
        out = [[x.replace(f"s{S_G0},", f"s{S_PF},") for x in pre]]
        for o in offs:
            it = [f"s_add_u32 s{S_PF}, s{S_PF}, 4096"] if o == 4096 else []
            out.append(it + [("vm", f"buffer_load_dwordx4 v[20:23], v2, s[{srd}:{srd+3}], s{S_PF} offen offset:{o & 4095}", "t")])
        return out
    pf1 = pf(SRD_C, [f"s_mul_i32 s{S_G0}, s{S_PFI}, 2048"], [0, 1024])
    pf1 += pf(SRD_WKV, [f"s_lshl_b32 s{S_G0}, s2, 14", f"s_lshr_b32 s{S_T0}, s{S_WBK}, 4", f"s_add_u32 s{S_G0}, s{S_G0}, s{S_T0}"], [i*1024 for i in range(8)])
    pf2 = pf(SRD_X, [f"s_mul_i32 s{S_G0}, s{S_PFI}, 2560"], [0, 1024, 1536]) + pf(SRD_WQ, [f"s_mul_i32 s{S_G0}, s{S_PFI}, 5120"], [0, 1024, 2048, 3072, 4096])
    zeroflag = [[f"""s_lshl_b32 s{S_T0}, s{S_H}, 7
s_lshl_b32 s{S_T1}, s{S_P}, 2
s_add_u32 s{S_T0}, s{S_T0}, s{S_T1}
s_add_u32 s{S_T0}, s{S_T0}, {hex(LY.FL2_OFF)}
v_mov_b32 v239, s{S_T0}
v_mov_b32 v238, 0
s_cmp_lg_u32 s{S_W}, 0
s_cbranch_scc1 {L('nozf')}
s_mov_b64 exec, 1
buffer_store_dword v238, v239, {G}, 0 offen sc1
s_lshl_b32 s{S_T0}, s{S_P}, 2
s_bfe_u32 s{S_T1}, s{S_H}, 0x20001
s_add_u32 s{S_T0}, s{S_T0}, s{S_T1}
s_lshl_b32 s{S_T0}, s{S_T0}, 5
s_lshr_b32 s{S_T1}, s{S_H}, 3
s_lshl_b32 s{S_T1}, s{S_T1}, 1
s_add_u32 s{S_T0}, s{S_T0}, s{S_T1}
s_and_b32 s{S_T1}, s{S_H}, 1
s_add_u32 s{S_T0}, s{S_T0}, s{S_T1}
s_lshl_b32 s{S_T0}, s{S_T0}, 2
s_add_u32 s{S_T0}, s{S_T0}, {hex(LY.CF_OFF)}
buffer_store_dword v238, v238, {G}, s{S_T0} offen sc1
s_and_b32 s{S_T0}, s2, 1
s_lshl_b32 s{S_T0}, s{S_T0}, 3
s_add_u32 s{S_T0}, s{S_T0}, s{S_P}
s_lshl_b32 s{S_T0}, s{S_T0}, 2
s_lshr_b32 s{S_T1}, s2, 6
s_add_u32 s{S_T0}, s{S_T0}, s{S_T1}
s_lshl_b32 s{S_T0}, s{S_T0}, 5
s_bfe_u32 s{S_T1}, s2, 0x20001
s_add_u32 s{S_T0}, s{S_T0}, s{S_T1}
s_lshl_b32 s{S_T0}, s{S_T0}, 2
s_add_u32 s{S_T0}, s{S_T0}, {hex(LY.FL_OFF + 4096)}
buffer_store_dword v238, v238, {G}, s{S_T0} offen sc1
s_mov_b64 exec, 15
v_lshlrev_b32 v239, 2, v1
s_lshl_b32 s{S_T0}, s2, 4
s_add_u32 s{S_T0}, s{S_T0}, {hex(LY.FL_OFF)}
buffer_store_dword v238, v239, {G}, s{S_T0} offen sc1
s_mov_b64 exec, -1""", ("label", "nozf")]]
    announce = [[f"""v_mov_b32 v238, 1
s_cmp_lg_u32 s{S_W}, 0
s_cbranch_scc1 {L('noan')}
s_mov_b64 exec, 1
global_atomic_add v7, v238, s[{P_DBG}:{P_DBG+1}] sc1
s_mov_b64 exec, -1""", ("label", "noan")]]
    coload = [[f"""s_cmp_lg_u32 s{S_W}, 0
s_cbranch_scc1 {L('noco')}
global_load_dword v3, v7, s[{P_DBG}:{P_DBG+1}] sc1""", ("label", "noco")]]

    e(f"""s_lshr_b32 s{S_T0}, s{S_W}, 1
s_lshl_b32 s{S_T0}, s{S_T0}, 14
s_add_u32 s{S_T0}, s{S_T0}, 0x10000
v_and_b32 v7, 7, v2
v_xor_b32 v7, v7, v3
v_lshlrev_b32 v7, 4, v7
v_lshlrev_b32 v8, 7, v2
v_add_u32 v8, v8, v7
v_add_u32 v8, s{S_T0}, v8
v_xor_b32 v9, 64, v8
v_add_u32 v10, 0x10000, v8
v_add_u32 v11, 0x10000, v9
v_lshrrev_b32 v7, 2, v2
v_and_b32 v16, 1, v3
v_lshlrev_b32 v16, 2, v16
v_or_b32 v16, v16, v7
v_lshlrev_b32 v240, 3, v3
v_add_u32 v240, v240, v7
v_lshlrev_b32 v240, 8, v240
v_and_b32 v241, 3, v1
v_lshlrev_b32 v241, 3, v241
v_add_u32 v240, v240, v241
s_and_b32 s{S_T1}, s{S_W}, 1
s_lshl_b32 s{S_T1}, s{S_T1}, 2""")
    for i in range(4):
        e(f"s_add_u32 s{S_T0}, s{S_T1}, {i}\nv_xor_b32 v242, s{S_T0}, v16\nv_lshlrev_b32 v242, 5, v242\nv_add_u32 v{12+i}, v240, v242")
    e(f"s_lshl_b32 s{S_T0}, s{S_H}, 2\nv_mov_b32 v7, s{S_T0}")
    setup2 = [[x] for x in f"""v_and_b32 v240, 7, v1
v_and_b32 v241, 8, v1
v_lshlrev_b32 v241, 1, v241
v_or_b32 v240, v240, v241
v_and_b32 v241, 1, v3
v_lshlrev_b32 v242, 5, v241
v_add_u32 v240, v240, v242
v_lshlrev_b32 v240, 4, v240
v_lshrrev_b32 v243, 1, v3
v_lshlrev_b32 v244, 10, v243
v_add_u32 v16, v240, v244
s_lshl_b32 s{S_T0}, s{S_H}, 5
s_sub_u32 s{S_T1}, 15, s{S_P}
s_cmp_lt_u32 s{S_W}, 2|s_cselect_b32 s{S_T1}, s{S_T1}, s{S_P}
s_lshl_b32 s{S_T1}, s{S_T1}, 1
s_add_u32 s{S_T0}, s{S_T0}, s{S_T1}
s_lshl_b32 s{S_T0}, s{S_T0}, 15
s_add_u32 s{S_T0}, s{S_T0}, {hex(LY.KVF_OFF)}
s_and_b32 s{S_T2}, s{S_W}, 1
s_lshl_b32 s{S_T1}, s{S_T2}, 12
s_add_u32 s{S_T1}, s{S_T1}, s{S_T0}
v_add_u32 v16, s{S_T1}, v16
v_add_u32 v240, v2, v242
v_lshlrev_b32 v240, 4, v240
v_lshlrev_b32 v245, 12, v243
v_add_u32 v17, v240, v245
s_lshl_b32 s{S_T1}, s{S_T2}, 11
s_add_u32 s{S_T1}, s{S_T1}, s{S_T0}
s_add_u32 s{S_T1}, s{S_T1}, 16384
v_add_u32 v17, s{S_T1}, v17
v_add_u32 v18, v240, v244
s_lshr_b32 s{S_T0}, s{S_W}, 1
s_mul_i32 s{S_T0}, s{S_T0}, {QL - 16384}
s_sub_u32 s{S_T0}, {QL}, s{S_T0}
s_lshl_b32 s{S_T1}, s{S_T2}, 12
s_add_u32 s{S_T0}, s{S_T0}, s{S_T1}
v_add_u32 v18, s{S_T0}, v18
s_mov_b32 s{S_SO}, 0
s_mov_b32 s{S_SO+1}, 8192
s_mov_b32 s{S_SO+2}, 32768
s_mov_b32 s{S_SO+3}, 40960""".split("\n")]
    setup2 = [it[0].split("|") for it in setup2]

    def XF(T, j): return 32 + 4 * j
    def WF(T, j): return 64 + 32 * (T & 1) + 4 * j
    def read_lists(T):
        xbuf = find(T, xb); wbuf = find(T, wb)
        ks = T - xbuf["first"]
        xs = []; wl = []
        for j in range(8):
            addr = xbuf["R"] - 65536 + j * 2048
            xs.append([("lg", f"ds_read_b128 {vr(XF(T,j),4)}, v{8 + ks + 2*(addr >> 16)} offset:{addr & 0xffff}", ("x", T, j))])
        wbs = [wbuf["R"], wbuf["R"] + 8192] if wbuf["kind"] == "wkv" else [wbuf["R"] + (T - wbuf["first"]) * 8192]
        for mt, b in enumerate(wbs):
            for i in range(4):
                for half in range(2):
                    wl.append([("lg", f"ds_read_b64_tr_b16 {vr(WF(T, mt*4+i) + 2*half, 2)}, v{12+i} offset:{b + half*1024}", ("w", T))])
        return xs, wl
    def mfma_list(T):
        out = []
        for rb in range(8):
            for db in range(4):
                a = (rb * 4 + db) * 4
                if kind[T] == "K":
                    out.append(f"v_mfma_f32_16x16x32_bf16 {ar(a,4)}, {vr(WF(T,db),4)}, {vr(XF(T,rb),4)}, {'0' if T == 0 else ar(a,4)}")
                    out.append(f"v_mfma_f32_16x16x32_bf16 {ar(a+128,4)}, {vr(XF(T,rb),4)}, {vr(WF(T,4+db),4)}, {'0' if T == 0 else ar(a+128,4)}")
                elif kind[T] == "k":
                    out.append(f"v_mfma_f32_16x16x32_bf16 {ar(a,4)}, {vr(WF(T,db),4)}, {vr(XF(T,rb),4)}, {'0' if T == kind.index('k') else ar(a,4)}")
                elif kind[T] == "v":
                    out.append(f"v_mfma_f32_16x16x32_bf16 {ar(a+128,4)}, {vr(XF(T,rb),4)}, {vr(WF(T,db),4)}, {'0' if T == kind.index('v') else ar(a+128,4)}")
                else:
                    out.append(f"v_mfma_f32_16x16x32_bf16 {vr(128+a,4)}, {vr(WF(T,db),4)}, {vr(XF(T,rb),4)}, {'0' if T == TQ0 else vr(128+a,4)}")
        return out
    ET = [20, 21, 22, 23, 24, 25, 30, 31]
    def kv_epi_items():
        items = []
        def ps(blkA, blkB, voff, soff, imm):
            for i in range(4): items.append([f"v_accvgpr_read_b32 v{ET[4+i]}, a{blkB+i}"])
            for i in range(4): items.append([f"v_accvgpr_read_b32 v{ET[i]}, a{blkA+i}"])
            for i in range(4): items.append([f"v_cvt_pk_bf16_f32 v{ET[i]}, v{ET[2*i]}, v{ET[2*i+1]}"])
            items.append([("vm", f"buffer_store_dwordx4 v[20:23], v{voff}, {G}, s{soff} offen offset:{imm}{KVST}", "kv")])
        for rb in range(8):
            for ee in range(2):
                ps((rb*4 + 2*ee)*4, (rb*4 + 2*ee + 1)*4, 16, S_SO + (rb >> 1), ee*2048 + (rb & 1)*128)
        for f in range(4):
            for db in range(4):
                ps(128 + ((2*f)*4 + db)*4, 128 + ((2*f+1)*4 + db)*4, 17, S_SO + f, (db >> 1)*1024 + (db & 1)*256)
        return items

    fill = {T: [] for T in range(NT)}
    def plan(items, Ts):
        if not items: return
        per = -(-len(items) // len(Ts))
        for T in Ts:
            fill[T] += items[:per]; items = items[per:]
        assert not items
    def srd_items(d, p, n):
        return [[f"s_mov_b32 s{d}, s{p}", f"s_mov_b32 s{d+1}, s{p+1}"], [f"s_mov_b32 s{d+2}, {hex(n)}", f"s_mov_b32 s{d+3}, 0x00020000"]]
    fill[0] += zeroflag
    fill[5] += announce
    fill[13] += coload
    assert TQ0 >= 8
    plan(setup2 + [["v_lshlrev_b32 v2, 4, v1"]], [0])
    PFP = os.environ.get("PFP", "c")
    if PFP == "a": plan(pf2, [1, 2, 3, 4]); plan(pf1, [5, 6, 7, 10])
    if PFP == "b": plan(pf1, [1, 2, 3]); plan(pf2, [4, 5, 6, 7])
    if PFP == "c": plan(pf2, [2, 3, 4, 5, 6, 7])
    if PFP == "s":
        pfv = pf(SRD_WV2, [f"s_mul_i32 s{S_G0}, s{S_PFI}, 4096"], [0, 1024, 2048, 3072])
        plan(pfv, [2, 3, 4, 5]); plan(pf2, [6, 7, 8, 9, 10])
    GR_BASE = 128
    g_ld, g_cp = PS.gate_stream(GR_BASE, 2, S_W, 1, SRD_X, SRD_T, SRD_G, S_M, S_G0)
    g_ld.append([f"v_add_u32 v{GR_BASE+1}, {hex(LY.G_OFF)}, v{GR_BASE+1}"])
    plan(g_ld, [1])
    plan(g_cp, [6, 7] if not SPLIT else [8, 9, 10, 12, 13, 14])
    def code_pf(srd, vtmp, dst, tracked=True):
        lab = k.newlabel("pc")
        ld = f"buffer_load_dwordx4 {dst}, v{vtmp}, s[{srd}:{srd+3}], s{S_T0} offen"
        return [[f"s_getpc_b64 s[{srd}:{srd+1}]", ("label", lab), f"s_sub_u32 s{srd}, s{srd}, {L(lab)}-main_kernel", f"s_subb_u32 s{srd+1}, s{srd+1}, 0"],
                [f"s_mov_b32 s{srd+2}, all_code_end-main_kernel", f"s_mov_b32 s{srd+3}, 0x00020000"],
                [f"s_lshr_b32 s{S_T0}, s2, 3", f"s_lshl_b32 s{S_T0}, s{S_T0}, 12"],
                [f"v_lshlrev_b32 v{vtmp}, 4, v0"],
                [("vm", ld, "t") if tracked else ld]]
    if "x_nocpf" not in EXP:
        fill[11] += code_pf(SRD_T, 2, "v[20:23]")
        fill[TP - 4] += code_pf(SRD_T, 2, "a[0:3]")
    if SPLIT:
        it_ = kv_epi_items()
        plan(it_[:208], list(range(TE0, after("v")))); plan(it_[208:], list(range(after("v"), TP - 1)))
    else:
        plan(kv_epi_items(), list(range(TE0, TP - 1)))
    ai = [x.split("|") for x in f"""s_lshl_b32 s{S_N1}, s{S_P}, 1
s_add_u32 s{S_N1}, s{S_N1}, 2
s_and_b32 s{S_WODD}, s{S_W}, 1
s_lshl_b32 s{S_HB}, s{S_H}, 20
s_add_u32 s{S_HB}, s{S_HB}, {hex(LY.KVF_OFF)}
s_add_u32 s{S_HB}, s{S_HB}, s{S_W4K}
s_sub_u32 s{S_RX}, 15, s{S_P}
s_lshl_b32 s{S_RX}, s{S_RX}, 2
s_add_u32 s{S_RX}, s{S_RX}, s{S_W}
s_lshl_b32 s{S_RY}, s{S_P}, 2
s_add_u32 s{S_RY}, s{S_RY}, s{S_W}
s_mov_b32 s{SRD_K}, s{SRD_G}
s_mov_b32 s{SRD_K+1}, s{SRD_G+1}
s_mov_b32 s{SRD_K+2}, {hex(WSB)}
s_mov_b32 s{SRD_K+3}, 0x00020000
s_mov_b32 s{SRD_V}, s{SRD_G}
s_mov_b32 s{SRD_V+1}, s{SRD_G+1}
s_mov_b32 s{SRD_V+2}, {hex(WSB)}
s_mov_b32 s{SRD_V+3}, 0x00020000
s_sub_u32 s{S_N1M2}, s{S_N1}, 2
s_lshl_b32 s{S_T0}, s{S_N1M2}, 15
s_add_u32 s{S_KA}, s{S_HB}, s{S_T0}
s_add_u32 s{S_KOFF}, s{S_KA}, 0x8000
s_add_u32 s{S_KB}, s{S_KA}, 0x10000
s_cmp_eq_u32 s{S_N1}, 2|s_cselect_b32 s{S_KB}, s{S_KB}, s{S_HB}
s_add_u32 s{S_DB}, s{S_W4K}, 0x10000
s_sub_i32 s{S_N1M3}, s{S_N1}, 3
s_lshl_b32 s{S_FC}, 9, s{S_N1}
s_lshr_b32 s{S_FC}, s{S_FC}, 3
s_or_b32 s{S_FC}, s{S_FC}, 0x10002
s_sub_u32 s{S_T0}, s{S_N1}, 1
s_lshl_b32 s{S_FB}, 1, s{S_T0}
s_or_b32 s{S_FB}, s{S_FB}, 0xc144
s_lshl_b32 s{S_KX2}, s{S_WODD}, 14
s_or_b32 s{S_KX2}, s{S_KX2}, 0x10000
s_lshl_b32 s{S_T0}, s{S_H}, 7
s_lshl_b32 s{S_T1}, s{S_P}, 2
s_add_u32 s{S_T0}, s{S_T0}, s{S_T1}
s_add_u32 s{S_T0}, s{S_T0}, {hex(LY.FL2_OFF)}
v_mov_b32 v31, s{S_T0}
v_mov_b32 v23, 1
v_lshlrev_b32 v24, 4, v1
v_add_u32 v25, 0x8000, v24
v_add_u32 v30, 0x4000, v24""".split("\n")]
    plan(ai, [TP - 1])
    plan([[f"v_accvgpr_write_b32 a{r}, 0"] for r in range(128)], [TP, TP + 1, TP + 2])

    for it in pro_b: emit_item(it)
    k.wait(vmtags=(find(0, xb)["id"], find(0, wb)["id"]))
    e("s_barrier")
    ST("first")
    xs0, wl0 = read_lists(0)
    for it in wl0 + xs0: emit_item(it)
    dm_carry = pro_c
    def dma4(m0expr, voff, srd, soff, tag=None):
        mk = (lambda s: ("vm", s, tag)) if tag else (lambda s: s)
        out = [[m0expr, "s_nop 0", mk(f"buffer_load_dwordx4 v{voff}, s[{srd}:{srd+3}], s{soff} offen{KVS} lds")]]
        for i in range(1, 4):
            out.append([mk(f"buffer_load_dwordx4 v{voff}, s[{srd}:{srd+3}], s{soff} offen offset:{i*1024}{KVS} lds")])
        return out
    BG = 3
    for T in range(NT):
        need = [b["id"] for b in xb + wb if b["first"] == T + 1]
        dm = dm_carry; dm_carry = []
        ST(f"T{T}")
        ms = mfma_list(T); nm = len(ms); per = nm // 8
        bar = bool(need) or T == NT - 1
        if bar:
            dm = dm + issue_ready(T)
            if kind[T] != "K" and len(dm) > 8 and T + 1 < NT and not [b for b in xb + wb if b["first"] == T + 2]:
                dm_carry = dm[8:]; dm = dm[:8]
        if T == TP:
            dm = dm + dma4(f"s_add_u32 m0, s{S_W4K}, 0x10000", 24, SRD_G, S_KA, "k0")
            dm = dm + dma4(f"s_mov_b32 m0, s{S_W4K}", 25, SRD_G, S_KA, "k1")
            dm_carry = dma4(f"s_add_u32 m0, s{S_W4K}, 0x8000", 30, SRD_G, S_KA, "v0") + dma4(f"s_add_u32 m0, s{S_W4K}, 0x18000", 30, SRD_G, S_KOFF, "v1")
        xs, wl = read_lists(T + 1) if T + 1 < NT else ([], [])
        lo_r = BG + 1 if bar else 0
        pre = [[] for _ in range(nm)]
        for j, it in enumerate(xs):
            pre[max(lo_r, per * (j + 1) - 1)].append(it)
        cand = [g for g in range(lo_r, (nm * 13) // 16) if not pre[g]]
        for j, it in enumerate(wl):
            pre[cand[(j * len(cand)) // len(wl)]].append(it)
        g2 = spread(nm, dm, lo_r + 1, nm) if dm else {}
        for g, its in g2.items(): pre[g] += its
        load = [sum(len(it) for it in pre[i]) for i in range(nm)]
        if bar: load[BG] += 2
        fl = fill[T]; lo = 4 if T == TE0 or (SPLIT and T == after("v")) else 0
        tot = sum(load[lo:]) + sum(min(len(it), 4) for it in fl)
        fi = 0; acc = 0.0
        for i in range(nm):
            if i % per == 0:
                k.wait(lgtags=[("x", T, i // per)] + ([("w", T)] if i == 0 else []))
            e(ms[i])
            if bar and i == BG:
                if T == TP:
                    e("s_waitcnt vmcnt(0)"); k.vm = []
                k.wait(vmtags=tuple(need), lgtags=[("x", T, 7)])
                e("s_barrier")
                if T == TP:
                    e(f"s_cmp_lg_u32 s{S_W}, 0\ns_cbranch_scc1 {L('noat')}")
                    e(f"""v_readfirstlane_b32 s{S_T0}, v3
s_mov_b64 exec, 1
buffer_store_dword v23, v31, {G}, 0 offen sc1
s_mov_b64 exec, -1
s_cmp_lt_u32 s{S_T0}, {99 if "x_slow" in EXP else 8}
s_cbranch_scc1 {L('slowpub')}""")
                    k.label("noat")
            for it in pre[i]: emit_item(it)
            if i < lo: continue
            acc += load[i]
            tgt = tot * (i - lo + 1) / (nm - lo)
            while fi < len(fl) and (i == nm - 1 or acc + 0.5 * min(len(fl[fi]), 4) <= tgt + 0.01):
                emit_item(fl[fi]); acc += min(len(fl[fi]), 4); fi += 1
    assert not pend and not dm_carry
    import k_main_attn
    k_main_attn.gen(k, globals(), locals())
    return k
```

```python
from asmlib import *
import layout as LY
import prep_streams as PS
import k_main_out

def gen(k, GL, LC):
    globals().update({n: v for n, v in GL.items() if n.isupper() or n[0] in "SVP" or n in ("f32bits", "gen_main", "EXP")})
    e = k.e; L = k.L
    UST = " sc1"
    SCR = 159 * 1024
    CS = 4160; UB = 4 * CS; CH = 21504
    G, ST, dma4, emit_item = LC["G"], LC["ST"], LC["dma4"], LC["emit_item"]
    pk = lambda r: vr(r, 2)
    ST("q0")
    e(f"""s_lshl_b32 s{S_T0}, s{S_H}, 7
s_add_u32 s{S_T0}, s{S_T0}, {hex(LY.FL2_OFF)}
v_min_u32 v{V_DBG}, 7, v1
v_lshlrev_b32 v{V_DBG}, 2, v{V_DBG}
v_add_u32 v{V_DBG}, s{S_T0}, v{V_DBG}
v_mov_b32 v{V_D0}, v24
v_mov_b32 v{V_D0+1}, v25
v_mov_b32 v{V_D0+2}, v30
v_add_u32 v{V_D0+3}, 0xc000, v24""")
    k.vmem(f"buffer_load_dword v{V_POLL}, v{V_DBG}, {G}, 0 offen sc1", "poll")
    e(f"s_lshr_b32 s{S_T0}, s{S_W}, 1\ns_lshl_b32 s{S_T0}, s{S_T0}, 14\nv_add_u32 v103, s{S_T0}, v18")
    e(f"v_mov_b32 v104, v18\nv_mov_b32 v{V_M}, {f32bits(LY.QSCALE)}\nv_mov_b32 v{V_M+1}, v{V_M}")
    n = 0
    for rb in range(8):
        for ee in range(2):
            a = 128 + (rb*4 + 2*ee)*4
            t = 64 + 4 * (n % 4); n += 1
            for i in range(4): e(f"v_pk_mul_f32 {pk(a+2*i)}, {pk(a+2*i)}, {pk(V_M)}")
            for i in range(4): e(f"v_cvt_pk_bf16_f32 v{t+i}, v{a+2*i}, v{a+2*i+1}")
            e(f"ds_write_b128 v{104 if rb < 4 else 103}, {vr(t,4)} offset:{(rb >> 1)*8192 + ee*2048 + (rb & 1)*256}")
    e(f"""v_and_b32 v105, 31, v1
v_lshrrev_b32 v106, 5, v1
v_lshlrev_b32 v{V_LB}, 2, v106
v_sub_u32 v{V_LB}, v105, v{V_LB}
v_lshrrev_b32 v{V_T}, 4, v105
v_lshlrev_b32 v{V_T}, 17, v{V_T}
v_lshlrev_b32 v{V_T+1}, 8, v106
v_add_u32 v{V_T}, v{V_T}, v{V_T+1}
v_and_b32 v{V_T+1}, 15, v105
v_lshlrev_b32 v{V_T+1}, 4, v{V_T+1}
v_add_u32 v{V_T}, v{V_T}, v{V_T+1}
s_lshl_b32 s{S_T0}, s{S_H}, 12
s_add_u32 s{S_T0}, s{S_T0}, {hex(LY.CTX_OFF)}
v_add_u32 v{V_CTX}, s{S_T0}, v{V_T}
v_mov_b32 v{V_BIG}, {f32bits(-1e30)}
v_mov_b32 v{V_LX}, 0
v_mov_b32 v{V_LY}, 0
v_add_u32 v{V_KA}, 0x10000, v{V_D0}
v_add_u32 v{V_VA}, 0x10000, v{V_D0}
s_lshl_b32 s{S_T0}, s{S_W}, 13
s_add_u32 s{S_T1}, s{S_T0}, {QL}
v_add_u32 v{V_T}, s{S_T1}, v{V_D0}
s_lshr_b32 s{S_T1}, s{S_W}, 1
s_lshl_b32 s{S_T1}, s{S_T1}, 14
s_add_u32 s{S_T0}, s{S_T0}, s{S_T1}
v_add_u32 v{V_T+1}, s{S_T0}, v{V_D0}""")
    ST("qe")
    k.wait(vmtags=("k0",))
    e("s_waitcnt lgkmcnt(0)\ns_barrier")
    ST("attn")
    for i in range(8):
        e(f"ds_read_b128 {ar(QX+4*i,4)}, v{V_T} offset:{i*1024}")
        e(f"ds_read_b128 {vr(KF+4*i,4)}, v{V_KA} offset:{i*1024}")
    for i in range(8, 16):
        e(f"ds_read_b128 {vr(KF+4*i,4)}, v{V_KA} offset:{i*1024}")
    for i in range(8):
        e(f"ds_read_b128 {ar(QY+4*i,4)}, v{V_T+1} offset:{16384 + i*1024}")
    e(f"v_xor_b32 v{V_T}, 0x2000, v{V_T}")

    def regs(Z):
        return dict(S=SX, Q=QX, N=NX, O=OX, P=PX, L=V_LX) if Z == "X" else dict(S=SY, Q=QY, N=NY, O=OY, P=PY, L=V_LY)
    def qk(Z, zero=False):
        r = regs(Z); out = []
        for kb in range(2):
            for ks in range(8):
                c = ("0" if zero else vr(r["N"], 16)) if ks == 0 else vr(r["S"] + 16*kb, 16)
                out.append(f"v_mfma_f32_32x32x16_bf16 {vr(r['S']+16*kb,16)}, {vr(KF+4*(8*kb+ks),4)}, {ar(r['Q']+4*ks,4)}, {c}")
        return out
    def pv(Z):
        r = regs(Z); out = []
        for db in range(4):
            for s in range(4):
                out.append(f"v_mfma_f32_32x32x16_bf16 {ar(r['O']+16*db,16)}, {ar(VF+4*(4*db+s),4)}, {vr(r['P']+4*s,4)}, {ar(r['O']+16*db,16)}")
        return out
    def sm_core(Z):
        r = regs(Z); S, P = r["S"], r["P"]
        t = lambda i: V_X + (i % 8)
        it = []
        for pi in range(17):
            post = []
            if pi >= 1:
                q = pi - 1
                post.append((1, [f"v_cvt_pk_bf16_f32 v{P+q}, v{t(2*q)}, v{t(2*q+1)}"]))
                if q == 1:
                    post.append((1, [f"v_add_f32 v{V_LT}, v{t(0)}, v{t(2)}"]))
                    post.append((1, [f"v_add_f32 v{V_LT+1}, v{t(1)}, v{t(3)}"]))
                elif q >= 2:
                    post.append((1, [f"v_add_f32 v{V_LT}, v{V_LT}, v{t(2*q)}"]))
                    post.append((1, [f"v_add_f32 v{V_LT+1}, v{V_LT+1}, v{t(2*q+1)}"]))
            if pi < 16:
                it.append((2, [f"v_exp_f32 v{t(2*pi)}, v{S+2*pi}"]))
                if post: it.append(post.pop())
                it.append((2, [f"v_exp_f32 v{t(2*pi+1)}, v{S+2*pi+1}"]))
            it += post
        it.append((1, [f"v_add_f32 v{V_LT}, v{V_LT}, v{V_LT+1}"]))
        return it
    redo_sites = []
    def sm(Z, tag):
        r = regs(Z)
        it = sm_core(Z)
        lab = f"rd{Z}{tag}"
        it.append((1, [f"v_cmp_nge_f32 vcc, {THR}, v{V_LT}"]))
        it.append((1, [f"s_cbranch_vccnz {L(lab)}", ("label", lab + "r")]))
        it.append((1, [f"v_add_f32 v{r['L']}, v{r['L']}, v{V_LT}"]))
        redo_sites.append((Z, lab))
        return it
    def emit(x):
        if isinstance(x, tuple): k.label(x[1])
        else: e(x)
    def weave(mf, fixed, stream, lo=0):
        n = len(mf)
        fw = [sum(w for w, _ in fixed.get(g, [])) for g in range(n)]
        tot = sum(w for w, _ in stream) + sum(fw)
        per = tot / n
        acc = 0.0; si = 0
        for g in range(n):
            if mf[g]: e(mf[g])
            gw = 0
            for w, ins in fixed.get(g, []):
                for x in ins: emit(x)
                acc += w; gw += w
            while g >= lo and si < len(stream) and (g == n - 1 or (acc + stream[si][0] * 0.5 <= per * (g + 1) + 0.01 and gw + stream[si][0] <= 6)):
                for x in stream[si][1]: emit(x)
                acc += stream[si][0]; gw += stream[si][0]; si += 1
    def add(fx, g, ins, w=None):
        fx.setdefault(g, []).append((len(ins) if w is None else w, ins))
    def vlds(i): return 32768 + ((i & 3) * 4 + (i >> 2)) * 1024
    NV1 = 6
    def unit(m0, voff, srd, soff):
        d = dma4(m0, voff, srd, soff)
        return [[d[0][0]], [d[0][2]]] + d[1:]
    def body(tag, n16):
        mf = qk("X") + pv("X") + qk("Y") + pv("Y")
        fx = {}
        e(f"s_waitcnt lgkmcnt({NV1})")
        for i in range(NV1, 16):
            add(fx, int((i - NV1) * 1.25), [f"ds_read_b128 {ar(VF+4*i,4)}, v{V_VA} offset:{vlds(i)}"])
        add(fx, 13, [f"s_mov_b32 s{S_VOFF}, s{S_KOFF}", f"s_mov_b32 s{S_KOFF}, s{S_KB}"])
        add(fx, 14, [f"s_add_u32 s{S_KB}, s{S_KB}, {0x10000 if n16 else 0x8000}", f"s_xor_b32 s{S_DB}, s{S_DB}, 0x10000"])
        add(fx, 15, ["s_waitcnt vmcnt(0) lgkmcnt(0)", "s_barrier"])
        dv = unit(f"s_add_u32 m0, s{S_DB}, 0x8000", V_D0+2, SRD_V, S_VOFF)
        dk = unit(f"s_mov_b32 m0, s{S_DB}", V_D0, SRD_K, S_KOFF)
        if n16:
            dv += unit(f"s_add_u32 m0, s{S_DB}, 0xc000", V_D0+3, SRD_V, S_VOFF)
            dk += unit(f"s_add_u32 m0, s{S_DB}, 0x4000", V_D0+1, SRD_K, S_KOFF)
            for i, it in enumerate(dv): add(fx, 16 + (i * 13) // len(dv), it)
            for i, it in enumerate(dk): add(fx, 32 + (i * (10 if "x_kearly" in EXP else 15)) // len(dk), it)
            add(fx, 29, [f"s_cmp_eq_u32 s{S_J}, s{S_N1M2}", f"s_cselect_b32 s{S_KX}, s{S_KX2}, 0x10000"])
            add(fx, 30, [f"v_xor_b32 v{V_KA}, s{S_KX}, v{V_KA}"])
        else:
            for i, it in enumerate(dv + dk): add(fx, 16 + (i * 14) // 10, it)
            add(fx, 30, [f"v_xor_b32 v{V_KA}, 0x10000, v{V_KA}"])
        add(fx, 31, [f"v_xor_b32 v{V_VA}, 0x10000, v{V_VA}"])
        for i in range(16):
            add(fx, 32 + 2 + int(i * 1.35), [f"ds_read_b128 {vr(KF+4*i,4)}, v{V_KA} offset:{i*1024}"])
        for i in range(NV1):
            add(fx, 32 + 24 + int(i * 1.3), [f"ds_read_b128 {ar(VF+4*i,4)}, v{V_VA} offset:{vlds(i)}"])
        weave(mf[:32], {g: v for g, v in fx.items() if g < 32}, sm("Y", tag))
        e(f"s_bitcmp1_b32 s{S_FB}, s{S_J}\ns_cbranch_scc1 {L('hB')}")
        k.label("hBr" if n16 else "hBr8")
        weave(mf[32:], {g - 32: v for g, v in fx.items() if g >= 32}, sm("X", tag))
        e(f"s_add_u32 s{S_J}, s{S_J}, 1\ns_bitcmp1_b32 s{S_FC}, s{S_J}")
    def tile_max_items(S):
        it = [[f"v_max3_f32 v{V_M}, v{S}, v{S+1}, v{S+2}"], [f"v_max3_f32 v{V_M+1}, v{S+3}, v{S+4}, v{S+5}"]]
        i = 6; tog = 0
        while i < 32:
            d = V_M + tog
            it.append([f"v_max3_f32 v{d}, v{d}, v{S+i}, v{S+i+1}"]); i += 2; tog ^= 1
        it.append([f"v_max_f32 v{V_M}, v{V_M}, v{V_M+1}"])
        it.append([f"v_mov_b32 v{V_M+1}, v{V_M}", "s_nop 1", f"v_permlane32_swap_b32 v{V_M+1}, v{V_M}", "s_nop 1", f"v_max_f32 v{V_M}, v{V_M}, v{V_M+1}"])
        return it
    def first_items(Z, packed):
        r = regs(Z); S, N = r["S"], r["N"]
        it = tile_max_items(S)
        it.append([f"v_sub_f32 v{N}, 0, v{V_M}"])
        it.append([f"v_sub_f32 v{N+1}, 0, v{V_M}"])
        if packed:
            for i in range(16): it.append([f"v_pk_add_f32 {pk(S+2*i)}, {pk(S+2*i)}, {pk(N)}"])
            for i in range(1, 8): it.append([f"v_pk_mov_b32 {pk(N+2*i)}, {pk(N)}, {pk(N)}"])
        else:
            for i in range(32): it.append([f"v_add_f32 v{S+i}, v{S+i}, v{N}"])
            for i in range(2, 16): it.append([f"v_mov_b32 v{N+i}, v{N}"])
        return it
    def flat(items):
        for it in items:
            for x in it: emit(x)
    def mask_code(S, nm):
        e(f"s_cmp_lt_i32 s{S_T0}, -1\ns_cbranch_scc1 {L(nm + 'r')}")
        e(f"s_cmp_eq_i32 s{S_T0}, -1\ns_cbranch_scc1 {L(nm + 'a')}")
        e(f"v_mov_b32 v{S+16}, v{V_BIG}\nv_mov_b32 v{S+17}, v{V_BIG}")
        for r in range(1, 8): e(f"v_pk_mov_b32 {pk(S+16+2*r)}, {pk(S+16)}, {pk(S+16)}")
        e(f"s_cmp_eq_i32 s{S_T0}, 0\ns_cbranch_scc1 {L(nm + 'b')}")
        for r in range(8): e(f"v_pk_mov_b32 {pk(S+2*r)}, {pk(S+16)}, {pk(S+16)}")
        e(f"s_branch {L(nm + 'r')}")
        k.label(nm + "a")
        for r in range(16):
            e(f"v_cndmask_b32 v{S+16+r}, v{V_BIG}, v{S+16+r}, s[{MASKP[r]}:{MASKP[r]+1}]")
        e(f"s_branch {L(nm + 'r')}")
        k.label(nm + "b")
        for r in range(16):
            e(f"v_cndmask_b32 v{S+r}, v{V_BIG}, v{S+r}, s[{MASKP[r]}:{MASKP[r]+1}]")
        k.label(nm + "r")

    for r in range(16):
        f = LY.row2key(8 * (r >> 2) + (r & 3))
        e(f"v_cmp_le_i32 s[{MASKP[r]}:{MASKP[r]+1}], {f}, v{V_LB}")
    e("s_waitcnt lgkmcnt(8)")
    fx = {}
    for i in range(8): add(fx, 1 + i, [f"ds_read_b128 {vr(V_E+4*i,4)}, v{V_T} offset:{i*1024}"])
    add(fx, 15, ["s_waitcnt vmcnt(0) lgkmcnt(0)", "s_barrier"])
    weave(qk("X", True), fx, [])
    def k2load(tag):
        flat(dma4(f"s_mov_b32 m0, s{S_DB}", V_D0, SRD_K, S_KOFF))
        e(f"s_cmp_lg_u32 s{S_N1}, 2\ns_cbranch_scc1 {L('nok2' + tag)}")
        flat(dma4(f"s_add_u32 m0, s{S_DB}, 0x4000", V_D0+1, SRD_K, S_KOFF))
        k.label("nok2" + tag)
    e(f"""v_cmp_ne_u32 vcc, 1, v{V_POLL}
s_mov_b32 s{S_KOFF}, s{S_KB}
s_cmp_eq_u32 s{S_N1}, 2
s_cselect_b32 s{S_T0}, 2, 1
s_lshl_b32 s{S_T0}, s{S_T0}, 15
s_add_u32 s{S_KB}, s{S_KB}, s{S_T0}
s_mov_b32 s{S_J}, 0
s_mov_b32 s{S_T2}, 1
s_cbranch_vccnz {L('late')}
s_mov_b32 s{S_T2}, 0""")
    k2load("a")
    k.label("late")
    ST("s1")
    fx = {}
    add(fx, 0, [f"v_xor_b32 v{V_KA}, 0x10000, v{V_KA}", f"v_xor_b32 v{V_VA}, 0x10000, v{V_VA}"])
    for i in range(14):
        add(fx, 2 + i, [f"ds_read_b128 {vr(KF+4*i,4)}, v{V_KA} offset:{i*1024}"])
    weave(qk("Y", True), fx, [(len(it), it) for it in first_items("X", False)], lo=2)
    for i in range(14, 16):
        e(f"ds_read_b128 {vr(KF+4*i,4)}, v{V_KA} offset:{i*1024}")
    e(f"""s_lshl_b32 s{S_T0}, s{S_W}, 8
s_add_u32 s{S_T0}, s{S_T0}, {16384}
v_lshlrev_b32 v{V_T}, 2, v1
v_add_u32 v{V_T}, s{S_T0}, v{V_T}
ds_write_b32 v{V_T}, v{NX}
v_xor_b32 v{V_NP}, 0x100, v{V_T}""")
    for i, (w, ins) in enumerate(sm("X", "p")):
        for x in ins: emit(x)
    ST("s2")
    e(f"s_cmp_eq_u32 s{S_T2}, 1\ns_cbranch_scc1 {L('spin')}")
    k.label("spinr")
    e("s_waitcnt lgkmcnt(0)\ns_barrier")
    ST("sync")
    e(f"ds_read_b32 v{V_NP}, v{V_NP}")
    for i in range(NV1):
        e(f"ds_read_b128 {ar(VF+4*i,4)}, v{V_VA} offset:{vlds(i)}")
    e(f"s_lshl_b32 s{S_T0}, s{S_N1M2}, 1\ns_sub_u32 s{S_T0}, s{S_T0}, s{S_RY}")
    mask_code(SY, "m0")
    flat(first_items("Y", True))
    e(f"s_cmp_lt_i32 s{S_N1M3}, 1\ns_cbranch_scc1 {L('loop16')}")
    k.label("loop8")
    body("a", False)
    e(f"s_cbranch_scc0 {L('loop8')}\ns_branch {L('hC')}")
    k.label("loop16")
    body("b", True)
    e(f"s_cbranch_scc0 {L('loop16')}")
    k.label("hC")
    def STJ(name, cond):
        if name in SMAP and Kern.STAMP:
            lab = k.newlabel("sj")
            e(f"s_cmp_lg_u32 s{S_J}, {cond}\ns_cbranch_scc1 {L(lab)}")
            ST(name); k.label(lab)
    STJ("inn1", f"s{S_N1}"); STJ("in1", 1); STJ("inm3", f"s{S_N1M3}")
    e(f"s_cmp_eq_u32 s{S_J}, s{S_N1}\ns_cbranch_scc1 {L('sw2')}")
    k.label("hCa")
    e(f"s_and_b32 s{S_T0}, s{S_J}, 15\ns_cmp_le_u32 s{S_T0}, 1\ns_cbranch_scc1 {L('mY')}")
    k.label("hCb")
    STJ("outn1", f"s{S_N1}"); STJ("out1", 1)
    e(f"""s_cmp_lt_i32 s{S_J}, s{S_N1M3}
s_cbranch_scc1 {L('loop8')}
s_add_u32 s{S_T0}, s{S_KA}, 0x10000
s_cmp_eq_u32 s{S_J}, s{S_N1M3}
s_cselect_b32 s{S_KB}, s{S_T0}, s{S_KB}
s_branch {L('loop16')}""")
    k.label("mY")
    e(f"""s_sub_u32 s{S_T0}, 32, s{S_N1}
s_add_u32 s{S_T0}, s{S_T0}, s{S_WODD}
s_sub_u32 s{S_T1}, s{S_N1}, 1
s_cmp_eq_u32 s{S_J}, 1
s_cselect_b32 s{S_T0}, s{S_T1}, s{S_T0}
s_lshl_b32 s{S_T0}, s{S_T0}, 1
s_sub_u32 s{S_T0}, s{S_T0}, s{S_RY}""")
    mask_code(SY, "m1")
    e(f"s_cmp_eq_u32 s{S_J}, 1\ns_cbranch_scc1 {L('hCb')}")
    ST("tail")
    for i in range(NV1, 16):
        e(f"ds_read_b128 {ar(VF+4*i,4)}, v{V_VA} offset:{vlds(i)}")
    st = sm("Y", "e")
    for w, ins in st[:12]:
        for x in ins: emit(x)
    e(f"v_mov_b32 v{V_POLL}, {SCR}\ns_waitcnt vmcnt(0) lgkmcnt(0)\ns_barrier\nds_read_b32 v{V_POLL}, v{V_POLL}")
    weave(pv("X"), {}, st[12:])
    e(f"""s_waitcnt lgkmcnt(0)
v_readfirstlane_b32 s{S_KA}, v{V_POLL}
s_and_b32 s{S_KB}, s{S_KA}, 0xffff
s_lshr_b32 s{S_T0}, s{S_KA}, 16
s_cmp_lt_u32 s{S_T0}, 256
s_cbranch_scc1 {L('uspin')}""")
    k.label("uok")
    e(f"""s_cmp_lt_u32 s{S_KB}, 160
s_cbranch_scc1 {L('cvld')}""")
    k.label("cvldr")
    MB = lambda wreg: f"s_mul_i32 s{S_T0}, {wreg}, {17*1024}\ns_add_u32 s{S_T0}, s{S_T0}, {88*1024}"
    MBold = lambda wreg: f"s_and_b32 s{S_T0}, {wreg}, 1\ns_mul_i32 s{S_T0}, s{S_T0}, {18*1024}\ns_lshr_b32 s{S_T1}, {wreg}, 1\ns_mul_i32 s{S_T1}, s{S_T1}, {88*1024}\ns_add_u32 s{S_T0}, s{S_T0}, s{S_T1}\ns_add_u32 s{S_T0}, s{S_T0}, {24*1024}"
    e(MB(f"s{S_W}") + f"\nv_add_u32 v{V_T}, s{S_T0}, v{V_D0}\nv_mov_b32 v{NY+1}, v{V_LY}")
    e(f"ds_write_b64 v{V_T}, {pk(NY)} offset:{16*1024}")
    fx = {}
    for r in range(64):
        add(fx, 1 + r // 5 if r < 48 else 11 + (r - 48) // 4, [f"v_accvgpr_read_b32 v{192+r}, a{OX+r}"])
    for db in range(3):
        for q in range(4):
            add(fx, min(15, 4*db + 7 + q), [f"ds_write_b128 v{V_T}, {ar(OY+16*db+4*q,4)} offset:{(4*db+q)*1024}"])
    weave(pv("Y"), fx, [])
    e(f"s_xor_b32 s{S_T2}, s{S_W}, 1\n" + MB(f"s{S_T2}") + f"\nv_add_u32 v{V_T+1}, s{S_T0}, v{V_D0}\ns_lshl_b32 s{S_CTXB}, s{S_RX}, 18\ns_nop 5")
    for q in range(4):
        e(f"ds_write_b128 v{V_T}, {ar(OY+48+4*q,4)} offset:{(12+q)*1024}")
    e("s_waitcnt lgkmcnt(0)\ns_barrier")
    e(f"ds_read_b64 {pk(NY)}, v{V_T+1} offset:{16*1024}")
    for i in range(16):
        e(f"ds_read_b128 {vr(128+4*i,4)}, v{V_T+1} offset:{i*1024}")
    e("s_waitcnt lgkmcnt(15)")
    A, D, B, C = 24, 25, 26, 28
    e(f"""v_min_f32 v{A}, v{NX}, v{NY}
v_sub_f32 v{B}, v{A}, v{NX}
v_sub_f32 v{C}, v{A}, v{NY}
v_exp_f32 v{B}, v{B}
v_exp_f32 v{C}, v{C}
s_nop 0
v_mul_f32 v{V_LX}, v{V_LX}, v{B}
v_fma_f32 v{V_LX}, v{NY+1}, v{C}, v{V_LX}
v_mov_b32 v{D}, v{V_LX}
s_nop 1
v_permlane32_swap_b32 v{D}, v{V_LX}
s_nop 1
v_add_f32 v{D}, v{D}, v{V_LX}
v_rcp_f32 v{D}, v{D}
s_nop 0
v_mul_f32 v{B}, v{B}, v{D}
v_mul_f32 v{C}, v{C}, v{D}
v_mov_b32 v{B+1}, v{B}
v_mov_b32 v{C+1}, v{C}""")
    for i in range(32): e(f"v_pk_mul_f32 {pk(192+2*i)}, {pk(192+2*i)}, {pk(B)}")
    e("s_waitcnt lgkmcnt(0)")
    for db in range(4):
        for s in range(2):
            t = V_E + 4 * (2*db+s)
            b = 16*db + 8*s
            for i in range(4): e(f"v_pk_fma_f32 {pk(192+b+2*i)}, {pk(128+b+2*i)}, {pk(C)}, {pk(192+b+2*i)}")
            for i in range(4): e(f"v_cvt_pk_bf16_f32 v{t+i}, v{192+b+2*i}, v{192+b+2*i+1}")
            e(f"buffer_store_dwordx4 {vr(t,4)}, v{V_CTX}, {G}, s{S_CTXB} offen offset:{db*1024 + s*512}{NTC}")
    ST("att_end")
    out = k_main_out.Out(k, G, ST, S_M)
    e(f"""s_lshl_b32 s{S_T0}, s{S_P}, 2
s_bfe_u32 s{S_T1}, s{S_H}, 0x20001
s_add_u32 s{S_T0}, s{S_T0}, s{S_T1}
s_lshl_b32 s{S_T0}, s{S_T0}, 5
s_lshr_b32 s{S_T1}, s{S_H}, 3
s_lshl_b32 s{S_T1}, s{S_T1}, 1
s_add_u32 s{S_T0}, s{S_T0}, s{S_T1}
s_and_b32 s{S_T1}, s{S_H}, 1
s_add_u32 s{S_T0}, s{S_T0}, s{S_T1}
s_lshl_b32 s{S_T0}, s{S_T0}, 2
s_add_u32 s{S_T0}, s{S_T0}, {hex(LY.CF_OFF)}
v_mov_b32 v2, s{S_T0}
v_mov_b32 v3, 1""")
    out.setup()
    e(f"s_waitcnt vmcnt(0) lgkmcnt(0)\ns_barrier\ns_cmp_lg_u32 s{S_W}, 0\ns_cbranch_scc1 {L('ncf')}\ns_mov_b64 exec, 1\nbuffer_store_dword v3, v2, {G}, 0 offen sc1\ns_mov_b64 exec, -1")
    k.label("ncf")
    ST("pub")
    e(f"s_cmp_lt_u32 s{S_KB}, 160\ns_cbranch_scc1 {L('conv')}")
    out.prefetchW()
    k.label("fin")
    ST("fin")
    out.gemm(f"s_cmp_ge_u32 s{S_KB}, 160\ns_cbranch_scc1 {L('nyf')}\ns_mov_b64 exec, 1\nbuffer_store_dword v3, v2, {G}, 0 offen sc1\ns_mov_b64 exec, -1\n{L('nyf')}:")
    if Kern.STAMP: e("s_waitcnt vmcnt(0)")
    ST("end")
    k.stamp_flush(SRD_G, LY.STAMP_OFF + 65536 * getattr(gen_main, "idx", 0), 2)
    k.label("end")
    e("s_endpgm")

    k.label("sw2")
    D = V_M
    e(f"""v_mov_b32 v{D}, v{V_LB}
v_mov_b32 v{V_T}, 0
v_mov_b32 v{V_T+1}, 0
v_permlane32_swap_b32 v{D}, v{V_LB}
v_mov_b32 v{V_T+2}, 0
v_mov_b32 v{V_T+3}, 0
v_add_f32 v{D}, v{D}, v{V_LB}
v_rcp_f32 v{D}, v{D}
s_nop 1
v_mov_b32 v{D+1}, v{D}""")
    for db in range(4):
        t = V_E + 16 * (db % 2)
        for i in range(16): e(f"v_accvgpr_read_b32 v{t+i}, a{OY+16*db+i}")
        e(f"v_mfma_f32_32x32x16_bf16 {ar(OY+16*db,16)}, {vr(V_T,4)}, {vr(V_T,4)}, 0")
        for i in range(8): e(f"v_pk_mul_f32 {pk(t+2*i)}, {pk(t+2*i)}, {pk(D)}")
        for s in range(2):
            o = PY + 8 * (db % 2) + 4 * s
            for i in range(4): e(f"v_cvt_pk_bf16_f32 v{o+i}, v{t+8*s+2*i}, v{t+8*s+2*i+1}")
            e(f"buffer_store_dwordx4 {vr(o,4)}, v{V_CTX}, {G}, s{S_CTXB} offen offset:{db*1024 + s*512}{NTC}")
    e(f"s_branch {L('hCa')}")
    k.label("hBx")
    e(f"s_cmp_lt_i32 s{S_J}, s{S_N1M3}\ns_cbranch_scc1 {L('hBr8')}\ns_branch {L('hBr')}")
    k.label("hB")
    e(f"s_cmp_eq_u32 s{S_J}, 2\ns_cbranch_scc1 {L('upA')}\ns_cmp_eq_u32 s{S_J}, 6\ns_cbranch_scc1 {L('upB')}\ns_cmp_eq_u32 s{S_J}, 8\ns_cbranch_scc1 {L('upC')}")
    e(f"s_add_u32 s{S_T0}, s{S_J}, 1\ns_cmp_lg_u32 s{S_T0}, s{S_N1}\ns_cbranch_scc1 {L('hB1')}")
    for i in range(32): e(f"v_accvgpr_write_b32 a{QY+i}, v{V_E+i}")
    e(f"v_mov_b32 v{V_LB}, v{V_LY}\nv_mov_b32 v{V_LY}, 0\nv_mov_b32 v{NY}, v{V_NP}\nv_mov_b32 v{NY+1}, v{V_NP}")
    for r in range(1, 8): e(f"v_pk_mov_b32 {pk(NY+2*r)}, {pk(NY)}, {pk(NY)}")
    e(f"""s_lshl_b32 s{S_CTXB}, s{S_RY}, 18
s_xor_b32 s{S_RY}, s{S_RX}, 1
s_lshl_b32 s{S_T0}, s{S_WODD}, 14
v_add_u32 v{V_VA}, s{S_T0}, v{V_VA}""")
    k.label("hB1")
    e(f"s_cmp_lt_u32 s{S_J}, 14\ns_cbranch_scc1 {L('hBr')}")
    e(f"s_cmp_eq_u32 s{S_J}, 15\ns_cbranch_scc1 {L('hB2')}")
    e(f"""s_load_dwordx2 s[{SRD_K}:{SRD_K+1}], s[0:1], 40
s_load_dwordx2 s[{SRD_V}:{SRD_V+1}], s[0:1], 80
s_load_dwordx2 s[72:73], s[0:1], 112
s_mov_b32 s{S_KOFF}, s{S_W4K}
s_mov_b32 s{S_KB}, s{S_W4K}
v_mov_b32 v{V_D0+1}, v{V_D0+2}
s_mov_b32 s{SRD_K+2}, 20480
s_cmp_lt_u32 s2, 213
s_cselect_b32 s{SRD_V+2}, {16384+12288}, 0
s_mul_i32 s{S_T0}, s2, 20480
s_mul_i32 s{S_T1}, s2, 12288
s_waitcnt lgkmcnt(0)
s_add_u32 s{SRD_K}, s{SRD_K}, s{S_T0}
s_addc_u32 s{SRD_K+1}, s{SRD_K+1}, 0
s_add_u32 s{SRD_V}, s{SRD_V}, s{S_T1}
s_addc_u32 s{SRD_V+1}, s{SRD_V+1}, 0
s_sub_u32 s{SRD_V}, s{SRD_V}, 16384
s_subb_u32 s{SRD_V+1}, s{SRD_V+1}, 0
s_cmp_lg_u32 s{S_W}, 0
s_cbranch_scc1 {L('hBr')}
v_mov_b32 v{V_T}, 128
v_mov_b32 v{V_T+1}, 1
s_mov_b64 exec, 1
global_atomic_add v{V_POLL}, v{V_T}, v{V_T+1}, s[72:73] sc0 sc1
s_mov_b64 exec, -1
s_branch {L('hBr')}""")
    k.label("hB2")
    e(f"""s_cmp_lg_u32 s{S_W}, 0
s_cbranch_scc1 {L('hB3')}
v_mov_b32 v{V_T}, {SCR}
s_mov_b64 exec, 1
ds_write_b32 v{V_T}, v{V_POLL}
s_mov_b64 exec, -1""")
    k.label("hB3")
    e(f"s_getpc_b64 s[{SRD_K}:{SRD_K+1}]")
    k.label("pc3")
    e(f"""s_sub_u32 s{SRD_K}, s{SRD_K}, {L('pc3')}-main_kernel
s_subb_u32 s{SRD_K+1}, s{SRD_K+1}, 0
s_mov_b32 s{SRD_K+2}, all_code_end-main_kernel
s_lshr_b32 s{S_T0}, s2, 3
s_and_b32 s{S_T0}, s{S_T0}, 3
s_lshl_b32 s{S_T0}, s{S_T0}, 15
s_add_u32 s{S_KOFF}, s{S_T0}, s{S_W4K}""")
    e(f"""s_sub_u32 s{S_T0}, 32, s{S_N1}
s_add_u32 s{S_T0}, s{S_T0}, s{S_WODD}
s_lshl_b32 s{S_T0}, s{S_T0}, 1
s_sub_u32 s{S_T0}, s{S_T0}, s{S_RX}""")
    mask_code(SX, "mX")
    e(f"s_branch {L('hBr')}")
    UK, UV, UW = QL, QL + 14336, QL + 24576
    k.label("upA")
    e(f"""s_load_dwordx2 s[72:73], s[0:1], 56
s_and_b32 s{S_T2}, s2, 7
s_lshl_b32 s{S_T2}, s{S_T2}, 5
s_lshr_b32 s{S_T0}, s2, 3
s_add_u32 s{S_T2}, s{S_T2}, s{S_T0}
s_mul_i32 s{S_T1}, s{S_T2}, 10240
s_cmp_eq_u32 s{S_T2}, 0
s_cselect_b32 s{S_T0}, 0, 3840
s_sub_u32 s{S_T1}, s{S_T1}, s{S_T0}
s_add_u32 s74, s{S_T0}, 10240
s_mov_b32 s75, 0x00020000
s_mul_i32 s{S_T0}, s{S_W}, 3584
s_waitcnt lgkmcnt(0)
s_add_u32 s72, s72, s{S_T1}
s_addc_u32 s73, s73, 0
s_add_u32 m0, s{S_T0}, {UK}
s_nop 0""")
    for i in range(4):
        if i == 3: e("s_mov_b32 exec_hi, 0")
        e(f"buffer_load_dwordx4 v{V_D0}, s[72:75], s{S_T0} offen offset:{i*1024} lds")
    e(f"""s_mov_b32 exec_hi, -1
s_load_dwordx2 s[72:73], s[0:1], 64
s_mul_i32 s{S_T1}, s{S_T2}, 10240
s_mov_b32 s74, 10240
s_mul_i32 s{S_T0}, s{S_W}, 2560
s_waitcnt lgkmcnt(0)
s_add_u32 s72, s72, s{S_T1}
s_addc_u32 s73, s73, 0
s_add_u32 m0, s{S_T0}, {UV}
s_nop 0""")
    for i in range(3):
        if i == 2: e("s_mov_b32 exec_hi, 0")
        e(f"buffer_load_dwordx4 v{V_D0}, s[72:75], s{S_T0} offen offset:{i*1024} lds")
    e(f"""s_mov_b32 exec_hi, -1
s_load_dwordx2 s[72:73], s[0:1], 72
s_mov_b32 s74, 5120
s_mul_i32 s{S_T0}, s{S_W}, 1280
s_add_u32 m0, s{S_T0}, {UW}
s_waitcnt lgkmcnt(0)
buffer_load_dwordx4 v{V_D0}, s[72:75], s{S_T0} offen lds
s_mov_b64 exec, 0xffff
buffer_load_dwordx4 v{V_D0}, s[72:75], s{S_T0} offen offset:1024 lds
s_mov_b64 exec, -1
s_branch {L('hBx')}""")
    k.label("upB")
    AQ, AH, AV, AW, AO = 107, 108, 109, 110, 111
    e(f"""s_and_b32 s{S_T2}, s2, 7
s_lshl_b32 s{S_T2}, s{S_T2}, 5
s_lshr_b32 s{S_T0}, s2, 3
s_add_u32 s{S_T2}, s{S_T2}, s{S_T0}
v_min_u32 v{AO}, 39, v1
s_mul_i32 s{S_T0}, s{S_W}, 40
v_add_u32 v{AO}, s{S_T0}, v{AO}
v_lshlrev_b32 v{AV}, 3, v{AO}
v_lshlrev_b32 v{AW}, 5, v{AO}
v_add_u32 v{AW}, {UW}, v{AW}
s_cmp_eq_u32 s{S_T2}, 0
s_cselect_b32 s{S_T0}, 0, 3840
s_cselect_b32 s{S_T1}, 10240, 0
s_add_u32 s{S_T0}, s{S_T0}, {UK}
s_add_u32 s{S_T1}, s{S_T1}, {UK}
v_add_u32 v{AQ}, s{S_T0}, v{AV}
v_add_u32 v{AH}, s{S_T1}, v{AV}
v_add_u32 v{AV}, {UV}, v{AV}
v_lshlrev_b32 v{AO}, 14, v{AO}
s_lshl_b32 s{S_T0}, s{S_T2}, 4
s_add_u32 s{S_T0}, s{S_T0}, {hex(LY.UT_OFF)}""")
    KR, VR, WR, KL, WU, UO, UT = 160, 171, 180, 96, 184, 24, 20
    for d in range(2):
        e(f"ds_read_b128 {vr(WR,4)}, v{AW} offset:{16*d}")
        for r in range(3): e(f"ds_read_b32 v{KR+r}, v{AH} offset:{r*1280 + 4*d}")
        for r in range(8): e(f"ds_read_b32 v{KR+3+r}, v{AQ} offset:{r*1280 + 4*d}")
        for r in range(8): e(f"ds_read_b32 v{VR+r}, v{AV} offset:{r*1280 + 4*d}")
        e("s_waitcnt lgkmcnt(8)")
        for cc in range(2):
            for j in range(4):
                src = WR + 2*cc + (j >> 1)
                e(f"v_and_b32 v{WU+4*cc+j}, s{S_M}, v{src}" if j & 1 else f"v_lshlrev_b32 v{WU+4*cc+j}, 16, v{src}")
        for r in range(11):
            e(f"v_lshlrev_b32 v{KL+r}, 16, v{KR+r}\nv_and_b32 v{KR+r}, s{S_M}, v{KR+r}")
        e("s_waitcnt lgkmcnt(0)")
        for cc in range(2):
            KU = KL if cc == 0 else KR
            for sp in range(4):
                for q, s_ in enumerate((7-2*sp, 6-2*sp)):
                    t = UT + 2*q
                    e(f"v_mul_f32 v{t}, v{WU+4*cc+3}, v{KU+s_}")
                    e(f"v_and_b32 v{t+1}, s{S_M}, v{VR+s_}" if cc else f"v_lshlrev_b32 v{t+1}, 16, v{VR+s_}")
                    for tt in range(1, 4): e(f"v_fmac_f32 v{t}, v{WU+4*cc+3-tt}, v{KU+s_+tt}")
                    e(f"v_mul_f32 v{t}, v{t}, v{t+1}")
                e(f"v_cvt_pk_bf16_f32 v{UO+4*cc+sp}, v{UT}, v{UT+2}")
            e(f"buffer_store_dwordx4 {vr(UO+4*cc,4)}, v{AO}, {G}, s{S_T0} offen{UST}")
            e(f"s_add_u32 s{S_T0}, s{S_T0}, 4096")
    e(f"s_branch {L('hBx')}")
    k.label("upC")
    e(f"""s_cmp_lg_u32 s{S_W}, 0
s_cbranch_scc1 {L('hBx')}
s_load_dwordx2 s[72:73], s[0:1], 112
v_mov_b32 v{V_T}, 128
v_mov_b32 v{V_T+1}, 0x10000
s_waitcnt lgkmcnt(0)
s_mov_b64 exec, 1
global_atomic_add v{V_T}, v{V_T+1}, s[72:73] sc1
s_mov_b64 exec, -1
s_branch {L('hBx')}""")
    S_CH, S_CL, S_CO, S_CD = 4, 5, 6, 7
    k.label("cvld")
    e(f"""s_load_dwordx4 s[8:11], s[0:1], 80
s_lshl_b32 s{S_CH}, s{S_KB}, 2
s_add_u32 s{S_CH}, s{S_CH}, s{S_W}
s_mul_i32 s{S_CL}, s{S_W}, {CH}
s_lshl_b32 s{S_CO}, s{S_CH}, 12
s_waitcnt lgkmcnt(0)
s_mov_b32 s12, s8
s_mov_b32 s13, s9
s_mov_b32 s14, {640*4096}
s_mov_b32 s15, 0x00020000
s_lshr_b32 s{S_T0}, s{S_CH}, 1
s_lshl_b32 s{S_T0}, s{S_T0}, 2
s_load_dword s{S_CD}, s[10:11], s{S_T0}""")
    for s_ in range(1):
        e(f"s_add_u32 m0, s{S_CL}, {s_*CS + 32}\ns_add_u32 s{S_T0}, s{S_CO}, {2*s_}")
        for i in range(4):
            e(f"buffer_load_dwordx4 v{V_D0}, s[12:15], s{S_T0} offen offset:{i*1024} lds")
    e(f"s_add_u32 m0, s{S_CL}, {UB + 512}\ns_add_u32 s{S_T0}, s{S_CO}, {hex(LY.UT_OFF)}")
    for i in range(4):
        e(f"buffer_load_dwordx4 v{V_D0}, {G}, s{S_T0} offen offset:{i*1024} sc1 lds")
    e(f"""v_lshrrev_b32 v5, 4, v1
v_and_b32 v6, 15, v1
v_add_u32 v7, v5, v6
v_subrev_u32 v7, 16, v7
v_cmp_gt_i32 vcc, 0, v7
v_lshlrev_b32 v7, 1, v7
v_add_u32 v7, s{S_CO}, v7
v_mov_b32 v8, 0x7ffffff0
v_cndmask_b32 v7, v7, v8, vcc
buffer_load_ushort v9, v7, s[12:15], 0 offen
s_waitcnt lgkmcnt(0)
s_branch {L('cvldr')}""")
    k.label("uspin")
    e(f"s_load_dwordx2 s[72:73], s[0:1], 112\ns_mov_b32 s{S_T1}, 0x100000\nv_mov_b32 v5, 128\ns_waitcnt lgkmcnt(0)")
    k.label("uspl")
    e(f"""global_load_dword v6, v5, s[72:73] sc1
s_waitcnt vmcnt(0)
v_readfirstlane_b32 s{S_T0}, v6
s_lshr_b32 s{S_T0}, s{S_T0}, 16
s_cmp_ge_u32 s{S_T0}, 256
s_cbranch_scc1 {L('uok')}
s_sub_u32 s{S_T1}, s{S_T1}, 1
s_cmp_eq_u32 s{S_T1}, 0
s_cbranch_scc1 {L('uok')}
s_sleep 8
s_branch {L('uspl')}""")
    k.label("conv")
    k.lg = []
    e(f"v_add_u32 v16, s{S_CL}, v{V_D0}")
    for c in range(4):
        e(f"ds_read_b128 {vr(64+8*c,4)}, v16 offset:{32 + c*1024}\nds_read_b64 {vr(68+8*c,2)}, v16 offset:{48 + c*1024}")
    e(f"""v_mul_u32_u24 v17, {CS}, v5
v_lshlrev_b32 v13, 1, v6
v_add_u32 v17, v17, v13
v_add_u32 v17, s{S_CL}, v17
v_mov_b32 v14, 0
v_mov_b32 v15, 0
v_lshlrev_b32 v13, 3, v1
v_add_u32 v13, s{S_CL}, v13
ds_write_b64 v13, v[14:15] offset:{UB}
v_lshrrev_b32 v10, 1, v5
v_sub_u32 v10, v6, v10
v_lshlrev_b32 v10, 5, v10
v_and_b32 v11, 1, v5
v_lshlrev_b32 v12, 4, v11
v_add_u32 v10, v10, v12
v_add_u32 v10, s{S_CL}, v10
v_add_u32 v10, {UB + 512 - 448}, v10
v_add_u32 v12, 1, v6
v_and_b32 v13, 3, v12
v_sub_u32 v12, v12, v13
v_lshrrev_b32 v14, 1, v5
v_lshlrev_b32 v14, 4, v14
v_add_u32 v12, v12, v14
v_lshlrev_b32 v14, 3, v11
v_sub_u32 v12, v12, v14
v_add_u32 v12, 8, v12
v_lshlrev_b32 v12, 1, v12
v_mul_u32_u24 v13, {CS}, v13
v_add_u32 v12, v12, v13
v_add_u32 v12, s{S_CL}, v12
v_lshlrev_b32 v13, 5, v6
v_lshrrev_b32 v14, 1, v5
v_lshlrev_b32 v14, 4, v14
v_add_u32 v13, v13, v14
v_xor_b32 v14, 1, v11
v_lshlrev_b32 v14, 3, v14
v_add_u32 v13, v13, v14
v_add_u32 v13, s{S_CL}, v13
v_lshlrev_b32 v14, 5, v6
v_lshlrev_b32 v15, 3, v5
v_add_u32 v14, v14, v15
v_add_u32 v14, s{S_CL}, v14
s_and_b32 s{S_T0}, s{S_CH}, 1
s_cmp_eq_u32 s{S_T0}, 0
s_cselect_b32 s{S_T0}, 16, 0
s_lshl_b32 s{S_CD}, s{S_CD}, s{S_T0}
s_and_b32 s{S_CD}, s{S_CD}, 0xffff0000
ds_write_b16 v17, v9
v_add_u32 v17, {2*CS + 32}, v16
v_add_u32 v15, {3*CS + 32}, v16
s_waitcnt lgkmcnt(2)""")
    for c in range(4):
        d = 64 + 8*c; x = 96 + 8*c
        for i in range(5): e(f"v_alignbit_b32 v{x+i}, v{d+i+1}, v{d+i}, 16")
        e(f"ds_write_b128 v16, {vr(x,4)} offset:{CS + 32 + c*1024}")
        if c: e("v_add_u32 v17, 0x400, v17\nv_add_u32 v15, 0x400, v15")
        e(f"ds_write2_b32 v17, v{d+1}, v{d+2} offset0:0 offset1:1\nds_write2_b32 v17, v{d+3}, v{d+4} offset0:2 offset1:3")
        e(f"ds_write2_b32 v15, v{x+1}, v{x+2} offset0:0 offset1:1\nds_write2_b32 v15, v{x+3}, v{x+4} offset0:2 offset1:3")
    e("s_waitcnt lgkmcnt(0)")
    CACC, AF, UE = 64, 96, 160
    NA = 12; PF = 4
    loaded = set()
    def needB(mu): return [8*n - mu + 7 for n in range(8) if 8*(n+1) > mu]
    def fetch(mu):
        if mu > 63 or ("A", mu) in loaded: return
        loaded.add(("A", mu))
        r = AF + 4 * (mu % NA)
        k.lds_op(f"ds_read_b64 {vr(r,2)}, v12 offset:{64*mu}", ("A", mu))
        k.lds_op(f"ds_read_b64 {vr(r+2,2)}, v12 offset:{64*mu + 8}", ("A", mu))
        for d in needB(mu):
            if d not in loaded:
                loaded.add(d); k.lds_op(f"ds_read_b128 {ar(4*d,4)}, v10 offset:{64*d}", ("B", d))
    def fin_tile(n):
        a = CACC + 4*n; u = UE + 2*n; t = 192 + 8 * (n % 4)
        out = f"""v_and_b32 v{t}, s{S_M}, v{u+1}
v_lshlrev_b32 v{t+1}, 16, v{u+1}
v_and_b32 v{t+2}, s{S_M}, v{u}
v_lshlrev_b32 v{t+3}, 16, v{u}""".split("\n")
        for i in range(4): out.append(f"v_fma_f32 v{t+i}, s{S_CD}, v{t+i}, v{a+i}")
        out += [f"v_cvt_pk_bf16_f32 v{t+6}, v{t}, v{t+1}", f"v_cvt_pk_bf16_f32 v{t+7}, v{t+2}, v{t+3}"]
        out.append(f"buffer_store_dwordx2 {vr(t+6,2)}, v14, {G}, s{S_T1} offen offset:{n*512} sc1")
        return out
    e(f"v_subrev_u32 v14, s{S_CL}, v14\ns_add_u32 s{S_T1}, s{S_CO}, {hex(LY.YT_OFF)}")
    for mu in range(2): fetch(mu)
    pend = []
    wpf = ["\n".join(x[1] if isinstance(x, tuple) else x for x in it) for s_ in range(3) for it in out.dmaW(s_)]
    for mu in range(64):
        if mu >= 10 and mu % 2 == 0 and wpf: e(wpf.pop(0))
        k.wait(lgtags=[("A", mu)] + [("B", d) for d in needB(mu)] + (["U"] if mu == 14 else []))
        first = True
        for n in range(8):
            if 8*(n+1) > mu:
                c = "0" if mu == 0 else vr(CACC+4*n, 4)
                e(f"v_mfma_f32_16x16x32_bf16 {vr(CACC+4*n,4)}, {vr(AF+4*(mu%NA),4)}, {ar(4*(8*n-mu+7),4)}, {c}")
                if first:
                    for q in range(mu + 1, mu + (2 if mu < 8 else 3 if mu < 40 else 8) + 1): fetch(q)
                    first = False
                elif pend:
                    e(pend.pop(0))
        if mu == 9:
            for n in range(8):
                k.lds_op(f"ds_read_b64 {vr(UE+2*n,2)}, v13 offset:{UB + 512 + n*512}", "U")
        if mu >= 14 and (mu - 2) % 8 == 0 or mu == 14:
            for n in ([0] if mu == 14 else [(mu - 2) // 8 - 1]): pend += fin_tile(n)
    e("s_nop 7")
    for x in pend + fin_tile(7): e(x)
    e(f"""s_lshl_b32 s{S_T0}, s{S_CH}, 2
s_add_u32 s{S_T0}, s{S_T0}, {hex(LY.FL_OFF)}
v_mov_b32 v2, s{S_T0}
s_branch {L('fin')}""")
    assert not wpf
    out.outofline()
    k.label("spin")
    e(f"s_mov_b32 s{S_T1}, 0x100000")
    k.label("spinl")
    e(f"""buffer_load_dword v{V_POLL}, v{V_DBG}, {G}, 0 offen sc1
s_waitcnt vmcnt(0)
v_cmp_ne_u32 vcc, 1, v{V_POLL}
s_sub_u32 s{S_T1}, s{S_T1}, 1
s_cmp_eq_u32 s{S_T1}, 0
s_cbranch_scc1 {L('spinx')}
s_cbranch_vccz {L('spinx')}
s_sleep 2
s_branch {L('spinl')}""")
    k.label("spinx")
    k2load("b")
    e(f"s_branch {L('spinr')}")
    k.label("slowpub")
    e(f"s_mov_b32 s{S_T2}, 0x100000")
    k.label("slowl")
    e(f"""global_load_dword v3, v7, s[{P_DBG}:{P_DBG+1}] sc1
s_waitcnt vmcnt(0)
v_readfirstlane_b32 s{S_T0}, v3
s_cmp_ge_u32 s{S_T0}, 8
s_cbranch_scc1 {L('slowx')}
s_sub_u32 s{S_T2}, s{S_T2}, 1
s_cmp_eq_u32 s{S_T2}, 0
s_cbranch_scc1 {L('slowx')}
s_sleep 8
s_branch {L('slowl')}""")
    k.label("slowx")
    e(f"s_branch {L('noat')}")
    for Z, lab in redo_sites:
        r = regs(Z); S, N, O, Lr = r["S"], r["N"], r["O"], r["L"]
        k.label(lab)
        flat(tile_max_items(S))
        e(f"v_max_f32 v{V_M}, 0, v{V_M}\nv_sub_f32 v{N}, v{N}, v{V_M}\nv_sub_f32 v{V_M+1}, 0, v{V_M}\nv_exp_f32 v{V_M+1}, v{V_M+1}")
        for i in range(32): e(f"v_sub_f32 v{S+i}, v{S+i}, v{V_M}")
        for i in range(1, 16): e(f"v_mov_b32 v{N+i}, v{N}")
        e(f"v_mul_f32 v{Lr}, v{Lr}, v{V_M+1}")
        for r0 in range(0, 64, 8):
            for i in range(8): e(f"v_accvgpr_read_b32 v{V_X+i}, a{O+r0+i}")
            for i in range(8): e(f"v_mul_f32 v{V_X+i}, v{V_X+i}, v{V_M+1}")
            for i in range(8): e(f"v_accvgpr_write_b32 a{O+r0+i}, v{V_X+i}")
        for w, ins in sm_core(Z):
            for x in ins: e(x)
        e(f"s_nop 1\ns_branch {L(lab + 'r')}")
```

```python
from asmlib import *
import layout as LY
STG = 20480
RB0 = 81920
YROW = 80
XSZ = 10240
S_W = 44
S_RB, S_CB, S_KQ, S_TILE = 45, 46, 47, 48
SW = "s[16:19]"; SX = "s[24:27]"; SO = "s[28:31]"
S_WS, S_WL, S_CS, S_A, S_R0 = 20, 21, 22, 23, 49
T0, T1 = 58, 59

class Out:
    def __init__(self, k, G, ST, S_M):
        self.k, self.G, self.ST, self.S_M = k, G, ST, S_M
    def krow(self, s): return (((s >> 1) & 1) + 8 * (s >> 2)) * 128 + (s & 1) * 64
    def ps(self, s): return (s + 1) % 4
    def dmaW(self, s):
        b = self.ps(s) * STG
        out = [[f"s_add_u32 m0, s{S_WL}, {b}", f"s_add_u32 s{S_A}, s{S_WS}, {self.krow(s)*1280}",
                ("vm", f"buffer_load_dwordx4 v20, {SW}, s{S_A} offen lds", ("W", s))]]
        for i in range(1, 4):
            out.append([("vm", f"buffer_load_dwordx4 v{20+i}, {SW}, s{S_A} offen offset:{i*1024} lds", ("W", s))])
        out.append([f"s_add_u32 m0, s{S_WL}, {b + 4096}", "s_nop 0", ("vm", f"buffer_load_dwordx4 v24, {SW}, s{S_A} offen lds", ("W", s))])
        return out
    def cfr(self, s, ks, tb): return 16 * (s % 4) + 8 * ks + 4 * tb
    def ldC(self, s):
        out = []
        for ks in range(2):
            for tb in range(2):
                ld = ("vm", f"buffer_load_dwordx4 {ar(self.cfr(s,ks,tb),4)}, v{19 if tb else 25}, {self.G}, s{S_CS} offen offset:{((s&1)*2+ks)*1024} sc1", ("C", s))
                out.append(([f"s_mov_b32 s{S_CS}, {(self.krow(s) // 128) * 4096}"] if ks == 0 and tb == 0 else []) + [ld])
        return out
    def emit_item(self, it):
        for x in it:
            if isinstance(x, tuple): self.k.vmem(x[1], x[2])
            else: self.k.e(x)
    def setup(self):
        e = self.k.e
        e(f"""s_load_dwordx2 s[16:17], s[0:1], 40
s_and_b32 s{T0}, s2, 7
s_lshr_b32 s{S_KQ}, s{T0}, 1
s_lshr_b32 s{T1}, s2, 3
s_and_b32 s{S_RB}, s{T0}, 1
s_lshl_b32 s{S_RB}, s{S_RB}, 3
s_and_b32 s{T0}, s{T1}, 7
s_add_u32 s{S_RB}, s{S_RB}, s{T0}
s_lshr_b32 s{S_CB}, s{T1}, 3
s_lshl_b32 s{S_TILE}, s{S_RB}, 2
s_add_u32 s{S_TILE}, s{S_TILE}, s{S_CB}
s_lshl_b32 s{T0}, s{S_RB}, 3
s_lshl_b32 s{T1}, s{S_W}, 1
s_add_u32 s{T0}, s{T0}, s{T1}
s_lshl_b32 s{T0}, s{T0}, 17
s_lshl_b32 s{T1}, s{S_KQ}, 13
s_add_u32 s{T0}, s{T0}, s{T1}
s_add_u32 s{T0}, s{T0}, {hex(LY.CTX_OFF)}
v_add_u32 v25, s{T0}, v4
v_add_u32 v19, 0x20000, v25""")
        for i in range(5):
            e(f"""v_add_u32 v26, {64*i}, v1
v_mul_u32_u24 v27, 0xccd, v26
v_lshrrev_b32 v27, 16, v27
v_mul_u32_u24 v28, 20, v27
v_sub_u32 v28, v26, v28
v_bfe_u32 v29, v27, 2, 1
v_lshlrev_b32 v29, 1, v29
v_xor_b32 v28, v28, v29
v_mul_u32_u24 v27, 0x500, v27
v_lshl_add_u32 v{20+i}, v28, 4, v27""")
            if i & 3: e(f"v_subrev_u32 v{20+i}, {(i&3)*1024}, v{20+i}")
        e(f"""s_lshl_b32 s{S_WS}, s{S_KQ}, 8
s_lshl_b32 s{T0}, s{S_W}, 4
s_add_u32 s{S_WS}, s{S_WS}, s{T0}
s_mul_i32 s{S_WS}, s{S_WS}, 1280
s_mul_i32 s{T0}, s{S_CB}, 320
s_add_u32 s{S_WS}, s{S_WS}, s{T0}
s_mul_i32 s{S_WL}, s{S_W}, 5120
s_add_u32 s{S_WL}, s{S_WL}, {RB0}
s_mov_b32 s18, {4096*1280}
s_mov_b32 s19, 0x00020000
v_lshrrev_b32 v26, 5, v1
v_lshlrev_b32 v26, 4, v26
v_bfe_u32 v28, v1, 4, 1
v_lshl_add_u32 v26, v28, 2, v26
v_bfe_u32 v29, v1, 2, 2
v_add_u32 v26, v26, v29
v_mul_u32_u24 v26, 320, v26
v_and_b32 v29, 3, v1
v_lshl_add_u32 v26, v29, 3, v26
v_add_u32 v26, {RB0}, v26
v_lshlrev_b32 v28, 5, v28
v_sub_u32 v27, v26, v28
v_add_u32 v27, 32, v27
v_add_u32 v26, v26, v28
v_add_u32 v28, {2*STG}, v26
v_add_u32 v29, {2*STG}, v27""")
        e(f"""s_sub_u32 s{T0}, 15, s{S_RB}
s_min_u32 s{T0}, s{T0}, s{S_RB}
s_lshl_b32 s{T0}, s{T0}, 2
s_add_u32 s{T0}, s{T0}, s{S_KQ}
s_lshl_b32 s{T0}, s{T0}, 7
s_add_u32 s{T0}, s{T0}, {hex(LY.CF_OFF)}
v_min_u32 v18, 7, v1
v_lshlrev_b32 v18, 2, v18
v_add_u32 v18, s{T0}, v18""")
    def prefetchW(self):
        self.k.vm = []
        for s in range(3):
            for it in self.dmaW(s): self.emit_item(it)
    def gemm(self, hook):
        k, G, ST = self.k, self.G, self.ST
        e = k.e; L = k.L; M = f"s{self.S_M}"
        e(f"s_load_dwordx2 s[24:25], s[0:1], 0\ns_load_dwordx2 s[28:29], s[0:1], 104\ns_mov_b32 s{T1}, 0x100000")
        e(f"s_cmp_lg_u32 s{S_W}, 0\ns_cbranch_scc1 {L('cok')}")
        k.label("csp")
        e(f"""buffer_load_dword v30, v18, {G}, 0 offen sc1
s_waitcnt vmcnt(0)
v_cmp_ne_u32 vcc, 1, v30
s_sub_u32 s{T1}, s{T1}, 1
s_cmp_eq_u32 s{T1}, 0
s_cbranch_scc1 {L('cok')}
s_cbranch_vccz {L('cok')}
s_sleep 3
s_branch {L('csp')}""")
        k.label("cok")
        e("s_waitcnt vmcnt(0) lgkmcnt(0)")
        e(hook)
        e("s_barrier")
        k.vm = []
        ST("g0")
        for s in range(3):
            for it in self.ldC(s): self.emit_item(it)
        ACC = 32; WFR = 112
        XR, GR = 8, 2
        def reads(T):
            s, ks = T >> 1, T & 1
            slot = self.ps(s)
            out = []
            for nb in range(10):
                for h in range(2):
                    off = (slot & 1) * STG + ks * 10240 + h * 2560 + (nb & ~1) * 32
                    out.append([f"ds_read_b64_tr_b16 {vr(WFR+40*(T&1)+4*nb+2*h,2)}, v{26 + (nb & 1) + 2*(slot >> 1)} offset:{off}"])
            return out
        OWN = 0; YL = 20480
        XF = LY.FL_OFF + 4096
        for it in reads(0): self.emit_item(it)
        for T in range(32):
            s, ks = T >> 1, T & 1
            ld = []
            if ks == 1 and s < 15:
                w = k.wait_str(vmtags=[("W", s+1)] + (["yp"] if T == 27 else []))
                e((w + " lgkmcnt(0)") if w else "s_waitcnt lgkmcnt(0)")
                if T == 27:
                    e(f"""v_and_b32 v192, v192, v193
v_and_b32 v194, v194, v195
v_and_b32 v192, v192, v194
v_cmp_ne_u32 vcc, 1, v192
s_cbranch_vccnz {L('yspin')}""")
                    k.label("yok")
                e("s_barrier")
                if s + 4 < 16: ld += self.dmaW(s + 4)
            else:
                w = k.wait_str(vmtags=[("C", s)] + (["x"] if T == 30 else []))
                e((w + " lgkmcnt(0)") if w else "s_waitcnt lgkmcnt(0)")
                if ks == 0 and s + 3 < 16: ld += self.ldC(s + 3)
            if T == 0: ld = self.dmaW(3) + ld
            if T == 22:
                ld += [[x] for x in f"""v_min_u32 v7, 39, v1
v_lshlrev_b32 v7, 4, v7
s_mul_i32 s{T0}, s{S_CB}, 640
s_add_u32 s{T0}, s{T0}, {hex(LY.FL_OFF)}
v_add_u32 v7, s{T0}, v7""".split("\n")]
            if T == 24:
                ld.append([("vm", f"buffer_load_dwordx4 v[192:195], v7, {G}, 0 offen sc1", "yp")])
            if T == 25:
                ld += [[x] for x in f"""s_lshl_b32 s{S_R0}, s{S_RB}, 7
s_lshl_b32 s{T0}, s{S_KQ}, 5
s_add_u32 s{S_R0}, s{S_R0}, s{T0}
s_lshr_b32 s{T0}, s{S_W}, 1
s_lshl_b32 s{T0}, s{T0}, 4
s_add_u32 s{T0}, s{T0}, s{S_R0}
v_and_b32 v20, 15, v1
v_add_u32 v20, s{T0}, v20
v_lshlrev_b32 v21, 2, v20
v_mul_u32_u24 v20, 0x500, v20
v_lshrrev_b32 v22, 4, v1
v_lshlrev_b32 v22, 3, v22
s_and_b32 s{T0}, s{S_W}, 1
s_lshl_b32 s{T1}, s{S_CB}, 1
s_add_u32 s{T0}, s{T0}, s{T1}
s_mul_i32 s{T0}, s{T0}, 160
v_add3_u32 v20, v20, v22, s{T0}
s_mov_b32 s57, {hex(LY.G_OFF)}""".split("\n")]
            if T == 26:
                ld += [[f"s_mov_b32 s26, {2048*1280}", "s_mov_b32 s27, 0x00020000"], [f"s_mov_b32 s30, {2048*1280}", "s_mov_b32 s31, 0x00020000"]]
                for i in range(5):
                    ld.append([("vm", f"buffer_load_dwordx2 {vr(XR+2*i,2)}, v20, {SX}, 0 offen offset:{i*32}", "x")])
                ld.append([("vm", f"buffer_load_dword v{GR}, v21, {G}, s57 offen sc1", "x")])
            if T == 27:
                ld += [[x] for x in f"""v_lshrrev_b32 v5, 2, v1
v_mul_u32_u24 v5, {YROW}, v5
v_and_b32 v6, 3, v1
v_lshlrev_b32 v6, 3, v6
s_lshr_b32 s{T0}, s{S_W}, 1
s_lshl_b32 s{T0}, s{T0}, 5
s_and_b32 s{T1}, s{S_W}, 1
s_mul_i32 s{T1}, s{T1}, {80*YROW}
s_add_u32 s{T0}, s{T0}, s{T1}
s_add_u32 s{T0}, s{T0}, {YL}
v_add3_u32 v5, v5, v6, s{T0}
v_lshrrev_b32 v23, 2, v0
v_and_b32 v6, 3, v0
s_mul_i32 s{T0}, s{S_CB}, 160
v_add_u32 v22, s{T0}, v23
v_lshlrev_b32 v22, 12, v22
v_lshlrev_b32 v6, 4, v6
s_lshl_b32 s{T0}, s{S_R0}, 1
s_add_u32 s{T0}, s{T0}, {hex(LY.YT_OFF)}
v_add3_u32 v22, v22, v6, s{T0}
v_mul_u32_u24 v23, {YROW}, v23
v_add_u32 v23, v23, v6
v_add_u32 v23, {YL}, v23""".split("\n")]
            if T == 28:
                ld += [[x] for x in f"""s_mov_b32 s60, 0x40000
s_mov_b32 s61, 0x80000
s_lshl_b32 s{T1}, s{S_TILE}, 7
s_add_u32 s{T1}, s{T1}, {hex(XF)}
s_lshl_b32 s{T0}, s{S_KQ}, 2
s_add_u32 s{T0}, s{T0}, s{T1}
v_mov_b32 v24, s{T0}
v_mov_b32 v25, 1
v_min_u32 v19, 3, v1
v_lshlrev_b32 v19, 2, v19
v_add_u32 v19, s{T1}, v19
v_lshlrev_b32 v18, 3, v1
s_mul_i32 s{T0}, s{S_W}, 5120
v_add_u32 v21, s{T0}, v4""".split("\n")]
                for i in range(3):
                    ld.append([("vm", f"buffer_load_dwordx4 {vr(192+4*i,4)}, v22, {G}, {['0','s60','s61'][i]} offen sc1", "y")])
            if T == 29:
                ld += [[x] for x in f"""s_lshl_b32 s{T0}, s{S_TILE}, 2
s_add_u32 s55, s{T0}, s{S_W}
s_lshl_b32 s55, s55, 2
s_add_u32 s55, s55, s{S_KQ}
s_mul_i32 s55, s55, {XSZ}
s_add_u32 s55, s55, {hex(LY.XCH_OFF)}
s_add_u32 s54, s{T0}, s{S_KQ}
s_mul_i32 s54, s54, {4*XSZ}
s_mul_i32 s{T1}, s{S_W}, 2560
s_add_u32 s54, s54, s{T1}
s_add_u32 s54, s54, {hex(LY.XCH_OFF)}""".split("\n")]
                for i in range(3):
                    ld += [[f"s_add_u32 s{51+i}, s{S_KQ}, {i+1}", f"s_and_b32 s{51+i}, s{51+i}, 3"], [f"s_mul_i32 s{51+i}, s{51+i}, {XSZ}", f"s_add_u32 s{51+i}, s{51+i}, s54"]]
            ms = []
            for tb in range(2):
                for nb in range(10):
                    a = ACC + 4 * (tb*10 + nb)
                    ms.append(f"v_mfma_f32_16x16x32_bf16 {vr(a,4)}, {vr(WFR+40*(T&1)+4*nb,4)}, {ar(self.cfr(s,ks,tb),4)}, {'0' if T == 0 else vr(a,4)}")
            g1 = spread(20, reads(T+1), 0, 16) if T + 1 < 32 else {}
            g2 = spread(20, ld, 2, 20) if ld else {}
            for i, m in enumerate(ms):
                e(m)
                for it in g1.get(i, []): self.emit_item(it)
                for it in g2.get(i, []): self.emit_item(it)
        ST("g1")
        e(f"s_cmp_eq_u32 s{S_W}, s{S_KQ}\ns_cbranch_scc1 {L('own')}")
        for rw in range(4):
            t = WFR + 10 * rw
            for i in range(5):
                a = ACC + 4 * (5*rw + i)
                e(f"v_cvt_pk_bf16_f32 v{t+2*i}, v{a}, v{a+1}\nv_cvt_pk_bf16_f32 v{t+2*i+1}, v{a+2}, v{a+3}")
            e(f"buffer_store_dwordx4 {vr(t,4)}, v4, {G}, s55 offen sc1")
            e(f"buffer_store_dwordx4 {vr(t+4,4)}, v4, {G}, s55 offen offset:1024 sc1")
            e(f"buffer_store_dwordx2 {vr(t+8,2)}, v18, {G}, s55 offen offset:2048 sc1")
            e("s_add_u32 s55, s55, 2560")
        e(f"s_branch {L('sent')}")
        k.label("own")
        for b in range(20):
            e(f"ds_write_b128 v4, {vr(ACC+4*b,4)} offset:{OWN + b*1024}")
        k.label("sent")
        BX = 152
        e(f"v_sub_f32 v{GR+1}, 1.0, v{GR}\nv_cvt_pk_bf16_f32 v{GR+1}, v{GR+1}, v{GR+1}\nv_lshlrev_b32 v{GR+1}, 16, v{GR+1}")
        for i in range(5):
            t = BX + 4*i
            for d in range(2):
                e(f"v_lshlrev_b32 v{t+2*d}, 16, v{XR+2*i+d}\nv_and_b32 v{t+2*d+1}, {M}, v{XR+2*i+d}")
            for j in range(4): e(f"v_mul_f32 v{t+j}, v{GR+1}, v{t+j}")
        e("s_waitcnt vmcnt(0)")
        for i in range(3):
            e(f"ds_write_b128 v23, {vr(192+4*i,4)} offset:{i*64*YROW}")
        e("s_waitcnt lgkmcnt(0)")
        e(f"s_barrier\ns_cmp_lg_u32 s{S_W}, 0\ns_cbranch_scc1 {L('nxf')}\ns_mov_b64 exec, 1\nbuffer_store_dword v25, v24, {G}, 0 offen sc1\ns_mov_b64 exec, -1")
        k.label("nxf")
        ST("g2")
        P = 112; YY = 84; TT = 132
        for i in range(5):
            e(f"ds_read_b64_tr_b16 {vr(YY+2*i,2)}, v5 offset:{i*16*YROW}")
        for i in range(5):
            e(f"ds_read_b128 {vr(P+4*i,4)}, v21 offset:{OWN + i*1024}")
        e("s_waitcnt lgkmcnt(5)")
        for i in range(5):
            t = BX + 4*i; u = TT + 4*i
            for d in range(2):
                e(f"v_lshlrev_b32 v{u+2*d}, 16, v{YY+2*i+d}\nv_and_b32 v{u+2*d+1}, {M}, v{YY+2*i+d}")
            for d in range(2): e(f"v_pk_mul_f32 {vr(t+2*d,2)}, {vr(t+2*d,2)}, {vr(u+2*d,2)}")
        e(f"s_mov_b32 s{T1}, 0x100000")
        k.label("xsp")
        e(f"""buffer_load_dword v10, v19, {G}, 0 offen sc1
s_waitcnt vmcnt(0)
v_cmp_ne_u32 vcc, 1, v10
s_sub_u32 s{T1}, s{T1}, 1
s_cmp_eq_u32 s{T1}, 0
s_cbranch_scc1 {L('xok')}
s_cbranch_vccz {L('xok')}
s_sleep 2
s_branch {L('xsp')}""")
        k.label("xok")
        ST("g3")
        R = 48
        for s in range(3):
            r = R + 12*s
            e(f"buffer_load_dwordx4 {vr(r,4)}, v4, {G}, s{51+s} offen sc1")
            e(f"buffer_load_dwordx4 {vr(r+4,4)}, v4, {G}, s{51+s} offen offset:1024 sc1")
            e(f"buffer_load_dwordx2 {vr(r+8,2)}, v18, {G}, s{51+s} offen offset:2048 sc1")
        e("s_waitcnt lgkmcnt(0)")
        for s in range(3):
            e(f"s_waitcnt vmcnt({6 - 3*s})")
            for i in range(5):
                p = P + 4*i; t = BX + 4*i; u = TT + 4*i; r = R + 12*s + 2*i
                for d in range(2):
                    e(f"v_lshlrev_b32 v{u+2*d}, 16, v{r+d}\nv_and_b32 v{u+2*d+1}, {M}, v{r+d}")
                for d in range(2): e(f"v_pk_add_f32 {vr(p+2*d,2)}, {vr(p+2*d,2)}, {vr(u+2*d,2)}")
                if s == 2:
                    for j in range(4): e(f"v_fmac_f32 v{t+j}, v{GR}, v{p+j}")
                    e(f"v_cvt_pk_bf16_f32 v{u}, v{t}, v{t+1}\nv_cvt_pk_bf16_f32 v{u+1}, v{t+2}, v{t+3}")
                    e(f"buffer_store_dwordx2 {vr(u,2)}, v20, {SO}, 0 offen offset:{i*32}")
    def outofline(self):
        k, G = self.k, self.G; e = k.e; L = k.L
        k.label("yspin")
        e(f"s_mov_b32 s{T1}, 0x100000")
        k.label("yspl")
        e(f"""s_sleep 4
buffer_load_dwordx4 v[192:195], v7, {G}, 0 offen sc1
s_waitcnt vmcnt(0)
v_and_b32 v192, v192, v193
v_and_b32 v194, v194, v195
v_and_b32 v192, v192, v194
v_cmp_ne_u32 vcc, 1, v192
s_sub_u32 s{T1}, s{T1}, 1
s_cmp_eq_u32 s{T1}, 0
s_cbranch_scc1 {L('yok')}
s_cbranch_vccnz {L('yspl')}
s_branch {L('yok')}""")
```

```python
from asmlib import *
import layout as LY
import struct, sys, os
EXP = [a for a in sys.argv if a.startswith('x_')]
CS = 4160; UB = 4 * CS; CH = 21504
STG = 20480; NSLOT = 4
YROW = 80
LDSZ = NSLOT * STG
NCV = 214
S_W, S_RB, S_CB, S_KQ, S_TILE = 44, 45, 46, 47, 43
XSZ = 10240

def gen_out():
    k = Kern("out_kernel", 256, 192, 96, 256, 256, LDSZ)
    e = k.e; L = k.L
    k.stamp_base = 64
    e(f"s_cmp_ge_u32 s2, 256\ns_cbranch_scc1 {L('end')}")
    k.stamp(0)
    e(f"""s_load_dwordx2 s[14:15], s[0:1], 120
s_load_dwordx2 s[4:5], s[0:1], 40
s_load_dwordx2 s[6:7], s[0:1], 0
s_load_dwordx2 s[8:9], s[0:1], 104
v_lshrrev_b32 v2, 6, v0
v_and_b32 v1, 63, v0
v_lshlrev_b32 v4, 4, v1
v_readfirstlane_b32 s{S_W}, v2
s_and_b32 s3, s2, 7
s_lshr_b32 s{S_KQ}, s3, 1
s_lshr_b32 s48, s2, 3
s_and_b32 s{S_RB}, s3, 1
s_lshl_b32 s{S_RB}, s{S_RB}, 3
s_and_b32 s49, s48, 7
s_add_u32 s{S_RB}, s{S_RB}, s49
s_lshr_b32 s{S_CB}, s48, 3
s_lshl_b32 s{S_TILE}, s{S_RB}, 2
s_add_u32 s{S_TILE}, s{S_TILE}, s{S_CB}
s_lshl_b32 s3, s{S_RB}, 3
s_lshl_b32 s48, s{S_W}, 1
s_add_u32 s3, s3, s48
s_lshl_b32 s3, s3, 17
s_lshl_b32 s48, s{S_KQ}, 13
s_add_u32 s3, s3, s48
s_add_u32 s3, s3, {hex(LY.CTX_OFF)}
v_add_u32 v25, s3, v4
v_add_u32 v19, 0x20000, v25""")
    for i in range(5):
        e(f"""v_add_u32 v26, {64*i}, v1
v_mul_u32_u24 v27, 0xccd, v26
v_lshrrev_b32 v27, 16, v27
v_mul_u32_u24 v28, 20, v27
v_sub_u32 v28, v26, v28
v_bfe_u32 v29, v27, 2, 1
v_lshlrev_b32 v29, 1, v29
v_xor_b32 v28, v28, v29
v_mul_u32_u24 v27, 0x500, v27
v_lshl_add_u32 v{20+i}, v28, 4, v27""")
        if i & 3: e(f"v_subrev_u32 v{20+i}, {(i&3)*1024}, v{20+i}")
    def krow(s): return (((s >> 1) & 1) + 8 * (s >> 2)) * 128 + (s & 1) * 64
    e(f"""s_lshl_b32 s52, s{S_KQ}, 8
s_lshl_b32 s3, s{S_W}, 4
s_add_u32 s52, s52, s3
s_mul_i32 s52, s52, 1280
s_mul_i32 s3, s{S_CB}, 320
s_add_u32 s52, s52, s3
s_mul_i32 s53, s{S_W}, 5120
s_mov_b32 s63, 0xffff0000
s_waitcnt lgkmcnt(0)""")
    k.srd(16, 4, 4096 * 1280)
    k.srd(20, 14, 80 << 20)
    G = "s[20:23]"
    def dmaW(s):
        slot = s % NSLOT
        out = [[f"s_add_u32 m0, s53, {slot*STG}", f"s_add_u32 s55, s52, {krow(s)*1280}",
                ("vm", "buffer_load_dwordx4 v20, s[16:19], s55 offen lds", ("W", s))]]
        for i in range(1, 4):
            out.append([("vm", f"buffer_load_dwordx4 v{20+i}, s[16:19], s55 offen offset:{i*1024} lds", ("W", s))])
        out.append([f"s_add_u32 m0, s53, {slot*STG + 4096}", "s_nop 0", ("vm", "buffer_load_dwordx4 v24, s[16:19], s55 offen lds", ("W", s))])
        return out
    def cfr(s, ks, tb): return 16 * (s % 4) + 8 * ks + 4 * tb
    def ldC(s):
        out = []
        for ks in range(2):
            for tb in range(2):
                ld = ("vm", f"buffer_load_dwordx4 {ar(cfr(s,ks,tb),4)}, v{19 if tb else 25}, {G}, s54 offen offset:{((s&1)*2+ks)*1024}", ("C", s))
                out.append(([f"s_mov_b32 s54, {(krow(s) // 128) * 4096}"] if ks == 0 and tb == 0 else []) + [ld])
        return out
    def emit_item(it):
        for x in it:
            if isinstance(x, tuple): k.vmem(x[1], x[2])
            else: e(x)
    for s in range(2):
        for it in dmaW(s) + ldC(s): emit_item(it)
    e(f"""v_lshrrev_b32 v26, 5, v1
v_lshlrev_b32 v26, 4, v26
v_bfe_u32 v28, v1, 4, 1
v_lshl_add_u32 v26, v28, 2, v26
v_bfe_u32 v29, v1, 2, 2
v_add_u32 v26, v26, v29
v_mul_u32_u24 v26, 320, v26
v_and_b32 v29, 3, v1
v_lshl_add_u32 v26, v29, 3, v26
v_lshlrev_b32 v28, 5, v28
v_sub_u32 v27, v26, v28
v_add_u32 v27, 32, v27
v_add_u32 v26, v26, v28
v_add_u32 v28, {2*STG}, v26
v_add_u32 v29, {2*STG}, v27""")
    for it in dmaW(2) + ldC(2): emit_item(it)
    k.wait(vmtags=[("W", 0)])
    e("s_barrier")
    k.stamp(1)
    ACC = 32; WFR = 112
    XR, GR = 8, 2
    def reads(T):
        s, ks = T >> 1, T & 1
        slot = s % NSLOT
        out = []
        for nb in range(10):
            for h in range(2):
                off = (slot & 1) * STG + ks * 10240 + h * 2560 + (nb & ~1) * 32
                out.append([f"ds_read_b64_tr_b16 {vr(WFR+40*(T&1)+4*nb+2*h,2)}, v{26 + (nb & 1) + 2*(slot >> 1)} offset:{off}"])
        return out
    OWN = 0; YL = STG
    XF = LY.FL_OFF + 4096
    for it in reads(0): emit_item(it)
    for T in range(32):
        s, ks = T >> 1, T & 1
        ld = []
        if ks == 1 and s < 15:
            w = k.wait_str(vmtags=[("W", s+1)])
            e((w + " lgkmcnt(0)") if w else "s_waitcnt lgkmcnt(0)")
            e("s_barrier")
            if s + 4 < 16: ld += dmaW(s + 4)
        else:
            w = k.wait_str(vmtags=[("C", s)] + (["x"] if T == 30 else []))
            e((w + " lgkmcnt(0)") if w else "s_waitcnt lgkmcnt(0)")
            if ks == 0 and s + 3 < 16: ld += ldC(s + 3)
        if T == 0: ld = dmaW(3) + ld
        if T == 25:
            ld += [[x] for x in f"""s_lshl_b32 s48, s{S_RB}, 7
s_lshl_b32 s3, s{S_KQ}, 5
s_add_u32 s48, s48, s3
s_lshr_b32 s3, s{S_W}, 1
s_lshl_b32 s3, s3, 4
s_add_u32 s3, s3, s48
v_and_b32 v20, 15, v1
v_add_u32 v20, s3, v20
v_lshlrev_b32 v21, 2, v20
v_mul_u32_u24 v20, 0x500, v20
v_lshrrev_b32 v22, 4, v1
v_lshlrev_b32 v22, 3, v22
s_and_b32 s3, s{S_W}, 1
s_lshl_b32 s56, s{S_CB}, 1
s_add_u32 s3, s3, s56
s_mul_i32 s3, s3, 160
v_add3_u32 v20, v20, v22, s3
s_mov_b32 s57, {hex(LY.G_OFF)}""".split("\n")]
        if T == 26:
            ld += [["s_mov_b32 s24, s6", "s_mov_b32 s25, s7"], [f"s_mov_b32 s26, {2048*1280}", "s_mov_b32 s27, 0x00020000"],
                   ["s_mov_b32 s28, s8", "s_mov_b32 s29, s9"], [f"s_mov_b32 s30, {2048*1280}", "s_mov_b32 s31, 0x00020000"]]
            for i in range(5):
                ld.append([("vm", f"buffer_load_dwordx2 {vr(XR+2*i,2)}, v20, s[24:27], 0 offen offset:{i*32}", "x")])
            ld.append([("vm", f"buffer_load_dword v{GR}, v21, {G}, s57 offen", "x")])
        if T == 27:
            ld += [[x] for x in f"""v_lshrrev_b32 v5, 2, v1
v_mul_u32_u24 v5, {YROW}, v5
v_and_b32 v6, 3, v1
v_lshlrev_b32 v6, 3, v6
s_lshr_b32 s50, s{S_W}, 1
s_lshl_b32 s50, s50, 5
s_and_b32 s51, s{S_W}, 1
s_mul_i32 s51, s51, {80*YROW}
s_add_u32 s50, s50, s51
s_add_u32 s50, s50, {YL}
v_add3_u32 v5, v5, v6, s50
v_lshrrev_b32 v23, 2, v0
v_and_b32 v6, 3, v0
s_mul_i32 s3, s{S_CB}, 160
v_add_u32 v22, s3, v23
v_lshlrev_b32 v22, 12, v22
v_lshlrev_b32 v6, 4, v6
s_lshl_b32 s3, s48, 1
s_add_u32 s3, s3, {hex(LY.YT_OFF)}
v_add3_u32 v22, v22, v6, s3
v_mul_u32_u24 v23, {YROW}, v23
v_add_u32 v23, v23, v6
v_add_u32 v23, {YL}, v23""".split("\n")]
        if T == 28:
            ld += [[x] for x in f"""s_mov_b32 s60, 0x40000
s_mov_b32 s61, 0x80000
v_min_u32 v7, 39, v1
v_lshlrev_b32 v7, 4, v7
s_lshl_b32 s3, s{S_CB}, 10
s_add_u32 s3, s3, {hex(LY.FL_OFF)}
v_add_u32 v7, s3, v7
s_lshl_b32 s49, s{S_TILE}, 7
s_add_u32 s49, s49, {hex(XF)}
s_lshl_b32 s50, s{S_KQ}, 2
s_add_u32 s50, s50, s49
v_mov_b32 v24, s50
v_mov_b32 v25, 1
v_min_u32 v19, 3, v1
v_lshlrev_b32 v19, 2, v19
v_add_u32 v19, s49, v19
v_lshlrev_b32 v18, 3, v1
s_mul_i32 s50, s{S_W}, 5120
v_add_u32 v21, s50, v4""".split("\n")]
        if T == 29:
            ld += [[x] for x in f"""s_lshl_b32 s3, s{S_TILE}, 2
s_add_u32 s55, s3, s{S_W}
s_lshl_b32 s55, s55, 2
s_add_u32 s55, s55, s{S_KQ}
s_mul_i32 s55, s55, {XSZ}
s_add_u32 s55, s55, {hex(LY.XCH_OFF)}
s_add_u32 s54, s3, s{S_KQ}
s_mul_i32 s54, s54, {4*XSZ}
s_mul_i32 s50, s{S_W}, 2560
s_add_u32 s54, s54, s50
s_add_u32 s54, s54, {hex(LY.XCH_OFF)}""".split("\n")]
            for i in range(3):
                ld += [[f"s_add_u32 s{56+i}, s{S_KQ}, {i+1}", f"s_and_b32 s{56+i}, s{56+i}, 3"], [f"s_mul_i32 s{56+i}, s{56+i}, {XSZ}", f"s_add_u32 s{56+i}, s{56+i}, s54"]]
        if T == 29:
            for i in range(3):
                ld.append([("vm", f"buffer_load_dwordx4 {ar(4*i,4)}, v22, {G}, {['0','s60','s61'][i]} offen", "y")])
        ms = []
        for tb in range(2):
            for nb in range(10):
                a = ACC + 4 * (tb*10 + nb)
                ms.append(f"v_mfma_f32_16x16x32_bf16 {vr(a,4)}, {vr(WFR+40*(T&1)+4*nb,4)}, {ar(cfr(s,ks,tb),4)}, {'0' if T == 0 else vr(a,4)}")
        g1 = spread(20, reads(T+1), 0, 16) if T + 1 < 32 else {}
        g2 = spread(20, ld, 2, 20) if ld else {}
        for i, m in enumerate(ms):
            e(m)
            for it in g1.get(i, []): emit_item(it)
            for it in g2.get(i, []): emit_item(it)
        if T == 16: k.stamp(2)
    k.stamp(3)
    e(f"s_cmp_eq_u32 s{S_W}, s{S_KQ}\ns_cbranch_scc1 {L('own')}")
    for rw in range(4):
        t = WFR + 10 * rw
        for i in range(5):
            a = ACC + 4 * (5*rw + i)
            e(f"v_cvt_pk_bf16_f32 v{t+2*i}, v{a}, v{a+1}\nv_cvt_pk_bf16_f32 v{t+2*i+1}, v{a+2}, v{a+3}")
        e(f"buffer_store_dwordx4 {vr(t,4)}, v4, {G}, s55 offen sc1")
        e(f"buffer_store_dwordx4 {vr(t+4,4)}, v4, {G}, s55 offen offset:1024 sc1")
        e(f"buffer_store_dwordx2 {vr(t+8,2)}, v18, {G}, s55 offen offset:2048 sc1")
        e("s_add_u32 s55, s55, 2560")
    e(f"s_branch {L('sent')}")
    k.label("own")
    for b in range(20):
        e(f"ds_write_b128 v4, {vr(ACC+4*b,4)} offset:{OWN + b*1024}")
    k.label("sent")
    BX = 152
    e(f"v_sub_f32 v{GR+1}, 1.0, v{GR}\nv_cvt_pk_bf16_f32 v{GR+1}, v{GR+1}, v{GR+1}\nv_lshlrev_b32 v{GR+1}, 16, v{GR+1}")
    for i in range(5):
        t = BX + 4*i
        for d in range(2):
            e(f"v_lshlrev_b32 v{t+2*d}, 16, v{XR+2*i+d}\nv_and_b32 v{t+2*d+1}, s63, v{XR+2*i+d}")
        for j in range(4): e(f"v_mul_f32 v{t+j}, v{GR+1}, v{t+j}")
    e("s_waitcnt vmcnt(0)")
    for i in range(3):
        e(f"ds_write_b128 v23, {ar(4*i,4)} offset:{i*64*YROW}")
    e("s_waitcnt lgkmcnt(0)")
    e(f"s_barrier\ns_cmp_lg_u32 s{S_W}, 0\ns_cbranch_scc1 {L('nxf')}\ns_mov_b64 exec, 1\nbuffer_store_dword v25, v24, {G}, 0 offen sc1\ns_mov_b64 exec, -1")
    k.label("nxf")
    k.stamp(4)
    P = 112; YY = 84; TT = 132
    for i in range(5):
        e(f"ds_read_b64_tr_b16 {vr(YY+2*i,2)}, v5 offset:{i*16*YROW}")
    for i in range(5):
        e(f"ds_read_b128 {vr(P+4*i,4)}, v21 offset:{OWN + i*1024}")
    e("s_waitcnt lgkmcnt(5)")
    for i in range(5):
        t = BX + 4*i; u = TT + 4*i
        for d in range(2):
            e(f"v_lshlrev_b32 v{u+2*d}, 16, v{YY+2*i+d}\nv_and_b32 v{u+2*d+1}, s63, v{YY+2*i+d}")
        for d in range(2): e(f"v_pk_mul_f32 {vr(t+2*d,2)}, {vr(t+2*d,2)}, {vr(u+2*d,2)}")
    e("s_mov_b32 s51, 0x100000")
    k.label("xsp")
    e(f"""buffer_load_dword v10, v19, {G}, 0 offen sc1
s_waitcnt vmcnt(0)
v_cmp_ne_u32 vcc, 1, v10
s_sub_u32 s51, s51, 1
s_cmp_eq_u32 s51, 0
s_cbranch_scc1 {L('xok')}
s_cbranch_vccnz {L('xsp')}""")
    k.label("xok")
    k.stamp(5)
    R = 48
    for s in range(3):
        r = R + 12*s
        e(f"buffer_load_dwordx4 {vr(r,4)}, v4, {G}, s{56+s} offen sc1")
        e(f"buffer_load_dwordx4 {vr(r+4,4)}, v4, {G}, s{56+s} offen offset:1024 sc1")
        e(f"buffer_load_dwordx2 {vr(r+8,2)}, v18, {G}, s{56+s} offen offset:2048 sc1")
    e("s_waitcnt lgkmcnt(0)")
    for s in range(3):
        e(f"s_waitcnt vmcnt({6 - 3*s})")
        for i in range(5):
            p = P + 4*i; t = BX + 4*i; u = TT + 4*i; r = R + 12*s + 2*i
            for d in range(2):
                e(f"v_lshlrev_b32 v{u+2*d}, 16, v{r+d}\nv_and_b32 v{u+2*d+1}, s63, v{r+d}")
            for d in range(2): e(f"v_pk_add_f32 {vr(p+2*d,2)}, {vr(p+2*d,2)}, {vr(u+2*d,2)}")
            if s == 2:
                for j in range(4): e(f"v_fmac_f32 v{t+j}, v{GR}, v{p+j}")
                e(f"v_cvt_pk_bf16_f32 v{u}, v{t}, v{t+1}\nv_cvt_pk_bf16_f32 v{u+1}, v{t+2}, v{t+3}")
                e(f"buffer_store_dwordx2 {vr(u,2)}, v20, s[28:31], 0 offen offset:{i*32}")
    if Kern.STAMP: e("s_waitcnt vmcnt(0)")
    k.stamp(6)
    k.stamp_flush(14, LY.STAMP_OFF + 65536 * getattr(gen_out, "idx", 0), 2)
    k.label("end")
    e("s_endpgm")
    return k
```

```python
from asmlib import *
import layout as LY
import prep_streams as PS
import struct, sys, os
EXP = [a for a in sys.argv if a.startswith('x_')]
SMAP = dict(x.split("=") for x in os.environ.get("SMAP", "start=0,attn=1,tail=2,end=3").split(","))

def f32bits(x):
    return "0x%08x" % struct.unpack("<I", struct.pack("<f", x))[0]

P_X, P_C, P_WQ, P_WK, P_WV, P_WO = 4, 6, 8, 10, 12, 14
SRD_X, SRD_C, SRD_WQ, SRD_WKV, SRD_T, SRD_G = 16, 20, 24, 28, 36, 40
S_CA, S_CB, S_XA, S_XB = 32, 33, 34, 35
S_W, S_W4K, S_H, S_P = 44, 45, 46, 47
S_WBK, S_WBQ, S_M, S_G0 = 48, 49, 50, 51
P_K, P_V, P_SH = 52, 54, 56
S_T0, S_T1, S_T2 = 58, 59, 3
S_SO = 60
S_SCALE, S_DS = 64, 65
P_GW, P_DBG, P_WS = 68, 72, 74
S_PFI, S_XSH = 76, 77
STAMPB = 86
TK, TV, TW, TS = 4, 8, 12, 20
SRD_K, SRD_V = 28, 32
S_N1, S_J, S_KA, S_KB, S_KOFF, S_VOFF, S_DB = 48, 49, 51, 52, 53, 54, 55
S_RX, S_RY, S_KX, S_WODD, S_HB = 56, 57, 66, 67, 68
S_FC, S_FB, S_N1M3, S_CTXB = 69, 70, 71, 76
S_N1M2, S_KX2 = 64, 77
MASKP = [4, 6, 8, 10, 12, 14, 16, 18, 20, 22, 24, 26, 36, 38, 60, 62]
OX, OY, QX, QY, VF = 0, 64, 128, 160, 192
KF, SX, SY, PX, PY, NX, NY = 192, 128, 160, 96, 112, 64, 80
V_D0 = 4
V_KA, V_VA, V_CTX, V_NP = 8, 9, 10, 11
V_LX, V_LY, V_LB, V_BIG = 12, 13, 14, 15
V_LT, V_M, V_T, V_X, V_E = 16, 18, 20, 24, 32
V_DBG, V_POLL = 2, 3
QL, QLB = 131072, 98304
THR = f32bits(65536.0)
WSB = 80 << 20

NTQ = " nt" if "x_ntq" in EXP else ""
NTK = " nt" if "x_ntk" in EXP else ""
NTC = " sc1"
KVS = "" if "x_nosc1" in EXP else " sc1"
KVST = "" if "x_kvplain" in EXP else " sc1"
HPAD = int(os.environ.get("HPAD", "0"))
def gen_main():
    k = Kern("main_kernel", 512, 256, 102, 256, 256, 163840)
    e = k.e; L = k.L
    k.stamp_base = STAMPB
    G = f"s[{SRD_G}:{SRD_G+3}]"
    def ST(name):
        if name in SMAP: k.stamp(int(SMAP[name]))
    e(f"s_cmp_ge_u32 s2, 256\ns_cbranch_scc1 {L('end')}")
    ST("start")
    e(f"s_getpc_b64 s[{SRD_T}:{SRD_T+1}]")
    k.label("pc")
    e(f"""s_sub_u32 s{SRD_T}, s{SRD_T}, {L('pc')}-main_kernel
s_subb_u32 s{SRD_T+1}, s{SRD_T+1}, 0
s_mov_b32 s{SRD_T+2}, all_code_end-main_kernel
s_mov_b32 s{SRD_T+3}, 0x00020000
s_lshr_b32 s{S_T0}, s2, 3
s_lshl_b32 s{S_T0}, s{S_T0}, 12
v_lshlrev_b32 v16, 4, v0""")
    k.vmem(f"buffer_load_dwordx4 v[20:23], v16, s[{SRD_T}:{SRD_T+3}], s{S_T0} offen", "t")
    e(f"""s_load_dwordx8 s[4:11], s[0:1], 0
s_load_dwordx4 s[12:15], s[0:1], 32
s_load_dwordx4 s[80:83], s[0:1], 56
s_load_dwordx2 s[78:79], s[0:1], 72
s_load_dwordx2 s[84:85], s[0:1], 112
s_load_dwordx8 s[68:75], s[0:1], 96
v_lshrrev_b32 v2, 6, v0
v_and_b32 v1, 63, v0
s_and_b32 s{S_H}, s2, 7
v_readfirstlane_b32 s{S_W}, v2
s_lshr_b32 s{S_T0}, s2, 6
s_lshl_b32 s{S_T0}, s{S_T0}, 3
s_add_u32 s{S_H}, s{S_H}, s{S_T0}
s_lshr_b32 s{S_P}, s2, 3
s_and_b32 s{S_P}, s{S_P}, 7
s_lshl_b32 s{S_W4K}, s{S_W}, 12
s_sub_u32 s{S_T0}, 15, s{S_P}
s_lshl_b32 s{S_CA}, s{S_T0}, 17
s_lshl_b32 s{S_CB}, s{S_P}, 17
s_mul_i32 s{S_XA}, s{S_T0}, {128*1280}
s_mul_i32 s{S_XB}, s{S_P}, {128*1280}
s_and_b32 s{S_WBK}, s{S_W}, 1
s_lshl_b32 s{S_WBK}, s{S_WBK}, 17
s_lshl_b32 s{S_WBQ}, s{S_W}, 17""")
    VC = [80, 81, 82, 83] if "k" in os.environ.get("SEQ", "") else [24, 25, 30, 31]; VX = [4, 5, 19, 26]; VW = [6, 27, 28, 29]
    e(f"""s_lshl_b32 s{S_T1}, s{S_W}, 5
v_lshrrev_b32 v2, 3, v1
v_and_b32 v3, 7, v1
v_xor_b32 v3, v3, v2
v_lshlrev_b32 v11, 4, v3
v_add_u32 v7, s{S_T1}, v2
v_lshl_add_u32 v{VC[0]}, v7, 10, v11
v_mul_u32_u24 v{VX[0]}, 0x500, v7
v_add_u32 v{VX[0]}, v{VX[0]}, v11""")
    for i in range(1, 4):
        e(f"v_add_u32 v{VC[i]}, {i*(8192-1024)}, v{VC[0]}")
    e(f"""v_and_b32 v2, 15, v1
v_lshrrev_b32 v3, 4, v1
v_lshrrev_b32 v7, 1, v2
v_xor_b32 v7, v7, v3
v_lshlrev_b32 v7, 1, v7
v_and_b32 v8, 1, v2
v_or_b32 v7, v7, v8
v_lshlrev_b32 v7, 4, v7
v_lshl_add_u32 v7, v3, 13, v7
s_lshl_b32 s{S_T1}, s{S_H}, 8
v_add_u32 v{VW[0]}, s{S_T1}, v7
v_add_u32 v{VW[1]}, {32768-1024}, v{VW[0]}
v_xor_b32 v{VW[2]}, 0x80, v{VW[0]}
v_add_u32 v{VW[2]}, {2*(32768-1024)}, v{VW[2]}
v_add_u32 v{VW[3]}, {32768-1024}, v{VW[2]}
s_cmp_lt_u32 s{S_W}, 2
s_waitcnt lgkmcnt(0)
s_cselect_b32 s{SRD_WKV}, s{P_WK}, s{P_WV}
s_cselect_b32 s{SRD_WKV+1}, s{P_WK+1}, s{P_WV+1}
s_mov_b32 s{SRD_WKV+2}, {hex(512*8192)}
s_mov_b32 s{SRD_WKV+3}, 0x00020000""")
    k.srd(SRD_C, P_C, 2048*1024)
    SRD_WV2 = 52
    if "k" in os.environ.get("SEQ", ""):
        k.srd(SRD_WKV, P_WK, 512*8192); k.srd(SRD_WV2, P_WV, 512*8192)

    SEQ = os.environ.get("SEQ", "KKKKKKKKQQQQQQQQQQ")
    NT = 2 * len(SEQ)
    SPLIT = "k" in SEQ
    xb, wb = [], []
    kind = []; cnt = {}
    for i, ch in enumerate(SEQ):
        n = cnt.get(ch, 0); cnt[ch] = n + 1
        if ch == "K":
            xb.append(dict(kind="xc", k0=64*n, first=2*i, last=2*i+1))
            wb.append(dict(kind="wkv", k0=64*n, first=2*i, last=2*i))
            wb.append(dict(kind="wkv", k0=64*n+32, first=2*i+1, last=2*i+1))
        elif ch == "Q":
            xb.append(dict(kind="xx", k0=64*n, first=2*i, last=2*i+1))
            wb.append(dict(kind="wq", k0=64*n, first=2*i, last=2*i+1))
        else:
            xb.append(dict(kind="xc", k0=64*n, first=2*i, last=2*i+1))
            wb.append(dict(kind="w" + ch, k0=64*n, first=2*i, last=2*i+1))
        kind += [ch, ch]
    TQ0 = kind.index("Q")
    after = lambda ch: NT - kind[::-1].index(ch)
    TE0 = after("k") if SPLIT else after("K")
    TP = NT - 3
    xs_ = [131072, 98304, 65536]; ws_ = [16384, 49152, 0, 32768]
    for i, b in enumerate(xb):
        b["R"] = xs_[(len(xb) - 1 - i) % 3]; b["prev"] = xb[i-3] if i >= 3 else None; b["id"] = ("x", i)
    for i, b in enumerate(wb):
        b["R"] = ws_[(len(wb) - 1 - i) % 4]; b["prev"] = wb[i-4] if i >= 4 else None; b["id"] = ("w", i)
    order = sorted(xb + wb, key=lambda b: (b["first"], b["kind"][0] != "x"))
    def find(T, lst):
        for b in lst:
            if b["first"] <= T <= b["last"]: return b
    def dma_list(b):
        R = b["R"]; out = []
        def grp(ldsoff, sbase, sadd, vos, srd):
            for i in range(4):
                ld = ("vm", f"buffer_load_dwordx4 v{vos[i]}, s[{srd}:{srd+3}], s{S_DS} offen offset:{i*1024}{NTQ if srd in (SRD_X, SRD_WQ) else NTK} lds", b["id"])
                if i == 0: out.append([f"s_add_u32 m0, s{S_W4K}, {ldsoff}", f"s_add_u32 s{S_DS}, s{sbase}, {sadd}", ld])
                else: out.append([ld])
        kd = b["kind"]
        if kd == "xc":
            grp(R, S_CA, b["k0"]*2, VC, SRD_C); grp(R + 16384, S_CB, b["k0"]*2, VC, SRD_C)
        elif kd == "xx":
            grp(R, S_XA, b["k0"]*2, VX, SRD_X); grp(R + 16384, S_XB, b["k0"]*2, VX, SRD_X)
        elif kd == "wkv":
            grp(R, S_WBK, b["k0"]*8192, VW, SRD_WKV)
        elif kd == "wk":
            grp(R, S_WBQ, b["k0"]*8192, VW, SRD_WKV)
        elif kd == "wv":
            grp(R, S_WBQ, b["k0"]*8192, VW, SRD_WV2)
        else:
            grp(R, S_WBQ, b["k0"]*8192, VW, SRD_WQ)
        return out
    def emit_item(it):
        for x in it:
            if isinstance(x, tuple):
                if x[0] == "vm": k.vmem(x[1], x[2])
                elif x[0] == "lg": k.lds_op(x[1], x[2])
                elif x[0] == "wait": k.wait(vmtags=(x[1],))
                elif x[0] == "label": k.label(x[1])
            else:
                e(x)
    pend = list(order)
    def issue_ready(T):
        out = []
        for b in list(pend):
            if b["prev"] is None or b["prev"]["last"] <= T:
                out += dma_list(b); pend.remove(b)
        return out
    pro = issue_ready(-1)
    N0, N1 = 16, 32
    for it in pro[:N0]: emit_item(it)
    pro_b = pro[N0:N1]; pro_c = pro[N1:]
    k.srd(SRD_X, P_X, 2048*1280)
    k.srd(SRD_WQ, P_WQ, 640*8192)
    k.srd(SRD_T, P_GW, 1280)
    k.srd(SRD_G, P_WS, WSB)
    for i in range(1, 4):
        e(f"v_add_u32 v{VX[i]}, {i*(10240-1024)}, v{VX[0]}")
    e(f"""s_lshl_b32 s{S_PFI}, s2, 2
s_add_u32 s{S_PFI}, s{S_PFI}, s{S_W}
s_mov_b32 s{S_M}, 0xffff0000""")
    S_PF = S_XSH
    def pf(srd, pre, offs):
        out = [[x.replace(f"s{S_G0},", f"s{S_PF},") for x in pre]]
        for o in offs:
            it = [f"s_add_u32 s{S_PF}, s{S_PF}, 4096"] if o == 4096 else []
            out.append(it + [("vm", f"buffer_load_dwordx4 v[20:23], v2, s[{srd}:{srd+3}], s{S_PF} offen offset:{o & 4095}", "t")])
        return out
    pf1 = pf(SRD_C, [f"s_mul_i32 s{S_G0}, s{S_PFI}, 2048"], [0, 1024])
    pf1 += pf(SRD_WKV, [f"s_lshl_b32 s{S_G0}, s2, 14", f"s_lshr_b32 s{S_T0}, s{S_WBK}, 4", f"s_add_u32 s{S_G0}, s{S_G0}, s{S_T0}"], [i*1024 for i in range(8)])
    pf2 = pf(SRD_X, [f"s_mul_i32 s{S_G0}, s{S_PFI}, 2560"], [0, 1024, 1536]) + pf(SRD_WQ, [f"s_mul_i32 s{S_G0}, s{S_PFI}, 5120"], [0, 1024, 2048, 3072, 4096])
    zeroflag = [[f"""s_lshl_b32 s{S_T0}, s{S_H}, 7
s_lshl_b32 s{S_T1}, s{S_P}, 2
s_add_u32 s{S_T0}, s{S_T0}, s{S_T1}
s_add_u32 s{S_T0}, s{S_T0}, {hex(LY.FL2_OFF)}
v_mov_b32 v239, s{S_T0}
v_mov_b32 v238, 0
s_cmp_lg_u32 s{S_W}, 0
s_cbranch_scc1 {L('nozf')}
s_mov_b64 exec, 1
buffer_store_dword v238, v239, {G}, 0 offen sc1
s_lshl_b32 s{S_T0}, s{S_P}, 2
s_bfe_u32 s{S_T1}, s{S_H}, 0x20001
s_add_u32 s{S_T0}, s{S_T0}, s{S_T1}
s_lshl_b32 s{S_T0}, s{S_T0}, 5
s_lshr_b32 s{S_T1}, s{S_H}, 3
s_lshl_b32 s{S_T1}, s{S_T1}, 1
s_add_u32 s{S_T0}, s{S_T0}, s{S_T1}
s_and_b32 s{S_T1}, s{S_H}, 1
s_add_u32 s{S_T0}, s{S_T0}, s{S_T1}
s_lshl_b32 s{S_T0}, s{S_T0}, 2
s_add_u32 s{S_T0}, s{S_T0}, {hex(LY.CF_OFF)}
buffer_store_dword v238, v238, {G}, s{S_T0} offen sc1
s_and_b32 s{S_T0}, s2, 1
s_lshl_b32 s{S_T0}, s{S_T0}, 3
s_add_u32 s{S_T0}, s{S_T0}, s{S_P}
s_lshl_b32 s{S_T0}, s{S_T0}, 2
s_lshr_b32 s{S_T1}, s2, 6
s_add_u32 s{S_T0}, s{S_T0}, s{S_T1}
s_lshl_b32 s{S_T0}, s{S_T0}, 5
s_bfe_u32 s{S_T1}, s2, 0x20001
s_add_u32 s{S_T0}, s{S_T0}, s{S_T1}
s_lshl_b32 s{S_T0}, s{S_T0}, 2
s_add_u32 s{S_T0}, s{S_T0}, {hex(LY.FL_OFF + 4096)}
buffer_store_dword v238, v238, {G}, s{S_T0} offen sc1
s_mov_b64 exec, 15
v_lshlrev_b32 v239, 2, v1
s_lshl_b32 s{S_T0}, s2, 4
s_add_u32 s{S_T0}, s{S_T0}, {hex(LY.FL_OFF)}
buffer_store_dword v238, v239, {G}, s{S_T0} offen sc1
s_mov_b64 exec, -1""", ("label", "nozf")]]
    announce = [[f"""v_mov_b32 v238, 1
s_cmp_lg_u32 s{S_W}, 0
s_cbranch_scc1 {L('noan')}
s_mov_b64 exec, 1
global_atomic_add v7, v238, s[{P_DBG}:{P_DBG+1}] sc1
s_mov_b64 exec, -1""", ("label", "noan")]]
    coload = [[f"""s_cmp_lg_u32 s{S_W}, 0
s_cbranch_scc1 {L('noco')}
global_load_dword v3, v7, s[{P_DBG}:{P_DBG+1}] sc1""", ("label", "noco")]]

    e(f"""s_lshr_b32 s{S_T0}, s{S_W}, 1
s_lshl_b32 s{S_T0}, s{S_T0}, 14
s_add_u32 s{S_T0}, s{S_T0}, 0x10000
v_and_b32 v7, 7, v2
v_xor_b32 v7, v7, v3
v_lshlrev_b32 v7, 4, v7
v_lshlrev_b32 v8, 7, v2
v_add_u32 v8, v8, v7
v_add_u32 v8, s{S_T0}, v8
v_xor_b32 v9, 64, v8
v_add_u32 v10, 0x10000, v8
v_add_u32 v11, 0x10000, v9
v_lshrrev_b32 v7, 2, v2
v_and_b32 v16, 1, v3
v_lshlrev_b32 v16, 2, v16
v_or_b32 v16, v16, v7
v_lshlrev_b32 v240, 3, v3
v_add_u32 v240, v240, v7
v_lshlrev_b32 v240, 8, v240
v_and_b32 v241, 3, v1
v_lshlrev_b32 v241, 3, v241
v_add_u32 v240, v240, v241
s_and_b32 s{S_T1}, s{S_W}, 1
s_lshl_b32 s{S_T1}, s{S_T1}, 2""")
    for i in range(4):
        e(f"s_add_u32 s{S_T0}, s{S_T1}, {i}\nv_xor_b32 v242, s{S_T0}, v16\nv_lshlrev_b32 v242, 5, v242\nv_add_u32 v{12+i}, v240, v242")
    e(f"s_lshl_b32 s{S_T0}, s{S_H}, 2\nv_mov_b32 v7, s{S_T0}")
    setup2 = [[x] for x in f"""v_and_b32 v240, 7, v1
v_and_b32 v241, 8, v1
v_lshlrev_b32 v241, 1, v241
v_or_b32 v240, v240, v241
v_and_b32 v241, 1, v3
v_lshlrev_b32 v242, 5, v241
v_add_u32 v240, v240, v242
v_lshlrev_b32 v240, 4, v240
v_lshrrev_b32 v243, 1, v3
v_lshlrev_b32 v244, 10, v243
v_add_u32 v16, v240, v244
s_lshl_b32 s{S_T0}, s{S_H}, 5
s_sub_u32 s{S_T1}, 15, s{S_P}
s_cmp_lt_u32 s{S_W}, 2|s_cselect_b32 s{S_T1}, s{S_T1}, s{S_P}
s_lshl_b32 s{S_T1}, s{S_T1}, 1
s_add_u32 s{S_T0}, s{S_T0}, s{S_T1}
s_lshl_b32 s{S_T0}, s{S_T0}, 15
s_add_u32 s{S_T0}, s{S_T0}, {hex(LY.KVF_OFF - (1 << 20))}
s_mul_i32 s{S_T1}, s{S_H}, {HPAD}
s_add_u32 s{S_T0}, s{S_T0}, s{S_T1}
s_and_b32 s{S_T2}, s{S_W}, 1
s_lshl_b32 s{S_T1}, s{S_T2}, 12
s_add_u32 s{S_T1}, s{S_T1}, s{S_T0}
v_add_u32 v16, s{S_T1}, v16
v_add_u32 v240, v2, v242
v_lshlrev_b32 v240, 4, v240
v_lshlrev_b32 v245, 12, v243
v_add_u32 v17, v240, v245
s_lshl_b32 s{S_T1}, s{S_T2}, 11
s_add_u32 s{S_T1}, s{S_T1}, s{S_T0}
s_add_u32 s{S_T1}, s{S_T1}, 16384
v_add_u32 v17, s{S_T1}, v17
v_add_u32 v18, v240, v244
s_lshr_b32 s{S_T0}, s{S_W}, 1
s_mul_i32 s{S_T0}, s{S_T0}, {QL - 16384}
s_sub_u32 s{S_T0}, {QL}, s{S_T0}
s_lshl_b32 s{S_T1}, s{S_T2}, 12
s_add_u32 s{S_T0}, s{S_T0}, s{S_T1}
v_add_u32 v18, s{S_T0}, v18
s_mov_b32 s{S_SO}, 0
s_mov_b32 s{S_SO+1}, 8192
s_mov_b32 s{S_SO+2}, 32768
s_mov_b32 s{S_SO+3}, 40960""".split("\n")]
    setup2 = [it[0].split("|") for it in setup2]

    def XF(T, j): return 32 + 4 * j
    def WF(T, j): return 64 + 32 * (T & 1) + 4 * j
    def read_lists(T):
        xbuf = find(T, xb); wbuf = find(T, wb)
        ks = T - xbuf["first"]
        xs = []; wl = []
        for j in range(8):
            addr = xbuf["R"] - 65536 + j * 2048
            xs.append([("lg", f"ds_read_b128 {vr(XF(T,j),4)}, v{8 + ks + 2*(addr >> 16)} offset:{addr & 0xffff}", ("x", T, j))])
        wbs = [wbuf["R"], wbuf["R"] + 8192] if wbuf["kind"] == "wkv" else [wbuf["R"] + (T - wbuf["first"]) * 8192]
        for mt, b in enumerate(wbs):
            for i in range(4):
                for half in range(2):
                    wl.append([("lg", f"ds_read_b64_tr_b16 {vr(WF(T, mt*4+i) + 2*half, 2)}, v{12+i} offset:{b + half*1024}", ("w", T))])
        return xs, wl
    def mfma_list(T):
        out = []
        for rb in range(8):
            for db in range(4):
                a = (rb * 4 + db) * 4
                if kind[T] == "K":
                    out.append(f"v_mfma_f32_16x16x32_bf16 {ar(a,4)}, {vr(WF(T,db),4)}, {vr(XF(T,rb),4)}, {'0' if T == 0 else ar(a,4)}")
                    out.append(f"v_mfma_f32_16x16x32_bf16 {ar(a+128,4)}, {vr(XF(T,rb),4)}, {vr(WF(T,4+db),4)}, {'0' if T == 0 else ar(a+128,4)}")
                elif kind[T] == "k":
                    out.append(f"v_mfma_f32_16x16x32_bf16 {ar(a,4)}, {vr(WF(T,db),4)}, {vr(XF(T,rb),4)}, {'0' if T == kind.index('k') else ar(a,4)}")
                elif kind[T] == "v":
                    out.append(f"v_mfma_f32_16x16x32_bf16 {ar(a+128,4)}, {vr(XF(T,rb),4)}, {vr(WF(T,db),4)}, {'0' if T == kind.index('v') else ar(a+128,4)}")
                else:
                    out.append(f"v_mfma_f32_16x16x32_bf16 {vr(128+a,4)}, {vr(WF(T,db),4)}, {vr(XF(T,rb),4)}, {'0' if T == TQ0 else vr(128+a,4)}")
        return out
    ET = [20, 21, 22, 23, 24, 25, 30, 31]
    def kv_epi_items():
        items = []
        def ps(blkA, blkB, voff, soff, imm):
            for i in range(4): items.append([f"v_accvgpr_read_b32 v{ET[4+i]}, a{blkB+i}"])
            for i in range(4): items.append([f"v_accvgpr_read_b32 v{ET[i]}, a{blkA+i}"])
            for i in range(4): items.append([f"v_cvt_pk_bf16_f32 v{ET[i]}, v{ET[2*i]}, v{ET[2*i+1]}"])
            items.append([("vm", f"buffer_store_dwordx4 v[20:23], v{voff}, {G}, s{soff} offen offset:{imm}{KVST}", "kv")])
        for rb in range(8):
            for ee in range(2):
                ps((rb*4 + 2*ee)*4, (rb*4 + 2*ee + 1)*4, 16, S_SO + (rb >> 1), ee*2048 + (rb & 1)*128)
        for f in range(4):
            for db in range(4):
                ps(128 + ((2*f)*4 + db)*4, 128 + ((2*f+1)*4 + db)*4, 17, S_SO + f, (db >> 1)*1024 + (db & 1)*256)
        return items

    fill = {T: [] for T in range(NT)}
    def plan(items, Ts):
        if not items: return
        per = -(-len(items) // len(Ts))
        for T in Ts:
            fill[T] += items[:per]; items = items[per:]
        assert not items
    def srd_items(d, p, n):
        return [[f"s_mov_b32 s{d}, s{p}", f"s_mov_b32 s{d+1}, s{p+1}"], [f"s_mov_b32 s{d+2}, {hex(n)}", f"s_mov_b32 s{d+3}, 0x00020000"]]
    fill[0] += zeroflag
    fill[5] += announce
    fill[13] += coload
    assert TQ0 >= 8
    plan(setup2 + [["v_lshlrev_b32 v2, 4, v1"]], [0])
    PFP = os.environ.get("PFP", "c")
    if PFP == "a": plan(pf2, [1, 2, 3, 4]); plan(pf1, [5, 6, 7, 10])
    if PFP == "b": plan(pf1, [1, 2, 3]); plan(pf2, [4, 5, 6, 7])
    if PFP == "c": plan(pf2, [2, 3, 4, 5, 6, 7])
    if PFP == "s":
        pfv = pf(SRD_WV2, [f"s_mul_i32 s{S_G0}, s{S_PFI}, 4096"], [0, 1024, 2048, 3072])
        plan(pfv, [2, 3, 4, 5]); plan(pf2, [6, 7, 8, 9, 10])
    UKV = "x_ukv" in EXP
    if UKV:
        UL = int(os.environ.get("UL", "8"))
        u_ld, u_cp = PS.u_stream(164, 172, 218, list(range(226, 248)), 128, 2, S_W, 1, 4, 8, 12, SRD_G, S_M, 52, 53)
        u_ld = srd_items(4, 80, 2048*1280) + srd_items(8, 82, 2048*1280) + srd_items(12, 78, 640*8) + u_ld + [[f"v_add_u32 v167, {hex(LY.UT_OFF)}, v167"]]
        u_ld += [["s_load_dwordx4 s[80:83], s[0:1], 80"], ["s_load_dwordx2 s[78:79], s[0:1], 40"]]
        plan(u_ld, [UL, UL + 1]); plan(u_cp, list(range(UL + 3, 16)))
    GR_BASE = 128
    g_ld, g_cp = PS.gate_stream(GR_BASE, 2, S_W, 1, SRD_X, SRD_T, SRD_G, S_M, S_G0)
    g_ld.append([f"v_add_u32 v{GR_BASE+1}, {hex(LY.G_OFF)}, v{GR_BASE+1}"])
    plan(g_ld, [1])
    plan(g_cp, [6, 7] if not SPLIT else [8, 9, 10, 12, 13, 14])
    def code_pf(srd, vtmp, dst, tracked=True):
        lab = k.newlabel("pc")
        ld = f"buffer_load_dwordx4 {dst}, v{vtmp}, s[{srd}:{srd+3}], s{S_T0} offen"
        return [[f"s_getpc_b64 s[{srd}:{srd+1}]", ("label", lab), f"s_sub_u32 s{srd}, s{srd}, {L(lab)}-main_kernel", f"s_subb_u32 s{srd+1}, s{srd+1}, 0"],
                [f"s_mov_b32 s{srd+2}, all_code_end-main_kernel", f"s_mov_b32 s{srd+3}, 0x00020000"],
                [f"s_lshr_b32 s{S_T0}, s2, 3", f"s_lshl_b32 s{S_T0}, s{S_T0}, 12"],
                [f"v_lshlrev_b32 v{vtmp}, 4, v0"],
                [("vm", ld, "t") if tracked else ld]]
    if "x_nocpf" not in EXP:
        fill[11] += code_pf(SRD_T, 2, "v[20:23]")
        fill[TP - 4] += code_pf(SRD_T, 2, "a[0:3]")
    if SPLIT:
        it_ = kv_epi_items()
        plan(it_[:208], list(range(TE0, after("v")))); plan(it_[208:], list(range(after("v"), TP - 1)))
    else:
        plan(kv_epi_items(), list(range(TE0, TP - 1)))
    ai = [x.split("|") for x in f"""s_lshl_b32 s{S_N1}, s{S_P}, 1
s_add_u32 s{S_N1}, s{S_N1}, 2
s_and_b32 s{S_WODD}, s{S_W}, 1
s_mul_i32 s{S_HB}, s{S_H}, {(1 << 20) + HPAD}
s_add_u32 s{S_HB}, s{S_HB}, {hex(LY.KVF_OFF - (1 << 20))}
s_add_u32 s{S_HB}, s{S_HB}, s{S_W4K}
s_sub_u32 s{S_RX}, 15, s{S_P}
s_lshl_b32 s{S_RX}, s{S_RX}, 2
s_add_u32 s{S_RX}, s{S_RX}, s{S_W}
s_lshl_b32 s{S_RY}, s{S_P}, 2
s_add_u32 s{S_RY}, s{S_RY}, s{S_W}
s_mov_b32 s{SRD_K}, s{SRD_G}
s_mov_b32 s{SRD_K+1}, s{SRD_G+1}
s_mov_b32 s{SRD_K+2}, {hex(WSB)}
s_mov_b32 s{SRD_K+3}, 0x00020000
s_mov_b32 s{SRD_V}, s{SRD_G}
s_mov_b32 s{SRD_V+1}, s{SRD_G+1}
s_mov_b32 s{SRD_V+2}, {hex(WSB)}
s_mov_b32 s{SRD_V+3}, 0x00020000
s_sub_u32 s{S_N1M2}, s{S_N1}, 2
s_lshl_b32 s{S_T0}, s{S_N1M2}, 15
s_add_u32 s{S_KA}, s{S_HB}, s{S_T0}
s_add_u32 s{S_KOFF}, s{S_KA}, 0x8000
s_add_u32 s{S_KB}, s{S_KA}, 0x10000
s_cmp_eq_u32 s{S_N1}, 2|s_cselect_b32 s{S_KB}, s{S_KB}, s{S_HB}
s_add_u32 s{S_DB}, s{S_W4K}, 0x10000
s_sub_i32 s{S_N1M3}, s{S_N1}, 3
s_lshl_b32 s{S_FC}, 9, s{S_N1}
s_lshr_b32 s{S_FC}, s{S_FC}, 3
s_or_b32 s{S_FC}, s{S_FC}, 0x10002
s_sub_u32 s{S_T0}, s{S_N1}, 1
s_lshl_b32 s{S_FB}, 1, s{S_T0}
s_or_b32 s{S_FB}, s{S_FB}, {0xc000 if UKV else 0xc144}
s_lshl_b32 s{S_KX2}, s{S_WODD}, 14
s_or_b32 s{S_KX2}, s{S_KX2}, 0x10000
s_lshl_b32 s{S_T0}, s{S_H}, 7
s_lshl_b32 s{S_T1}, s{S_P}, 2
s_add_u32 s{S_T0}, s{S_T0}, s{S_T1}
s_add_u32 s{S_T0}, s{S_T0}, {hex(LY.FL2_OFF)}
v_mov_b32 v31, s{S_T0}
v_mov_b32 v23, 1
v_lshlrev_b32 v24, 4, v1
v_add_u32 v25, 0x8000, v24
v_add_u32 v30, 0x4000, v24""".split("\n")]
    plan(ai, [TP - 1])
    plan([[f"v_accvgpr_write_b32 a{r}, 0"] for r in range(128)], [TP, TP + 1, TP + 2])

    for it in pro_b: emit_item(it)
    k.wait(vmtags=(find(0, xb)["id"], find(0, wb)["id"]))
    e("s_barrier")
    ST("first")
    xs0, wl0 = read_lists(0)
    for it in wl0 + xs0: emit_item(it)
    dm_carry = pro_c
    def dma4(m0expr, voff, srd, soff, tag=None):
        mk = (lambda s: ("vm", s, tag)) if tag else (lambda s: s)
        out = [[m0expr, "s_nop 0", mk(f"buffer_load_dwordx4 v{voff}, s[{srd}:{srd+3}], s{soff} offen{KVS} lds")]]
        for i in range(1, 4):
            out.append([mk(f"buffer_load_dwordx4 v{voff}, s[{srd}:{srd+3}], s{soff} offen offset:{i*1024}{KVS} lds")])
        return out
    UAT = "v_mov_b32 v20, 128\nv_mov_b32 v21, 0x10000\nglobal_atomic_add v20, v21, s[84:85] sc1\n" if UKV else ""
    BG = 3
    for T in range(NT):
        need = [b["id"] for b in xb + wb if b["first"] == T + 1]
        dm = dm_carry; dm_carry = []
        ST(f"T{T}")
        ms = mfma_list(T); nm = len(ms); per = nm // 8
        bar = bool(need) or T == NT - 1
        if bar:
            dm = dm + issue_ready(T)
            if kind[T] != "K" and len(dm) > 8 and T + 1 < NT and not [b for b in xb + wb if b["first"] == T + 2]:
                dm_carry = dm[8:]; dm = dm[:8]
        if T == TP:
            dm = dm + dma4(f"s_add_u32 m0, s{S_W4K}, 0x10000", 24, SRD_G, S_KA, "k0")
            dm = dm + dma4(f"s_mov_b32 m0, s{S_W4K}", 25, SRD_G, S_KA, "k1")
            dm_carry = dma4(f"s_add_u32 m0, s{S_W4K}, 0x8000", 30, SRD_G, S_KA, "v0") + dma4(f"s_add_u32 m0, s{S_W4K}, 0x18000", 30, SRD_G, S_KOFF, "v1")
        xs, wl = read_lists(T + 1) if T + 1 < NT else ([], [])
        lo_r = BG + 1 if bar else 0
        pre = [[] for _ in range(nm)]
        for j, it in enumerate(xs):
            pre[max(lo_r, per * (j + 1) - 1)].append(it)
        cand = [g for g in range(lo_r, (nm * 13) // 16) if not pre[g]]
        for j, it in enumerate(wl):
            pre[cand[(j * len(cand)) // len(wl)]].append(it)
        g2 = spread(nm, dm, lo_r + 1, nm) if dm else {}
        for g, its in g2.items(): pre[g] += its
        load = [sum(len(it) for it in pre[i]) for i in range(nm)]
        if bar: load[BG] += 2
        fl = fill[T]; lo = 4 if T == TE0 or (SPLIT and T == after("v")) else 0
        tot = sum(load[lo:]) + sum(min(len(it), 4) for it in fl)
        fi = 0; acc = 0.0
        for i in range(nm):
            if i % per == 0:
                k.wait(lgtags=[("x", T, i // per)] + ([("w", T)] if i == 0 else []))
            e(ms[i])
            if bar and i == BG:
                if T == TP:
                    e("s_waitcnt vmcnt(0)"); k.vm = []
                k.wait(vmtags=tuple(need), lgtags=[("x", T, 7)])
                e("s_barrier")
                if T == TP:
                    e(f"s_cmp_lg_u32 s{S_W}, 0\ns_cbranch_scc1 {L('noat')}")
                    e(f"""v_readfirstlane_b32 s{S_T0}, v3
s_mov_b64 exec, 1
buffer_store_dword v23, v31, {G}, 0 offen sc1
{UAT}s_mov_b64 exec, -1
s_cmp_lt_u32 s{S_T0}, {99 if "x_slow" in EXP else 8}
s_cbranch_scc1 {L('slowpub')}""")
                    k.label("noat")
            for it in pre[i]: emit_item(it)
            if i < lo: continue
            acc += load[i]
            tgt = tot * (i - lo + 1) / (nm - lo)
            while fi < len(fl) and (i == nm - 1 or acc + 0.5 * min(len(fl[fi]), 4) <= tgt + 0.01):
                emit_item(fl[fi]); acc += min(len(fl[fi]), 4); fi += 1
    assert not pend and not dm_carry
    import k_main_attn
    k_main_attn.gen(k, globals(), locals())
    return k
```

```python
from asmlib import *
import layout as LY
import prep_streams as PS
import k_main_out

def gen(k, GL, LC):
    globals().update({n: v for n, v in GL.items() if n.isupper() or n[0] in "SVP" or n in ("f32bits", "gen_main", "EXP")})
    e = k.e; L = k.L
    UST = " sc1"
    SCR = 159 * 1024
    CS = 4160; UB = 4 * CS; CH = 21504
    G, ST, dma4, emit_item = LC["G"], LC["ST"], LC["dma4"], LC["emit_item"]
    pk = lambda r: vr(r, 2)
    ST("q0")
    e(f"""s_lshl_b32 s{S_T0}, s{S_H}, 7
s_add_u32 s{S_T0}, s{S_T0}, {hex(LY.FL2_OFF)}
v_min_u32 v{V_DBG}, 7, v1
v_lshlrev_b32 v{V_DBG}, 2, v{V_DBG}
v_add_u32 v{V_DBG}, s{S_T0}, v{V_DBG}
v_mov_b32 v{V_D0}, v24
v_mov_b32 v{V_D0+1}, v25
v_mov_b32 v{V_D0+2}, v30
v_add_u32 v{V_D0+3}, 0xc000, v24""")
    k.vmem(f"buffer_load_dword v{V_POLL}, v{V_DBG}, {G}, 0 offen sc1", "poll")
    e(f"s_lshr_b32 s{S_T0}, s{S_W}, 1\ns_lshl_b32 s{S_T0}, s{S_T0}, 14\nv_add_u32 v103, s{S_T0}, v18")
    e(f"v_mov_b32 v104, v18\nv_mov_b32 v{V_M}, {f32bits(LY.QSCALE)}\nv_mov_b32 v{V_M+1}, v{V_M}")
    n = 0
    for rb in range(8):
        for ee in range(2):
            a = 128 + (rb*4 + 2*ee)*4
            t = 64 + 4 * (n % 4); n += 1
            for i in range(4): e(f"v_pk_mul_f32 {pk(a+2*i)}, {pk(a+2*i)}, {pk(V_M)}")
            for i in range(4): e(f"v_cvt_pk_bf16_f32 v{t+i}, v{a+2*i}, v{a+2*i+1}")
            e(f"ds_write_b128 v{104 if rb < 4 else 103}, {vr(t,4)} offset:{(rb >> 1)*8192 + ee*2048 + (rb & 1)*256}")
    e(f"""v_and_b32 v105, 31, v1
v_lshrrev_b32 v106, 5, v1
v_lshlrev_b32 v{V_LB}, 2, v106
v_sub_u32 v{V_LB}, v105, v{V_LB}
v_lshrrev_b32 v{V_T}, 4, v105
v_lshlrev_b32 v{V_T}, 17, v{V_T}
v_lshlrev_b32 v{V_T+1}, 8, v106
v_add_u32 v{V_T}, v{V_T}, v{V_T+1}
v_and_b32 v{V_T+1}, 15, v105
v_lshlrev_b32 v{V_T+1}, 4, v{V_T+1}
v_add_u32 v{V_T}, v{V_T}, v{V_T+1}
s_lshl_b32 s{S_T0}, s{S_H}, 12
s_add_u32 s{S_T0}, s{S_T0}, {hex(LY.CTX_OFF)}
v_add_u32 v{V_CTX}, s{S_T0}, v{V_T}
v_mov_b32 v{V_BIG}, {f32bits(-1e30)}
v_mov_b32 v{V_LX}, 0
v_mov_b32 v{V_LY}, 0
v_add_u32 v{V_KA}, 0x10000, v{V_D0}
v_add_u32 v{V_VA}, 0x10000, v{V_D0}
s_lshl_b32 s{S_T0}, s{S_W}, 13
s_add_u32 s{S_T1}, s{S_T0}, {QL}
v_add_u32 v{V_T}, s{S_T1}, v{V_D0}
s_lshr_b32 s{S_T1}, s{S_W}, 1
s_lshl_b32 s{S_T1}, s{S_T1}, 14
s_add_u32 s{S_T0}, s{S_T0}, s{S_T1}
v_add_u32 v{V_T+1}, s{S_T0}, v{V_D0}""")
    ST("qe")
    k.wait(vmtags=("k0",))
    e("s_waitcnt lgkmcnt(0)\ns_barrier")
    ST("attn")
    for i in range(8):
        e(f"ds_read_b128 {ar(QX+4*i,4)}, v{V_T} offset:{i*1024}")
        e(f"ds_read_b128 {vr(KF+4*i,4)}, v{V_KA} offset:{i*1024}")
    for i in range(8, 16):
        e(f"ds_read_b128 {vr(KF+4*i,4)}, v{V_KA} offset:{i*1024}")
    for i in range(8):
        e(f"ds_read_b128 {ar(QY+4*i,4)}, v{V_T+1} offset:{16384 + i*1024}")
    e(f"v_xor_b32 v{V_T}, 0x2000, v{V_T}")

    def regs(Z):
        return dict(S=SX, Q=QX, N=NX, O=OX, P=PX, L=V_LX) if Z == "X" else dict(S=SY, Q=QY, N=NY, O=OY, P=PY, L=V_LY)
    def qk(Z, zero=False):
        r = regs(Z); out = []
        for kb in range(2):
            for ks in range(8):
                c = ("0" if zero else vr(r["N"], 16)) if ks == 0 else vr(r["S"] + 16*kb, 16)
                out.append(f"v_mfma_f32_32x32x16_bf16 {vr(r['S']+16*kb,16)}, {vr(KF+4*(8*kb+ks),4)}, {ar(r['Q']+4*ks,4)}, {c}")
        return out
    def pv(Z):
        r = regs(Z); out = []
        for db in range(4):
            for s in range(4):
                out.append(f"v_mfma_f32_32x32x16_bf16 {ar(r['O']+16*db,16)}, {ar(VF+4*(4*db+s),4)}, {vr(r['P']+4*s,4)}, {ar(r['O']+16*db,16)}")
        return out
    def sm_core(Z):
        r = regs(Z); S, P = r["S"], r["P"]
        t = lambda i: V_X + (i % 8)
        it = []
        for pi in range(17):
            post = []
            if pi >= 1:
                q = pi - 1
                post.append((1, [f"v_cvt_pk_bf16_f32 v{P+q}, v{t(2*q)}, v{t(2*q+1)}"]))
                if q == 1:
                    post.append((1, [f"v_add_f32 v{V_LT}, v{t(0)}, v{t(2)}"]))
                    post.append((1, [f"v_add_f32 v{V_LT+1}, v{t(1)}, v{t(3)}"]))
                elif q >= 2:
                    post.append((1, [f"v_add_f32 v{V_LT}, v{V_LT}, v{t(2*q)}"]))
                    post.append((1, [f"v_add_f32 v{V_LT+1}, v{V_LT+1}, v{t(2*q+1)}"]))
            if pi < 16:
                it.append((2, [f"v_exp_f32 v{t(2*pi)}, v{S+2*pi}"]))
                if post: it.append(post.pop())
                it.append((2, [f"v_exp_f32 v{t(2*pi+1)}, v{S+2*pi+1}"]))
            it += post
        it.append((1, [f"v_add_f32 v{V_LT}, v{V_LT}, v{V_LT+1}"]))
        return it
    redo_sites = []
    def sm(Z, tag):
        r = regs(Z)
        it = sm_core(Z)
        lab = f"rd{Z}{tag}"
        it.append((1, [f"v_cmp_nge_f32 vcc, {THR}, v{V_LT}"]))
        it.append((1, [f"s_cbranch_vccnz {L(lab)}", ("label", lab + "r")]))
        it.append((1, [f"v_add_f32 v{r['L']}, v{r['L']}, v{V_LT}"]))
        redo_sites.append((Z, lab))
        return it
    def emit(x):
        if isinstance(x, tuple): k.label(x[1])
        else: e(x)
    def weave(mf, fixed, stream, lo=0):
        n = len(mf)
        fw = [sum(w for w, _ in fixed.get(g, [])) for g in range(n)]
        tot = sum(w for w, _ in stream) + sum(fw)
        per = tot / n
        acc = 0.0; si = 0
        for g in range(n):
            if mf[g]: e(mf[g])
            gw = 0
            for w, ins in fixed.get(g, []):
                for x in ins: emit(x)
                acc += w; gw += w
            while g >= lo and si < len(stream) and (g == n - 1 or (acc + stream[si][0] * 0.5 <= per * (g + 1) + 0.01 and gw + stream[si][0] <= 6)):
                for x in stream[si][1]: emit(x)
                acc += stream[si][0]; gw += stream[si][0]; si += 1
    def add(fx, g, ins, w=None):
        fx.setdefault(g, []).append((len(ins) if w is None else w, ins))
    def vlds(i): return 32768 + ((i & 3) * 4 + (i >> 2)) * 1024
    NV1 = 6
    def unit(m0, voff, srd, soff):
        d = dma4(m0, voff, srd, soff)
        return [[d[0][0]], [d[0][2]]] + d[1:]
    def body(tag, n16):
        mf = qk("X") + pv("X") + qk("Y") + pv("Y")
        fx = {}
        e(f"s_waitcnt lgkmcnt({NV1})")
        for i in range(NV1, 16):
            add(fx, int((i - NV1) * 1.25), [f"ds_read_b128 {ar(VF+4*i,4)}, v{V_VA} offset:{vlds(i)}"])
        add(fx, 13, [f"s_mov_b32 s{S_VOFF}, s{S_KOFF}", f"s_mov_b32 s{S_KOFF}, s{S_KB}"])
        add(fx, 14, [f"s_add_u32 s{S_KB}, s{S_KB}, {0x10000 if n16 else 0x8000}", f"s_xor_b32 s{S_DB}, s{S_DB}, 0x10000"])
        add(fx, 15, ["s_waitcnt vmcnt(0) lgkmcnt(0)", "s_barrier"])
        if "x_prof" in EXP:
            add(fx, 14, ["s_memtime s[98:99]"], 0)
            add(fx, 15, [f"s_mov_b32 m0, s{S_J}", "s_nop 0", f"v_writelane_b32 v2, s98, m0"], 0)
        dv = unit(f"s_add_u32 m0, s{S_DB}, 0x8000", V_D0+2, SRD_V, S_VOFF)
        dk = unit(f"s_mov_b32 m0, s{S_DB}", V_D0, SRD_K, S_KOFF)
        if n16:
            dv += unit(f"s_add_u32 m0, s{S_DB}, 0xc000", V_D0+3, SRD_V, S_VOFF)
            dk += unit(f"s_add_u32 m0, s{S_DB}, 0x4000", V_D0+1, SRD_K, S_KOFF)
            for i, it in enumerate(dv): add(fx, 16 + (i * 13) // len(dv), it)
            for i, it in enumerate(dk): add(fx, 32 + (i * (10 if "x_kearly" in EXP else 15)) // len(dk), it)
            add(fx, 29, [f"s_cmp_eq_u32 s{S_J}, s{S_N1M2}", f"s_cselect_b32 s{S_KX}, s{S_KX2}, 0x10000"])
            add(fx, 30, [f"v_xor_b32 v{V_KA}, s{S_KX}, v{V_KA}"])
        else:
            for i, it in enumerate(dv + dk): add(fx, 16 + (i * 14) // 10, it)
            add(fx, 30, [f"v_xor_b32 v{V_KA}, 0x10000, v{V_KA}"])
        add(fx, 31, [f"v_xor_b32 v{V_VA}, 0x10000, v{V_VA}"])
        for i in range(16):
            add(fx, 32 + 2 + int(i * 1.35), [f"ds_read_b128 {vr(KF+4*i,4)}, v{V_KA} offset:{i*1024}"])
        for i in range(NV1):
            add(fx, 32 + 24 + int(i * 1.3), [f"ds_read_b128 {ar(VF+4*i,4)}, v{V_VA} offset:{vlds(i)}"])
        weave(mf[:32], {g: v for g, v in fx.items() if g < 32}, sm("Y", tag))
        if n16 or not LC["UKV"]: e(f"s_bitcmp1_b32 s{S_FB}, s{S_J}\ns_cbranch_scc1 {L('hB')}")
        k.label("hBr" if n16 else "hBr8")
        weave(mf[32:], {g - 32: v for g, v in fx.items() if g >= 32}, sm("X", tag))
        e(f"s_add_u32 s{S_J}, s{S_J}, 1\ns_bitcmp1_b32 s{S_FC}, s{S_J}")
    def tile_max_items(S):
        it = [[f"v_max3_f32 v{V_M}, v{S}, v{S+1}, v{S+2}"], [f"v_max3_f32 v{V_M+1}, v{S+3}, v{S+4}, v{S+5}"]]
        i = 6; tog = 0
        while i < 32:
            d = V_M + tog
            it.append([f"v_max3_f32 v{d}, v{d}, v{S+i}, v{S+i+1}"]); i += 2; tog ^= 1
        it.append([f"v_max_f32 v{V_M}, v{V_M}, v{V_M+1}"])
        it.append([f"v_mov_b32 v{V_M+1}, v{V_M}", "s_nop 1", f"v_permlane32_swap_b32 v{V_M+1}, v{V_M}", "s_nop 1", f"v_max_f32 v{V_M}, v{V_M}, v{V_M+1}"])
        return it
    def first_items(Z, packed):
        r = regs(Z); S, N = r["S"], r["N"]
        it = tile_max_items(S)
        it.append([f"v_sub_f32 v{N}, 0, v{V_M}"])
        it.append([f"v_sub_f32 v{N+1}, 0, v{V_M}"])
        if packed:
            for i in range(16): it.append([f"v_pk_add_f32 {pk(S+2*i)}, {pk(S+2*i)}, {pk(N)}"])
            for i in range(1, 8): it.append([f"v_pk_mov_b32 {pk(N+2*i)}, {pk(N)}, {pk(N)}"])
        else:
            for i in range(32): it.append([f"v_add_f32 v{S+i}, v{S+i}, v{N}"])
            for i in range(2, 16): it.append([f"v_mov_b32 v{N+i}, v{N}"])
        return it
    def flat(items):
        for it in items:
            for x in it: emit(x)
    def mask_code(S, nm):
        e(f"s_cmp_lt_i32 s{S_T0}, -1\ns_cbranch_scc1 {L(nm + 'r')}")
        e(f"s_cmp_eq_i32 s{S_T0}, -1\ns_cbranch_scc1 {L(nm + 'a')}")
        e(f"v_mov_b32 v{S+16}, v{V_BIG}\nv_mov_b32 v{S+17}, v{V_BIG}")
        for r in range(1, 8): e(f"v_pk_mov_b32 {pk(S+16+2*r)}, {pk(S+16)}, {pk(S+16)}")
        e(f"s_cmp_eq_i32 s{S_T0}, 0\ns_cbranch_scc1 {L(nm + 'b')}")
        for r in range(8): e(f"v_pk_mov_b32 {pk(S+2*r)}, {pk(S+16)}, {pk(S+16)}")
        e(f"s_branch {L(nm + 'r')}")
        k.label(nm + "a")
        for r in range(16):
            e(f"v_cndmask_b32 v{S+16+r}, v{V_BIG}, v{S+16+r}, s[{MASKP[r]}:{MASKP[r]+1}]")
        e(f"s_branch {L(nm + 'r')}")
        k.label(nm + "b")
        for r in range(16):
            e(f"v_cndmask_b32 v{S+r}, v{V_BIG}, v{S+r}, s[{MASKP[r]}:{MASKP[r]+1}]")
        k.label(nm + "r")

    for r in range(16):
        f = LY.row2key(8 * (r >> 2) + (r & 3))
        e(f"v_cmp_le_i32 s[{MASKP[r]}:{MASKP[r]+1}], {f}, v{V_LB}")
    e("s_waitcnt lgkmcnt(8)")
    fx = {}
    for i in range(8): add(fx, 1 + i, [f"ds_read_b128 {vr(V_E+4*i,4)}, v{V_T} offset:{i*1024}"])
    add(fx, 15, ["s_waitcnt vmcnt(0) lgkmcnt(0)", "s_barrier"])
    weave(qk("X", True), fx, [])
    def k2load(tag):
        flat(dma4(f"s_mov_b32 m0, s{S_DB}", V_D0, SRD_K, S_KOFF))
        e(f"s_cmp_lg_u32 s{S_N1}, 2\ns_cbranch_scc1 {L('nok2' + tag)}")
        flat(dma4(f"s_add_u32 m0, s{S_DB}, 0x4000", V_D0+1, SRD_K, S_KOFF))
        k.label("nok2" + tag)
    e(f"""v_cmp_ne_u32 vcc, 1, v{V_POLL}
s_mov_b32 s{S_KOFF}, s{S_KB}
s_cmp_eq_u32 s{S_N1}, 2
s_cselect_b32 s{S_T0}, 2, 1
s_lshl_b32 s{S_T0}, s{S_T0}, 15
s_add_u32 s{S_KB}, s{S_KB}, s{S_T0}
s_mov_b32 s{S_J}, 0
s_mov_b32 s{S_T2}, 1
s_cbranch_vccnz {L('late')}
s_mov_b32 s{S_T2}, 0""")
    k2load("a")
    k.label("late")
    ST("s1")
    fx = {}
    add(fx, 0, [f"v_xor_b32 v{V_KA}, 0x10000, v{V_KA}", f"v_xor_b32 v{V_VA}, 0x10000, v{V_VA}"])
    for i in range(14):
        add(fx, 2 + i, [f"ds_read_b128 {vr(KF+4*i,4)}, v{V_KA} offset:{i*1024}"])
    weave(qk("Y", True), fx, [(len(it), it) for it in first_items("X", False)], lo=2)
    for i in range(14, 16):
        e(f"ds_read_b128 {vr(KF+4*i,4)}, v{V_KA} offset:{i*1024}")
    e(f"""s_lshl_b32 s{S_T0}, s{S_W}, 8
s_add_u32 s{S_T0}, s{S_T0}, {16384}
v_lshlrev_b32 v{V_T}, 2, v1
v_add_u32 v{V_T}, s{S_T0}, v{V_T}
ds_write_b32 v{V_T}, v{NX}
v_xor_b32 v{V_NP}, 0x100, v{V_T}""")
    for i, (w, ins) in enumerate(sm("X", "p")):
        for x in ins: emit(x)
    ST("s2")
    e(f"s_cmp_eq_u32 s{S_T2}, 1\ns_cbranch_scc1 {L('spin')}")
    k.label("spinr")
    e("s_waitcnt lgkmcnt(0)\ns_barrier")
    ST("sync")
    e(f"ds_read_b32 v{V_NP}, v{V_NP}")
    for i in range(NV1):
        e(f"ds_read_b128 {ar(VF+4*i,4)}, v{V_VA} offset:{vlds(i)}")
    e(f"s_lshl_b32 s{S_T0}, s{S_N1M2}, 1\ns_sub_u32 s{S_T0}, s{S_T0}, s{S_RY}")
    mask_code(SY, "m0")
    flat(first_items("Y", True))
    e(f"s_cmp_lt_i32 s{S_N1M3}, 1\ns_cbranch_scc1 {L('loop16')}")
    k.label("loop8")
    body("a", False)
    e(f"s_cbranch_scc0 {L('loop8')}\ns_branch {L('hC')}")
    k.label("loop16")
    body("b", True)
    e(f"s_cbranch_scc0 {L('loop16')}")
    k.label("hC")
    def STJ(name, cond):
        if name in SMAP and Kern.STAMP:
            lab = k.newlabel("sj")
            e(f"s_cmp_lg_u32 s{S_J}, {cond}\ns_cbranch_scc1 {L(lab)}")
            ST(name); k.label(lab)
    STJ("inn1", f"s{S_N1}"); STJ("in1", 1); STJ("inm3", f"s{S_N1M3}")
    e(f"s_cmp_eq_u32 s{S_J}, s{S_N1}\ns_cbranch_scc1 {L('sw2')}")
    k.label("hCa")
    e(f"s_and_b32 s{S_T0}, s{S_J}, 15\ns_cmp_le_u32 s{S_T0}, 1\ns_cbranch_scc1 {L('mY')}")
    k.label("hCb")
    STJ("outn1", f"s{S_N1}"); STJ("out1", 1)
    e(f"""s_cmp_lt_i32 s{S_J}, s{S_N1M3}
s_cbranch_scc1 {L('loop8')}
s_add_u32 s{S_T0}, s{S_KA}, 0x10000
s_cmp_eq_u32 s{S_J}, s{S_N1M3}
s_cselect_b32 s{S_KB}, s{S_T0}, s{S_KB}
s_branch {L('loop16')}""")
    k.label("mY")
    e(f"""s_sub_u32 s{S_T0}, 32, s{S_N1}
s_add_u32 s{S_T0}, s{S_T0}, s{S_WODD}
s_sub_u32 s{S_T1}, s{S_N1}, 1
s_cmp_eq_u32 s{S_J}, 1
s_cselect_b32 s{S_T0}, s{S_T1}, s{S_T0}
s_lshl_b32 s{S_T0}, s{S_T0}, 1
s_sub_u32 s{S_T0}, s{S_T0}, s{S_RY}""")
    mask_code(SY, "m1")
    e(f"s_cmp_eq_u32 s{S_J}, 1\ns_cbranch_scc1 {L('hCb')}")
    ST("tail")
    if "x_prof" in EXP:
        e(f"s_lshl_b32 s{S_T0}, s2, 8\ns_add_u32 s{S_T0}, s{S_T0}, {hex(LY.STAMP_OFF + 0x40000)}\nv_lshlrev_b32 v{V_T}, 2, v1\nbuffer_store_dword v2, v{V_T}, {G}, s{S_T0} offen")
    for i in range(NV1, 16):
        e(f"ds_read_b128 {ar(VF+4*i,4)}, v{V_VA} offset:{vlds(i)}")
    st = sm("Y", "e")
    for w, ins in st[:12]:
        for x in ins: emit(x)
    e(f"v_mov_b32 v{V_POLL}, {SCR}\ns_waitcnt vmcnt(0) lgkmcnt(0)\ns_barrier\nds_read_b32 v{V_POLL}, v{V_POLL}")
    weave(pv("X"), {}, st[12:])
    e(f"""s_waitcnt lgkmcnt(0)
v_readfirstlane_b32 s{S_KA}, v{V_POLL}
s_and_b32 s{S_KB}, s{S_KA}, 0xffff
s_lshr_b32 s{S_T0}, s{S_KA}, 16
s_cmp_lt_u32 s{S_T0}, 256
s_cbranch_scc1 {L('uspin')}""")
    k.label("uok")
    e(f"""s_cmp_lt_u32 s{S_KB}, 160
s_cbranch_scc1 {L('cvld')}""")
    k.label("cvldr")
    MB = lambda wreg: f"s_mul_i32 s{S_T0}, {wreg}, {17*1024}\ns_add_u32 s{S_T0}, s{S_T0}, {88*1024}"
    MBold = lambda wreg: f"s_and_b32 s{S_T0}, {wreg}, 1\ns_mul_i32 s{S_T0}, s{S_T0}, {18*1024}\ns_lshr_b32 s{S_T1}, {wreg}, 1\ns_mul_i32 s{S_T1}, s{S_T1}, {88*1024}\ns_add_u32 s{S_T0}, s{S_T0}, s{S_T1}\ns_add_u32 s{S_T0}, s{S_T0}, {24*1024}"
    e(MB(f"s{S_W}") + f"\nv_add_u32 v{V_T}, s{S_T0}, v{V_D0}\nv_mov_b32 v{NY+1}, v{V_LY}")
    e(f"ds_write_b64 v{V_T}, {pk(NY)} offset:{16*1024}")
    fx = {}
    for r in range(64):
        add(fx, 1 + r // 5 if r < 48 else 11 + (r - 48) // 4, [f"v_accvgpr_read_b32 v{192+r}, a{OX+r}"])
    for db in range(3):
        for q in range(4):
            add(fx, min(15, 4*db + 7 + q), [f"ds_write_b128 v{V_T}, {ar(OY+16*db+4*q,4)} offset:{(4*db+q)*1024}"])
    weave(pv("Y"), fx, [])
    e(f"s_xor_b32 s{S_T2}, s{S_W}, 1\n" + MB(f"s{S_T2}") + f"\nv_add_u32 v{V_T+1}, s{S_T0}, v{V_D0}\ns_lshl_b32 s{S_CTXB}, s{S_RX}, 18\ns_nop 5")
    for q in range(4):
        e(f"ds_write_b128 v{V_T}, {ar(OY+48+4*q,4)} offset:{(12+q)*1024}")
    e("s_waitcnt lgkmcnt(0)\ns_barrier")
    e(f"ds_read_b64 {pk(NY)}, v{V_T+1} offset:{16*1024}")
    for i in range(16):
        e(f"ds_read_b128 {vr(128+4*i,4)}, v{V_T+1} offset:{i*1024}")
    e("s_waitcnt lgkmcnt(15)")
    A, D, B, C = 24, 25, 26, 28
    e(f"""v_min_f32 v{A}, v{NX}, v{NY}
v_sub_f32 v{B}, v{A}, v{NX}
v_sub_f32 v{C}, v{A}, v{NY}
v_exp_f32 v{B}, v{B}
v_exp_f32 v{C}, v{C}
s_nop 0
v_mul_f32 v{V_LX}, v{V_LX}, v{B}
v_fma_f32 v{V_LX}, v{NY+1}, v{C}, v{V_LX}
v_mov_b32 v{D}, v{V_LX}
s_nop 1
v_permlane32_swap_b32 v{D}, v{V_LX}
s_nop 1
v_add_f32 v{D}, v{D}, v{V_LX}
v_rcp_f32 v{D}, v{D}
s_nop 0
v_mul_f32 v{B}, v{B}, v{D}
v_mul_f32 v{C}, v{C}, v{D}
v_mov_b32 v{B+1}, v{B}
v_mov_b32 v{C+1}, v{C}""")
    for i in range(32): e(f"v_pk_mul_f32 {pk(192+2*i)}, {pk(192+2*i)}, {pk(B)}")
    e("s_waitcnt lgkmcnt(0)")
    for db in range(4):
        for s in range(2):
            t = V_E + 4 * (2*db+s)
            b = 16*db + 8*s
            for i in range(4): e(f"v_pk_fma_f32 {pk(192+b+2*i)}, {pk(128+b+2*i)}, {pk(C)}, {pk(192+b+2*i)}")
            for i in range(4): e(f"v_cvt_pk_bf16_f32 v{t+i}, v{192+b+2*i}, v{192+b+2*i+1}")
            e(f"buffer_store_dwordx4 {vr(t,4)}, v{V_CTX}, {G}, s{S_CTXB} offen offset:{db*1024 + s*512}{NTC}")
    ST("att_end")
    out = k_main_out.Out(k, G, ST, S_M)
    e(f"""s_lshl_b32 s{S_T0}, s{S_P}, 2
s_bfe_u32 s{S_T1}, s{S_H}, 0x20001
s_add_u32 s{S_T0}, s{S_T0}, s{S_T1}
s_lshl_b32 s{S_T0}, s{S_T0}, 5
s_lshr_b32 s{S_T1}, s{S_H}, 3
s_lshl_b32 s{S_T1}, s{S_T1}, 1
s_add_u32 s{S_T0}, s{S_T0}, s{S_T1}
s_and_b32 s{S_T1}, s{S_H}, 1
s_add_u32 s{S_T0}, s{S_T0}, s{S_T1}
s_lshl_b32 s{S_T0}, s{S_T0}, 2
s_add_u32 s{S_T0}, s{S_T0}, {hex(LY.CF_OFF)}
v_mov_b32 v2, s{S_T0}
v_mov_b32 v3, 1""")
    out.setup()
    e(f"s_waitcnt vmcnt(0) lgkmcnt(0)\ns_barrier\ns_cmp_lg_u32 s{S_W}, 0\ns_cbranch_scc1 {L('ncf')}\ns_mov_b64 exec, 1\nbuffer_store_dword v3, v2, {G}, 0 offen sc1\ns_mov_b64 exec, -1")
    k.label("ncf")
    ST("pub")
    e(f"s_cmp_lt_u32 s{S_KB}, 160\ns_cbranch_scc1 {L('conv')}")
    out.prefetchW()
    k.label("fin")
    ST("fin")
    out.gemm(f"s_cmp_ge_u32 s{S_KB}, 160\ns_cbranch_scc1 {L('nyf')}\ns_mov_b64 exec, 1\nbuffer_store_dword v3, v2, {G}, 0 offen sc1\ns_mov_b64 exec, -1\n{L('nyf')}:")
    if Kern.STAMP: e("s_waitcnt vmcnt(0)")
    ST("end")
    k.stamp_flush(SRD_G, LY.STAMP_OFF + 65536 * getattr(gen_main, "idx", 0), 2)
    k.label("end")
    e("s_endpgm")

    k.label("sw2")
    D = V_M
    e(f"""v_mov_b32 v{D}, v{V_LB}
v_mov_b32 v{V_T}, 0
v_mov_b32 v{V_T+1}, 0
v_permlane32_swap_b32 v{D}, v{V_LB}
v_mov_b32 v{V_T+2}, 0
v_mov_b32 v{V_T+3}, 0
v_add_f32 v{D}, v{D}, v{V_LB}
v_rcp_f32 v{D}, v{D}
s_nop 1
v_mov_b32 v{D+1}, v{D}""")
    for db in range(4):
        t = V_E + 16 * (db % 2)
        for i in range(16): e(f"v_accvgpr_read_b32 v{t+i}, a{OY+16*db+i}")
        e(f"v_mfma_f32_32x32x16_bf16 {ar(OY+16*db,16)}, {vr(V_T,4)}, {vr(V_T,4)}, 0")
        for i in range(8): e(f"v_pk_mul_f32 {pk(t+2*i)}, {pk(t+2*i)}, {pk(D)}")
        for s in range(2):
            o = PY + 8 * (db % 2) + 4 * s
            for i in range(4): e(f"v_cvt_pk_bf16_f32 v{o+i}, v{t+8*s+2*i}, v{t+8*s+2*i+1}")
            e(f"buffer_store_dwordx4 {vr(o,4)}, v{V_CTX}, {G}, s{S_CTXB} offen offset:{db*1024 + s*512}{NTC}")
    e(f"s_branch {L('hCa')}")
    k.label("hBx")
    e(f"s_cmp_lt_i32 s{S_J}, s{S_N1M3}\ns_cbranch_scc1 {L('hBr8')}\ns_branch {L('hBr')}")
    k.label("hB")
    if not LC["UKV"]: e(f"s_cmp_eq_u32 s{S_J}, 2\ns_cbranch_scc1 {L('upA')}\ns_cmp_eq_u32 s{S_J}, 6\ns_cbranch_scc1 {L('upB')}\ns_cmp_eq_u32 s{S_J}, 8\ns_cbranch_scc1 {L('upC')}")
    e(f"s_add_u32 s{S_T0}, s{S_J}, 1\ns_cmp_lg_u32 s{S_T0}, s{S_N1}\ns_cbranch_scc1 {L('hB1')}")
    for i in range(32): e(f"v_accvgpr_write_b32 a{QY+i}, v{V_E+i}")
    e(f"v_mov_b32 v{V_LB}, v{V_LY}\nv_mov_b32 v{V_LY}, 0\nv_mov_b32 v{NY}, v{V_NP}\nv_mov_b32 v{NY+1}, v{V_NP}")
    for r in range(1, 8): e(f"v_pk_mov_b32 {pk(NY+2*r)}, {pk(NY)}, {pk(NY)}")
    e(f"""s_lshl_b32 s{S_CTXB}, s{S_RY}, 18
s_xor_b32 s{S_RY}, s{S_RX}, 1
s_lshl_b32 s{S_T0}, s{S_WODD}, 14
v_add_u32 v{V_VA}, s{S_T0}, v{V_VA}""")
    k.label("hB1")
    e(f"s_cmp_lt_u32 s{S_J}, 14\ns_cbranch_scc1 {L('hBr')}")
    e(f"s_cmp_eq_u32 s{S_J}, 15\ns_cbranch_scc1 {L('hB2')}")
    e(f"""s_mov_b32 s{S_KOFF}, s{S_W4K}
s_mov_b32 s{S_KB}, s{S_W4K}
v_mov_b32 v{V_D0+1}, v{V_D0+2}
s_mov_b32 s{SRD_K+2}, 32768
s_mov_b32 s{SRD_V+2}, {16384+8192}
s_and_b32 s{S_T0}, s2, 6
s_bfe_u32 s{S_T1}, s2, 0x10005
s_add_u32 s{S_T0}, s{S_T0}, s{S_T1}
s_lshr_b32 s{S_T1}, s2, 6
s_lshl_b32 s{S_T1}, s{S_T1}, 3
s_add_u32 s{S_T0}, s{S_T0}, s{S_T1}
s_lshl_b32 s{S_T0}, s{S_T0}, 2
s_bfe_u32 s{S_T1}, s2, 0x20003
s_add_u32 s{S_T0}, s{S_T0}, s{S_T1}
s_mul_i32 s{S_T0}, s{S_T0}, 40960
s_add_u32 s{SRD_K}, s78, s{S_T0}
s_addc_u32 s{SRD_K+1}, s79, 0
s_add_u32 s{SRD_V}, s{SRD_K}, 16384
s_addc_u32 s{SRD_V+1}, s{SRD_K+1}, 0
s_cmp_lg_u32 s{S_W}, 0
s_cbranch_scc1 {L('hBr')}
v_mov_b32 v{V_T}, 128
v_mov_b32 v{V_T+1}, 1
s_mov_b64 exec, 1
global_atomic_add v{V_POLL}, v{V_T}, v{V_T+1}, s[84:85] sc0 sc1
s_mov_b64 exec, -1
s_branch {L('hBr')}""")
    k.label("hB2")
    e(f"""s_cmp_lg_u32 s{S_W}, 0
s_cbranch_scc1 {L('hB3')}
v_mov_b32 v{V_T}, {SCR}
s_mov_b64 exec, 1
ds_write_b32 v{V_T}, v{V_POLL}
s_mov_b64 exec, -1""")
    k.label("hB3")
    e(f"s_getpc_b64 s[{SRD_K}:{SRD_K+1}]")
    k.label("pc3")
    e(f"""s_sub_u32 s{SRD_K}, s{SRD_K}, {L('pc3')}-main_kernel
s_subb_u32 s{SRD_K+1}, s{SRD_K+1}, 0
s_mov_b32 s{SRD_K+2}, all_code_end-main_kernel
s_lshr_b32 s{S_T0}, s2, 3
s_and_b32 s{S_T0}, s{S_T0}, 3
s_lshl_b32 s{S_T0}, s{S_T0}, 15
s_add_u32 s{S_KOFF}, s{S_T0}, s{S_W4K}""")
    e(f"""s_sub_u32 s{S_T0}, 32, s{S_N1}
s_add_u32 s{S_T0}, s{S_T0}, s{S_WODD}
s_lshl_b32 s{S_T0}, s{S_T0}, 1
s_sub_u32 s{S_T0}, s{S_T0}, s{S_RX}""")
    mask_code(SX, "mX")
    e(f"s_branch {L('hBr')}")
    UK, UV, UW = QL, QL + 14336, QL + 24576
    k.label("upA")
    e(f"""s_and_b32 s{S_T2}, s2, 7
s_lshl_b32 s{S_T2}, s{S_T2}, 5
s_lshr_b32 s{S_T0}, s2, 3
s_add_u32 s{S_T2}, s{S_T2}, s{S_T0}
s_mul_i32 s{S_T2}, s{S_T2}, 10240
s_cmp_eq_u32 s{S_T2}, 0
s_cselect_b32 s{S_T0}, 0, 3840
s_sub_u32 s{S_T1}, s{S_T2}, s{S_T0}
s_add_u32 s74, s{S_T0}, 10240
s_mov_b32 s75, 0x00020000
s_mul_i32 s{S_T0}, s{S_W}, 3584
s_add_u32 m0, s{S_T0}, {UK}
s_add_u32 s72, s80, s{S_T1}
s_addc_u32 s73, s81, 0""")
    for i in range(4):
        if i == 3: e("s_mov_b32 exec_hi, 0")
        e(f"buffer_load_dwordx4 v{V_D0}, s[72:75], s{S_T0} offen offset:{i*1024} lds")
    e(f"""s_mov_b32 s74, 10240
s_mul_i32 s{S_T0}, s{S_W}, 2560
s_add_u32 m0, s{S_T0}, {UV}
s_add_u32 s72, s82, s{S_T2}
s_addc_u32 s73, s83, 0
buffer_load_dwordx4 v{V_D0}, s[72:75], s{S_T0} offen offset:2048 lds
s_mov_b32 exec_hi, -1
buffer_load_dwordx4 v{V_D0}, s[72:75], s{S_T0} offen lds
buffer_load_dwordx4 v{V_D0}, s[72:75], s{S_T0} offen offset:1024 lds
s_mov_b32 s74, 5120
s_mul_i32 s{S_T0}, s{S_W}, 1280
s_add_u32 m0, s{S_T0}, {UW}
s_mov_b32 s72, s78
s_mov_b32 s73, s79
buffer_load_dwordx4 v{V_D0}, s[72:75], s{S_T0} offen lds
s_mov_b64 exec, 0xffff
buffer_load_dwordx4 v{V_D0}, s[72:75], s{S_T0} offen offset:1024 lds
s_mov_b64 exec, -1
s_load_dwordx4 s[80:83], s[0:1], 80
s_load_dwordx2 s[78:79], s[0:1], 40
s_branch {L('hBx')}""")
    k.label("upB")
    AQ, AH, AV, AW, AO = 16, 17, 18, 19, 3
    e(f"""s_and_b32 s{S_T2}, s2, 7
s_lshl_b32 s{S_T2}, s{S_T2}, 5
s_lshr_b32 s{S_T0}, s2, 3
s_add_u32 s{S_T2}, s{S_T2}, s{S_T0}
v_min_u32 v{AO}, 39, v1
s_mul_i32 s{S_T0}, s{S_W}, 40
v_add_u32 v{AO}, s{S_T0}, v{AO}
v_lshlrev_b32 v{AV}, 3, v{AO}
v_lshlrev_b32 v{AW}, 5, v{AO}
v_add_u32 v{AW}, {UW}, v{AW}
s_cmp_eq_u32 s{S_T2}, 0
s_cselect_b32 s{S_T0}, 0, 3840
s_cselect_b32 s{S_T1}, 10240, 0
s_add_u32 s{S_T0}, s{S_T0}, {UK}
s_add_u32 s{S_T1}, s{S_T1}, {UK}
v_add_u32 v{AQ}, s{S_T0}, v{AV}
v_add_u32 v{AH}, s{S_T1}, v{AV}
v_add_u32 v{AV}, {UV}, v{AV}
v_lshlrev_b32 v{AO}, 14, v{AO}
s_lshl_b32 s{S_T0}, s{S_T2}, 4
s_add_u32 s{S_T0}, s{S_T0}, {hex(LY.UT_OFF)}""")
    KP, WP, VP, WR, UO, AC = 160, 182, 96, 20, 24, 190
    for d in range(2):
        e(f"ds_read_b128 {vr(WR,4)}, v{AW} offset:{16*d}")
        for r in range(3): e(f"ds_read_b32 v{KP+2*r+1}, v{AH} offset:{r*1280 + 4*d}")
        for r in range(8): e(f"ds_read_b32 v{KP+2*(3+r)+1}, v{AQ} offset:{r*1280 + 4*d}")
        for r in range(8): e(f"ds_read_b32 v{VP+2*r+1}, v{AV} offset:{r*1280 + 4*d}")
        e("s_waitcnt lgkmcnt(8)")
        for j in range(4):
            for cc in range(2):
                src = WR + 2*cc + (j >> 1)
                e(f"v_and_b32 v{WP+2*j+cc}, s{S_M}, v{src}" if j & 1 else f"v_lshlrev_b32 v{WP+2*j+cc}, 16, v{src}")
        for r in range(11):
            e(f"v_lshlrev_b32 v{KP+2*r}, 16, v{KP+2*r+1}\nv_and_b32 v{KP+2*r+1}, s{S_M}, v{KP+2*r+1}")
        e("s_waitcnt lgkmcnt(0)")
        for r in range(8):
            e(f"v_lshlrev_b32 v{VP+2*r}, 16, v{VP+2*r+1}\nv_and_b32 v{VP+2*r+1}, s{S_M}, v{VP+2*r+1}")
        for s_ in range(8):
            ac = AC if s_ % 2 == 0 else WR
            e(f"v_pk_mul_f32 {pk(ac)}, {pk(WP+6)}, {pk(KP+2*s_)}")
            for tt in range(1, 4): e(f"v_pk_fma_f32 {pk(ac)}, {pk(WP+2*(3-tt))}, {pk(KP+2*(s_+tt))}, {pk(ac)}")
            e(f"v_pk_mul_f32 {pk(VP+2*s_)}, {pk(ac)}, {pk(VP+2*s_)}")
        for cc in range(2):
            for sp in range(4):
                e(f"v_cvt_pk_bf16_f32 v{UO+4*cc+sp}, v{VP+2*(7-2*sp)+cc}, v{VP+2*(6-2*sp)+cc}")
            e(f"buffer_store_dwordx4 {vr(UO+4*cc,4)}, v{AO}, {G}, s{S_T0} offen{UST}")
            e(f"s_add_u32 s{S_T0}, s{S_T0}, 4096")
    e(f"s_branch {L('hBx')}")
    k.label("upC")
    e(f"""s_cmp_lg_u32 s{S_W}, 0
s_cbranch_scc1 {L('hBx')}
v_mov_b32 v{V_T}, 128
v_mov_b32 v{V_T+1}, 0x10000
s_mov_b64 exec, 1
global_atomic_add v{V_T}, v{V_T+1}, s[84:85] sc1
s_mov_b64 exec, -1
s_branch {L('hBx')}""")
    S_CH, S_CL, S_CO, S_CD = 4, 5, 6, 7
    k.label("cvld")
    e(f"""s_lshl_b32 s{S_CH}, s{S_KB}, 2
s_add_u32 s{S_CH}, s{S_CH}, s{S_W}
s_mul_i32 s{S_CL}, s{S_W}, {CH}
s_lshl_b32 s{S_CO}, s{S_CH}, 12
s_mov_b32 s12, s80
s_mov_b32 s13, s81
s_mov_b32 s14, {640*4096}
s_mov_b32 s15, 0x00020000
s_lshr_b32 s{S_T0}, s{S_CH}, 1
s_lshl_b32 s{S_T0}, s{S_T0}, 2
s_load_dword s{S_CD}, s[82:83], s{S_T0}""")
    for s_ in range(1):
        e(f"s_add_u32 m0, s{S_CL}, {s_*CS + 32}\ns_add_u32 s{S_T0}, s{S_CO}, {2*s_}")
        for i in range(4):
            e(f"buffer_load_dwordx4 v{V_D0}, s[12:15], s{S_T0} offen offset:{i*1024} lds")
    e(f"s_add_u32 m0, s{S_CL}, {UB + 512}\ns_add_u32 s{S_T0}, s{S_CO}, {hex(LY.UT_OFF)}")
    for i in range(4):
        e(f"buffer_load_dwordx4 v{V_D0}, {G}, s{S_T0} offen offset:{i*1024} sc1 lds")
    e(f"""v_lshrrev_b32 v5, 4, v1
v_and_b32 v6, 15, v1
v_add_u32 v7, v5, v6
v_subrev_u32 v7, 16, v7
v_cmp_gt_i32 vcc, 0, v7
v_lshlrev_b32 v7, 1, v7
v_add_u32 v7, s{S_CO}, v7
v_mov_b32 v8, 0x7ffffff0
v_cndmask_b32 v7, v7, v8, vcc
buffer_load_ushort v9, v7, s[12:15], 0 offen
s_branch {L('cvldr')}""")
    k.label("uspin")
    e(f"s_mov_b32 s{S_T1}, 0x100000\nv_mov_b32 v5, 128")
    k.label("uspl")
    e(f"""global_load_dword v6, v5, s[84:85] sc1
s_waitcnt vmcnt(0)
v_readfirstlane_b32 s{S_T0}, v6
s_lshr_b32 s{S_T0}, s{S_T0}, 16
s_cmp_ge_u32 s{S_T0}, 256
s_cbranch_scc1 {L('uok')}
s_sub_u32 s{S_T1}, s{S_T1}, 1
s_cmp_eq_u32 s{S_T1}, 0
s_cbranch_scc1 {L('uok')}
s_sleep 8
s_branch {L('uspl')}""")
    k.label("conv")
    k.lg = []
    e(f"""v_add_u32 v16, s{S_CL}, v{V_D0}
v_mov_b32 v14, 0
v_mov_b32 v15, 0
v_lshlrev_b32 v13, 3, v1
v_add_u32 v13, s{S_CL}, v13
ds_write_b64 v13, v[14:15] offset:{UB}""")
    for c in range(4):
        e(f"ds_read_b128 {vr(64+8*c,4)}, v16 offset:{32 + c*1024}\nds_read_b64 {vr(68+8*c,2)}, v16 offset:{48 + c*1024}")
    e(f"""v_lshrrev_b32 v10, 1, v5
v_sub_u32 v10, v6, v10
v_lshlrev_b32 v10, 5, v10
v_and_b32 v11, 1, v5
v_lshlrev_b32 v12, 4, v11
v_add_u32 v10, v10, v12
v_add_u32 v10, s{S_CL}, v10
v_add_u32 v10, {UB + 512 - 448}, v10
v_mul_u32_u24 v17, {CS}, v5
v_lshlrev_b32 v13, 1, v6
v_add_u32 v17, v17, v13
v_add_u32 v17, s{S_CL}, v17
ds_write_b16 v17, v9
s_waitcnt lgkmcnt(1)""")
    for c in range(4):
        d = 64 + 8*c; x = 96 + 12*c
        for i in range(4): e(f"v_alignbit_b32 v{x+i}, v{d+i+1}, v{d+i}, 16")
        e(f"ds_write_b128 v16, {vr(x,4)} offset:{CS + 32 + c*1024}")
        for i in range(4): e(f"v_mov_b32 v{x+4+i}, v{d+1+i}")
        e(f"ds_write_b128 v16, {vr(x+4,4)} offset:{2*CS + 32 + c*1024}")
        for i in range(4): e(f"v_alignbit_b32 v{x+8+i}, v{d+i+2}, v{d+i+1}, 16")
        e(f"ds_write_b128 v16, {vr(x+8,4)} offset:{3*CS + 32 + c*1024}")
    su = f"""v_add_u32 v12, 1, v6
v_and_b32 v13, 3, v12
v_sub_u32 v12, v12, v13
v_lshrrev_b32 v14, 1, v5
v_lshlrev_b32 v14, 4, v14
v_add_u32 v12, v12, v14
v_lshlrev_b32 v14, 3, v11
v_sub_u32 v12, v12, v14
v_add_u32 v12, 8, v12
v_lshlrev_b32 v12, 1, v12
v_mul_u32_u24 v13, {CS}, v13
v_add_u32 v12, v12, v13
v_add_u32 v12, s{S_CL}, v12
v_lshlrev_b32 v13, 5, v6
v_lshrrev_b32 v14, 1, v5
v_lshlrev_b32 v14, 4, v14
v_add_u32 v13, v13, v14
v_xor_b32 v14, 1, v11
v_lshlrev_b32 v14, 3, v14
v_add_u32 v13, v13, v14
v_add_u32 v13, s{S_CL}, v13
v_lshlrev_b32 v14, 5, v6
v_lshlrev_b32 v15, 3, v5
v_add_u32 v14, v14, v15
s_and_b32 s{S_T0}, s{S_CH}, 1
s_cmp_eq_u32 s{S_T0}, 0
s_cselect_b32 s{S_T0}, 16, 0
s_lshl_b32 s{S_CD}, s{S_CD}, s{S_T0}
s_and_b32 s{S_CD}, s{S_CD}, 0xffff0000
s_add_u32 s{S_T1}, s{S_CO}, {hex(LY.YT_OFF)}""".split("\n")
    PRE = [8*n + 7 - m for m in range(4) for n in range(8)]
    for i, x in enumerate(su):
        e(x)
        k.lds_op(f"ds_read_b128 {ar(4*PRE[i],4)}, v10 offset:{64*PRE[i]}", ("B", PRE[i]))
    PRE = PRE[:len(su)]
    CACC, AF, UE = 64, 96, 160
    NA = 12; PF = 4
    loaded = set(PRE)
    def needB(mu): return [8*n - mu + 7 for n in range(8) if 8*(n+1) > mu]
    def fetch(mu):
        if mu > 63 or ("A", mu) in loaded: return
        loaded.add(("A", mu))
        r = AF + 4 * (mu % NA)
        k.lds_op(f"ds_read_b64 {vr(r,2)}, v12 offset:{64*mu}", ("A", mu))
        k.lds_op(f"ds_read_b64 {vr(r+2,2)}, v12 offset:{64*mu + 8}", ("A", mu))
        for d in needB(mu):
            if d not in loaded:
                loaded.add(d); k.lds_op(f"ds_read_b128 {ar(4*d,4)}, v10 offset:{64*d}", ("B", d))
    def fin_tile(n):
        a = CACC + 4*n; u = UE + 2*n; t = 192 + 8 * (n % 4)
        out = f"""v_and_b32 v{t}, s{S_M}, v{u+1}
v_lshlrev_b32 v{t+1}, 16, v{u+1}
v_and_b32 v{t+2}, s{S_M}, v{u}
v_lshlrev_b32 v{t+3}, 16, v{u}""".split("\n")
        for i in range(4): out.append(f"v_fma_f32 v{t+i}, s{S_CD}, v{t+i}, v{a+i}")
        out += [f"v_cvt_pk_bf16_f32 v{t+6}, v{t}, v{t+1}", f"v_cvt_pk_bf16_f32 v{t+7}, v{t+2}, v{t+3}"]
        out.append(f"buffer_store_dwordx2 {vr(t+6,2)}, v14, {G}, s{S_T1} offen offset:{n*512} sc1")
        return out
    def fetchA(mu):
        if mu > 63 or ("A", mu) in loaded: return
        loaded.add(("A", mu))
        r = AF + 4 * (mu % NA)
        k.lds_op(f"ds_read_b64 {vr(r,2)}, v12 offset:{64*mu}", ("A", mu))
        k.lds_op(f"ds_read_b64 {vr(r+2,2)}, v12 offset:{64*mu + 8}", ("A", mu))
    restB = [8*n + 7 - m for m in range(8) for n in range(8) if 8*n + 7 - m not in loaded]
    for mu in range(3): fetchA(mu)
    pend = []; nst = [0]
    wpf = ["\n".join(x[1] if isinstance(x, tuple) else x for x in it) for s_ in range(3) for it in out.dmaW(s_)]
    for mu in range(64):
        if mu >= 10 and mu % 2 == 0 and wpf: e(wpf.pop(0))
        if mu == 46:
            assert not wpf
            e(out.poll()); nst[0] = 0
        ST(f"c{mu}")
        assert all(d not in restB for d in needB(mu))
        k.wait(lgtags=[("A", mu)] + [("B", d) for d in needB(mu)] + (["U"] if mu == 14 else []))
        first = True
        for n in range(8):
            if 8*(n+1) > mu:
                c = "0" if mu == 0 else vr(CACC+4*n, 4)
                e(f"v_mfma_f32_16x16x32_bf16 {vr(CACC+4*n,4)}, {vr(AF+4*(mu%NA),4)}, {ar(4*(8*n-mu+7),4)}, {c}")
                if first:
                    for q in range(mu + 1, mu + (3 if mu < 40 else 8) + 1): fetchA(q)
                    first = False
                elif restB:
                    d = restB.pop(0)
                    k.lds_op(f"ds_read_b128 {ar(4*d,4)}, v10 offset:{64*d}", ("B", d))
                elif pend:
                    x = pend.pop(0); e(x)
                    if "buffer_store" in x: nst[0] += 1
        if mu == 9:
            for n in range(8):
                k.lds_op(f"ds_read_b64 {vr(UE+2*n,2)}, v13 offset:{UB + 512 + n*512}", "U")
        if mu >= 14 and (mu - 2) % 8 == 0 or mu == 14:
            for n in ([0] if mu == 14 else [(mu - 2) // 8 - 1]): pend += fin_tile(n)
    e("s_nop 7")
    rest = pend + fin_tile(7)
    for x in rest: e(x)
    e(f"s_waitcnt vmcnt({nst[0] + sum('buffer_store' in x for x in rest)})")
    e(f"""s_lshl_b32 s{S_T0}, s{S_CH}, 2
s_add_u32 s{S_T0}, s{S_T0}, {hex(LY.FL_OFF)}
v_mov_b32 v2, s{S_T0}
s_branch {L('fin')}""")
    assert not wpf
    out.outofline()
    k.label("spin")
    e(f"s_mov_b32 s{S_T1}, 0x100000")
    k.label("spinl")
    e(f"""buffer_load_dword v{V_POLL}, v{V_DBG}, {G}, 0 offen sc1
s_waitcnt vmcnt(0)
v_cmp_ne_u32 vcc, 1, v{V_POLL}
s_sub_u32 s{S_T1}, s{S_T1}, 1
s_cmp_eq_u32 s{S_T1}, 0
s_cbranch_scc1 {L('spinx')}
s_cbranch_vccz {L('spinx')}
s_sleep 2
s_branch {L('spinl')}""")
    k.label("spinx")
    k2load("b")
    e(f"s_branch {L('spinr')}")
    k.label("slowpub")
    e(f"s_mov_b32 s{S_T2}, 0x100000")
    k.label("slowl")
    e(f"""global_load_dword v3, v7, s[{P_DBG}:{P_DBG+1}] sc1
s_waitcnt vmcnt(0)
v_readfirstlane_b32 s{S_T0}, v3
s_cmp_ge_u32 s{S_T0}, 8
s_cbranch_scc1 {L('slowx')}
s_sub_u32 s{S_T2}, s{S_T2}, 1
s_cmp_eq_u32 s{S_T2}, 0
s_cbranch_scc1 {L('slowx')}
s_sleep 8
s_branch {L('slowl')}""")
    k.label("slowx")
    e(f"s_branch {L('noat')}")
    for Z, lab in redo_sites:
        r = regs(Z); S, N, O, Lr = r["S"], r["N"], r["O"], r["L"]
        k.label(lab)
        flat(tile_max_items(S))
        e(f"v_max_f32 v{V_M}, 0, v{V_M}\nv_sub_f32 v{N}, v{N}, v{V_M}\nv_sub_f32 v{V_M+1}, 0, v{V_M}\nv_exp_f32 v{V_M+1}, v{V_M+1}")
        for i in range(32): e(f"v_sub_f32 v{S+i}, v{S+i}, v{V_M}")
        for i in range(1, 16): e(f"v_mov_b32 v{N+i}, v{N}")
        e(f"v_mul_f32 v{Lr}, v{Lr}, v{V_M+1}")
        for r0 in range(0, 64, 8):
            for i in range(8): e(f"v_accvgpr_read_b32 v{V_X+i}, a{O+r0+i}")
            for i in range(8): e(f"v_mul_f32 v{V_X+i}, v{V_X+i}, v{V_M+1}")
            for i in range(8): e(f"v_accvgpr_write_b32 a{O+r0+i}, v{V_X+i}")
        for w, ins in sm_core(Z):
            for x in ins: e(x)
        e(f"s_nop 1\ns_branch {L(lab + 'r')}")
```

```python
from asmlib import *
import layout as LY
import os, sys
STG = 20480
RB0 = 0
NS = 8
CD = 8
YROW = 80
XSZ = 10240
S_W = 44
S_RB, S_CB, S_KQ, S_TILE = 45, 46, 47, 48
SW = "s[16:19]"; SX = "s[24:27]"; SO = "s[28:31]"
S_WS, S_WL, S_CS, S_A, S_R0 = 20, 21, 22, 23, 49
T0, T1 = 58, 59

class Out:
    def __init__(self, k, G, ST, S_M):
        self.k, self.G, self.ST, self.S_M = k, G, ST, S_M
    def krow(self, s): return (((s >> 1) & 1) + 8 * (s >> 2)) * 128 + (s & 1) * 64
    def ps(self, s): return (s + 5) % NS
    def dmaW(self, s):
        b = self.ps(s) * STG
        out = [[f"s_add_u32 m0, s{S_WL}, {b}", f"s_add_u32 s{S_A}, s{S_WS}, {self.krow(s)*1280}",
                ("vm", f"buffer_load_dwordx4 v20, {SW}, s{S_A} offen lds", ("W", s))]]
        for i in range(1, 4):
            out.append([("vm", f"buffer_load_dwordx4 v{20+i}, {SW}, s{S_A} offen offset:{i*1024} lds", ("W", s))])
        out.append([f"s_add_u32 m0, s{S_WL}, {b + 4096}", "s_nop 0", ("vm", f"buffer_load_dwordx4 v24, {SW}, s{S_A} offen lds", ("W", s))])
        return out
    def cfr(self, s, ks, tb): return 16 * (s % CD) + 8 * ks + 4 * tb
    def ldC(self, s):
        out = []
        for ks in range(2):
            for tb in range(2):
                ld = ("vm", f"buffer_load_dwordx4 {ar(self.cfr(s,ks,tb),4)}, v{19 if tb else 25}, {self.G}, s{S_CS} offen offset:{((s&1)*2+ks)*1024} sc1", ("C", s))
                out.append(([f"s_mov_b32 s{S_CS}, {(self.krow(s) // 128) * 4096}"] if ks == 0 and tb == 0 else []) + [ld])
        return out
    def emit_item(self, it):
        for x in it:
            if isinstance(x, tuple) and x[0] == "lg" and "x_gnor" in sys.argv: pass
            elif isinstance(x, tuple) and x[0] == "lg": self.k.lds_op(x[1], x[2])
            elif isinstance(x, tuple) and "x_gnow" in sys.argv and x[1].endswith("lds"): pass
            elif isinstance(x, tuple) and "x_gnoc" in sys.argv and " a[" in x[1]: pass
            elif isinstance(x, tuple): self.k.vmem(x[1], x[2])
            else: self.k.e(x)
    def setup(self):
        e = self.k.e
        e(f"""s_load_dwordx2 s[24:25], s[0:1], 0
s_load_dwordx2 s[28:29], s[0:1], 104
s_mov_b32 s16, s78
s_mov_b32 s17, s79
s_and_b32 s{T0}, s2, 7
s_lshr_b32 s{S_KQ}, s{T0}, 1
s_lshr_b32 s{T1}, s2, 3
s_and_b32 s{S_RB}, s{T0}, 1
s_lshl_b32 s{S_RB}, s{S_RB}, 3
s_and_b32 s{T0}, s{T1}, 7
s_add_u32 s{S_RB}, s{S_RB}, s{T0}
s_lshr_b32 s{S_CB}, s{T1}, 3
s_lshl_b32 s{S_TILE}, s{S_RB}, 2
s_add_u32 s{S_TILE}, s{S_TILE}, s{S_CB}
s_lshl_b32 s{T0}, s{S_RB}, 3
s_lshl_b32 s{T1}, s{S_W}, 1
s_add_u32 s{T0}, s{T0}, s{T1}
s_lshl_b32 s{T0}, s{T0}, 17
s_lshl_b32 s{T1}, s{S_KQ}, 13
s_add_u32 s{T0}, s{T0}, s{T1}
s_add_u32 s{T0}, s{T0}, {hex(LY.CTX_OFF)}
v_add_u32 v25, s{T0}, v4
v_add_u32 v19, 0x20000, v25""")
        for i in range(5):
            e(f"""v_add_u32 v26, {64*i}, v1
v_mul_u32_u24 v27, 0xccd, v26
v_lshrrev_b32 v27, 16, v27
v_mul_u32_u24 v28, 20, v27
v_sub_u32 v28, v26, v28
v_bfe_u32 v29, v27, 2, 1
v_lshlrev_b32 v29, 1, v29
v_xor_b32 v28, v28, v29
v_mul_u32_u24 v27, 0x500, v27
v_lshl_add_u32 v{20+i}, v28, 4, v27""")
            if i & 3: e(f"v_subrev_u32 v{20+i}, {(i&3)*1024}, v{20+i}")
        e(f"""s_lshl_b32 s{S_WS}, s{S_KQ}, 8
s_lshl_b32 s{T0}, s{S_W}, 4
s_add_u32 s{S_WS}, s{S_WS}, s{T0}
s_mul_i32 s{S_WS}, s{S_WS}, 1280
s_mul_i32 s{T0}, s{S_CB}, 320
s_add_u32 s{S_WS}, s{S_WS}, s{T0}
s_mul_i32 s{S_WL}, s{S_W}, 5120
s_add_u32 s{S_WL}, s{S_WL}, {RB0}
s_mov_b32 s18, {4096*1280}
s_mov_b32 s19, 0x00020000
v_lshrrev_b32 v26, 5, v1
v_lshlrev_b32 v26, 4, v26
v_bfe_u32 v28, v1, 4, 1
v_lshl_add_u32 v26, v28, 2, v26
v_bfe_u32 v29, v1, 2, 2
v_add_u32 v26, v26, v29
v_mul_u32_u24 v26, 320, v26
v_and_b32 v29, 3, v1
v_lshl_add_u32 v26, v29, 3, v26
v_add_u32 v26, {RB0}, v26
v_lshlrev_b32 v28, 5, v28
v_sub_u32 v27, v26, v28
v_add_u32 v27, 32, v27
v_add_u32 v26, v26, v28
v_add_u32 v28, {3*STG}, v26
v_add_u32 v29, {3*STG}, v27
v_add_u32 v30, {6*STG}, v26
v_add_u32 v31, {6*STG}, v27""")
        e(f"""s_sub_u32 s{T0}, 15, s{S_RB}
s_min_u32 s{T0}, s{T0}, s{S_RB}
s_lshl_b32 s{T0}, s{T0}, 2
s_add_u32 s{T0}, s{T0}, s{S_KQ}
s_lshl_b32 s{T0}, s{T0}, 7
s_add_u32 s{T0}, s{T0}, {hex(LY.CF_OFF)}
v_min_u32 v18, 7, v1
v_lshlrev_b32 v18, 2, v18
v_add_u32 v18, s{T0}, v18""")
    def poll(self):
        return f"buffer_load_dword v8, v18, {self.G}, 0 offen sc1"
    def prefetchW(self):
        self.k.vm = []
        for s in range(3):
            if s == 2: self.k.e(self.poll())
            for it in self.dmaW(s): self.emit_item(it)
        self.k.e("s_waitcnt vmcnt(5)")
    def gemm(self, hook):
        k, G, ST = self.k, self.G, self.ST
        e = k.e; L = k.L; M = f"s{self.S_M}"
        e(f"v_cmp_ne_u32 vcc, 1, v8\ns_mov_b32 s{T1}, 0x100000\ns_cbranch_vccz {L('cok')}")
        k.label("csp")
        e(f"""buffer_load_dword v8, v18, {G}, 0 offen sc1
s_waitcnt vmcnt(0)
v_cmp_ne_u32 vcc, 1, v8
s_sub_u32 s{T1}, s{T1}, 1
s_cmp_eq_u32 s{T1}, 0
s_cbranch_scc1 {L('cok')}
s_cbranch_vccz {L('cok')}
s_sleep 4
s_branch {L('csp')}""")
        k.label("cok")
        ST("g0")
        k.vm = []
        for s in range(3):
            for it in self.ldC(s): self.emit_item(it)
        e("s_waitcnt vmcnt(12) lgkmcnt(0)")
        e(hook)
        e("s_barrier")
        NW0 = 3
        cnext = [3]
        ACC = 32; WFR = 112
        XR, GR = 8, 2
        def reads(T):
            s, ks = T >> 1, T & 1
            slot = self.ps(s)
            out = []
            for nb in range(10):
                for h in range(2):
                    off = (slot % 3) * STG + ks * 10240 + h * 2560 + (nb & ~1) * 32
                    out.append([("lg", f"ds_read_b64_tr_b16 {vr(WFR+40*(T&1)+4*nb+2*h,2)}, v{26 + (nb & 1) + 2*(slot // 3)} offset:{off}", (T, nb))])
            return out
        OWN = 0; YL = 20480
        XF = LY.FL_OFF + 4096
        k.lg = []
        for it in reads(0): self.emit_item(it)
        wnext = [NW0]; wfree = [-1]
        BP = 4
        for T in range(32):
            s, ks = T >> 1, T & 1
            ld = []
            if T % BP == BP - 1 and T < 31:
                k.wait(vmtags=[("W", q) for q in range(s + 1, s + 1 + BP // 2)] + (["yp"] if T == 27 else []))
                if T == 27:
                    e(f"""v_and_b32 v192, v192, v193
v_and_b32 v194, v194, v195
v_and_b32 v192, v192, v194
v_cmp_ne_u32 vcc, 1, v192
s_cbranch_vccnz {L('yspin')}""")
                    k.label("yok")
                e("s_barrier")
                wfree[0] = s - 1
            k.wait(vmtags=[("C", s)] + (["x"] if T == 30 else []))
            if (ks == 1 or T == 0) and wnext[0] < 16 and wnext[0] - NS <= wfree[0]:
                ld += self.dmaW(wnext[0]); wnext[0] += 1
            if ks == 0 and cnext[0] < min(16, s + CD): ld += self.ldC(cnext[0]); cnext[0] += 1
            if T == 22:
                ld += [[x] for x in f"""v_min_u32 v7, 39, v1
v_lshlrev_b32 v7, 4, v7
s_mul_i32 s{T0}, s{S_CB}, 640
s_add_u32 s{T0}, s{T0}, {hex(LY.FL_OFF)}
v_add_u32 v7, s{T0}, v7""".split("\n")]
            if T == 24:
                ld.append([("vm", f"buffer_load_dwordx4 v[192:195], v7, {G}, 0 offen sc1", "yp")])
            if T == 25:
                ld += [[x] for x in f"""s_lshl_b32 s{S_R0}, s{S_RB}, 7
s_lshl_b32 s{T0}, s{S_KQ}, 5
s_add_u32 s{S_R0}, s{S_R0}, s{T0}
s_lshr_b32 s{T0}, s{S_W}, 1
s_lshl_b32 s{T0}, s{T0}, 4
s_add_u32 s{T0}, s{T0}, s{S_R0}
v_and_b32 v20, 15, v1
v_add_u32 v20, s{T0}, v20
v_lshlrev_b32 v21, 2, v20
v_mul_u32_u24 v20, 0x500, v20
v_lshrrev_b32 v22, 4, v1
v_lshlrev_b32 v22, 3, v22
s_and_b32 s{T0}, s{S_W}, 1
s_lshl_b32 s{T1}, s{S_CB}, 1
s_add_u32 s{T0}, s{T0}, s{T1}
s_mul_i32 s{T0}, s{T0}, 160
v_add3_u32 v20, v20, v22, s{T0}
s_mov_b32 s57, {hex(LY.G_OFF)}""".split("\n")]
            if T == 26:
                ld += [[f"s_mov_b32 s26, {2048*1280}", "s_mov_b32 s27, 0x00020000"], [f"s_mov_b32 s30, {2048*1280}", "s_mov_b32 s31, 0x00020000"]]
                for i in range(5):
                    ld.append([("vm", f"buffer_load_dwordx2 {vr(XR+2*i,2)}, v20, {SX}, 0 offen offset:{i*32}", "x")])
                ld.append([("vm", f"buffer_load_dword v{GR}, v21, {G}, s57 offen sc1", "x")])
            if T == 27:
                ld += [[x] for x in f"""v_lshrrev_b32 v5, 2, v1
v_mul_u32_u24 v5, {YROW}, v5
v_and_b32 v6, 3, v1
v_lshlrev_b32 v6, 3, v6
s_lshr_b32 s{T0}, s{S_W}, 1
s_lshl_b32 s{T0}, s{T0}, 5
s_and_b32 s{T1}, s{S_W}, 1
s_mul_i32 s{T1}, s{T1}, {80*YROW}
s_add_u32 s{T0}, s{T0}, s{T1}
s_add_u32 s{T0}, s{T0}, {YL}
v_add3_u32 v5, v5, v6, s{T0}
v_lshrrev_b32 v23, 2, v0
v_and_b32 v6, 3, v0
s_mul_i32 s{T0}, s{S_CB}, 160
v_add_u32 v22, s{T0}, v23
v_lshlrev_b32 v22, 12, v22
v_lshlrev_b32 v6, 4, v6
s_lshl_b32 s{T0}, s{S_R0}, 1
s_add_u32 s{T0}, s{T0}, {hex(LY.YT_OFF)}
v_add3_u32 v22, v22, v6, s{T0}
v_mul_u32_u24 v23, {YROW}, v23
v_add_u32 v23, v23, v6
v_add_u32 v23, {YL}, v23""".split("\n")]
            if T == 28:
                ld += [[x] for x in f"""s_mov_b32 s60, 0x40000
s_mov_b32 s61, 0x80000
s_lshl_b32 s{T1}, s{S_TILE}, 7
s_add_u32 s{T1}, s{T1}, {hex(XF)}
s_lshl_b32 s{T0}, s{S_KQ}, 2
s_add_u32 s{T0}, s{T0}, s{T1}
v_mov_b32 v24, s{T0}
v_mov_b32 v25, 1
v_min_u32 v19, 3, v1
v_lshlrev_b32 v19, 2, v19
v_add_u32 v19, s{T1}, v19
v_lshlrev_b32 v18, 3, v1
s_mul_i32 s{T0}, s{S_W}, 5120
v_add_u32 v21, s{T0}, v4""".split("\n")]
                for i in range(3):
                    ld.append([("vm", f"buffer_load_dwordx4 {vr(192+4*i,4)}, v22, {G}, {['0','s60','s61'][i]} offen sc1", "y")])
            if T == 29:
                ld += [[x] for x in f"""s_lshl_b32 s{T0}, s{S_TILE}, 2
s_add_u32 s55, s{T0}, s{S_W}
s_lshl_b32 s55, s55, 2
s_add_u32 s55, s55, s{S_KQ}
s_mul_i32 s55, s55, {XSZ}
s_add_u32 s55, s55, {hex(LY.XCH_OFF)}
s_add_u32 s54, s{T0}, s{S_KQ}
s_mul_i32 s54, s54, {4*XSZ}
s_mul_i32 s{T1}, s{S_W}, 2560
s_add_u32 s54, s54, s{T1}
s_add_u32 s54, s54, {hex(LY.XCH_OFF)}""".split("\n")]
                for i in range(3):
                    ld += [[f"s_add_u32 s{51+i}, s{S_KQ}, {i+1}", f"s_and_b32 s{51+i}, s{51+i}, 3"], [f"s_mul_i32 s{51+i}, s{51+i}, {XSZ}", f"s_add_u32 s{51+i}, s{51+i}, s54"]]
            ms = []
            for nb in range(10):
                for tb in range(2):
                    a = ACC + 4 * (tb*10 + nb)
                    ms.append(f"v_mfma_f32_16x16x32_bf16 {vr(a,4)}, {vr(WFR+40*(T&1)+4*nb,4)}, {ar(self.cfr(s,ks,tb),4)}, {'0' if T == 0 else vr(a,4)}")
            g1 = spread(20, reads(T+1), 0, 20) if T + 1 < 32 else {}
            g2 = spread(20, ld, 1, 20) if ld else {}
            for i, m in enumerate(ms):
                if i % 4 == 0: k.wait(lgtags=[(T, i // 2), (T, i // 2 + 1)])
                e(m)
                for it in g1.get(i, []): self.emit_item(it)
                for it in g2.get(i, []): self.emit_item(it)
        assert wnext[0] == 16 and cnext[0] == 16
        ST("g1")
        e(f"s_cmp_eq_u32 s{S_W}, s{S_KQ}\ns_cbranch_scc1 {L('own')}")
        for rw in range(4):
            t = WFR + 10 * rw
            for i in range(5):
                a = ACC + 4 * (5*rw + i)
                e(f"v_cvt_pk_bf16_f32 v{t+2*i}, v{a}, v{a+1}\nv_cvt_pk_bf16_f32 v{t+2*i+1}, v{a+2}, v{a+3}")
            e(f"buffer_store_dwordx4 {vr(t,4)}, v4, {G}, s55 offen sc1")
            e(f"buffer_store_dwordx4 {vr(t+4,4)}, v4, {G}, s55 offen offset:1024 sc1")
            e(f"buffer_store_dwordx2 {vr(t+8,2)}, v18, {G}, s55 offen offset:2048 sc1")
            e("s_add_u32 s55, s55, 2560")
        e(f"s_branch {L('sent')}")
        k.label("own")
        for b in range(20):
            e(f"ds_write_b128 v4, {vr(ACC+4*b,4)} offset:{OWN + b*1024}")
        k.label("sent")
        BX = 152
        e(f"v_sub_f32 v{GR+1}, 1.0, v{GR}\nv_cvt_pk_bf16_f32 v{GR+1}, v{GR+1}, v{GR+1}\nv_lshlrev_b32 v{GR+1}, 16, v{GR+1}")
        for i in range(5):
            t = BX + 4*i
            for d in range(2):
                e(f"v_lshlrev_b32 v{t+2*d}, 16, v{XR+2*i+d}\nv_and_b32 v{t+2*d+1}, {M}, v{XR+2*i+d}")
            for j in range(4): e(f"v_mul_f32 v{t+j}, v{GR+1}, v{t+j}")
        e("s_waitcnt vmcnt(0)")
        for i in range(3):
            e(f"ds_write_b128 v23, {vr(192+4*i,4)} offset:{i*64*YROW}")
        e("s_waitcnt lgkmcnt(0)")
        e(f"s_barrier\ns_cmp_lg_u32 s{S_W}, 0\ns_cbranch_scc1 {L('nxf')}\ns_mov_b64 exec, 1\nbuffer_store_dword v25, v24, {G}, 0 offen sc1\ns_mov_b64 exec, -1")
        k.label("nxf")
        ST("g2")
        P = 112; YY = 84; TT = 132
        for i in range(5):
            e(f"ds_read_b64_tr_b16 {vr(YY+2*i,2)}, v5 offset:{i*16*YROW}")
        for i in range(5):
            e(f"ds_read_b128 {vr(P+4*i,4)}, v21 offset:{OWN + i*1024}")
        e("s_waitcnt lgkmcnt(5)")
        for i in range(5):
            t = BX + 4*i; u = TT + 4*i
            for d in range(2):
                e(f"v_lshlrev_b32 v{u+2*d}, 16, v{YY+2*i+d}\nv_and_b32 v{u+2*d+1}, {M}, v{YY+2*i+d}")
            for d in range(2): e(f"v_pk_mul_f32 {vr(t+2*d,2)}, {vr(t+2*d,2)}, {vr(u+2*d,2)}")
        e(f"s_mov_b32 s{T1}, 0x100000")
        k.label("xsp")
        e(f"""buffer_load_dword v10, v19, {G}, 0 offen sc1
s_waitcnt vmcnt(0)
v_cmp_ne_u32 vcc, 1, v10
s_sub_u32 s{T1}, s{T1}, 1
s_cmp_eq_u32 s{T1}, 0
s_cbranch_scc1 {L('xok')}
s_cbranch_vccz {L('xok')}
s_sleep 2
s_branch {L('xsp')}""")
        k.label("xok")
        ST("g3")
        R = 48
        for s in range(3):
            r = R + 12*s
            e(f"buffer_load_dwordx4 {vr(r,4)}, v4, {G}, s{51+s} offen sc1")
            e(f"buffer_load_dwordx4 {vr(r+4,4)}, v4, {G}, s{51+s} offen offset:1024 sc1")
            e(f"buffer_load_dwordx2 {vr(r+8,2)}, v18, {G}, s{51+s} offen offset:2048 sc1")
        e("s_waitcnt lgkmcnt(0)")
        for s in range(3):
            e(f"s_waitcnt vmcnt({6 - 3*s})")
            for i in range(5):
                p = P + 4*i; t = BX + 4*i; u = TT + 4*i; r = R + 12*s + 2*i
                for d in range(2):
                    e(f"v_lshlrev_b32 v{u+2*d}, 16, v{r+d}\nv_and_b32 v{u+2*d+1}, {M}, v{r+d}")
                for d in range(2): e(f"v_pk_add_f32 {vr(p+2*d,2)}, {vr(p+2*d,2)}, {vr(u+2*d,2)}")
                if s == 2:
                    for j in range(4): e(f"v_fmac_f32 v{t+j}, v{GR}, v{p+j}")
                    e(f"v_cvt_pk_bf16_f32 v{u}, v{t}, v{t+1}\nv_cvt_pk_bf16_f32 v{u+1}, v{t+2}, v{t+3}")
                    e(f"buffer_store_dwordx2 {vr(u,2)}, v20, {SO}, 0 offen offset:{i*32}")
    def outofline(self):
        k, G = self.k, self.G; e = k.e; L = k.L
        k.label("yspin")
        e(f"s_mov_b32 s{T1}, 0x100000")
        k.label("yspl")
        e(f"""s_sleep 4
buffer_load_dwordx4 v[192:195], v7, {G}, 0 offen sc1
s_waitcnt vmcnt(0)
v_and_b32 v192, v192, v193
v_and_b32 v194, v194, v195
v_and_b32 v192, v192, v194
v_cmp_ne_u32 vcc, 1, v192
s_sub_u32 s{T1}, s{T1}, 1
s_cmp_eq_u32 s{T1}, 0
s_cbranch_scc1 {L('yok')}
s_cbranch_vccnz {L('yspl')}
s_branch {L('yok')}""")
```
